```python
import torch

def _softmax(x, axis=-1):
    return torch.softmax(x, dim=axis)

def _gelu(x):
    return torch.nn.functional.gelu(x, approximate='tanh')

def _silu(x):
    return torch.nn.functional.silu(x)

def _sigmoid(x):
    return torch.sigmoid(x)

def _layernorm(x, axis=-1, eps=1e-05):
    m = x.mean(dim=axis, keepdim=True)
    v = x.var(dim=axis, keepdim=True, unbiased=False)
    return (x - m) / torch.sqrt(v + eps)

def _scatter_add(tgt, idx, src, axis=0):
    return tgt.clone().index_add_(axis, idx, src)

def _segment_sum(src, seg, n):
    out = torch.zeros((n,) + src.shape[1:], dtype=src.dtype)
    return out.index_add_(0, seg, src)

def _pad(x, pw):
    flat = tuple((v for pair in reversed(pw) for v in pair))
    return torch.nn.functional.pad(x, flat)
kernel_name = 'gated_mix__compressed_kv_cla__memory_aug_recurrent_mem_tr__prompt'

def setup_inputs():

    _w = lambda a: (lambda t: t.to(torch.bfloat16) if t.is_floating_point() else t)(torch.as_tensor(a))

    def _A_setup():
        B, H, Sq, Sk, D, M = (1, 32, 2048, 2048, 128, 512)
        Dc = 4 * D
        return {'x': _w((lambda *s: torch.randn(*s, dtype=torch.bfloat16) * 0.05)(B, Sq, M)), 'c_kv': _w((lambda *s: torch.randn(*s, dtype=torch.bfloat16) * 0.8)(B, Sk, Dc)), 'w_q': _w((lambda *s: torch.randn(*s, dtype=torch.bfloat16) * 6.4)(M, H, D) * M ** (-0.5)), 'w_uk': _w((lambda *s: torch.randn(*s, dtype=torch.bfloat16) * 6.4)(Dc, H, D) * Dc ** (-0.5)), 'w_uv': _w((lambda *s: torch.randn(*s, dtype=torch.bfloat16) * 0.8)(Dc, H, D) * Dc ** (-0.5)), 'w_o': _w((lambda *s: torch.randn(*s, dtype=torch.bfloat16) * 0.8)(H, D, M) * (H * D) ** (-0.5))}
    _A_in = _A_setup()

    def _B_setup():
        B, S, Dm = (1, 2048, 512)
        H, Dh = (32, 128)
        M, seg = (8, 32)
        seg = min(seg, S)
        S = S // seg * seg
        return {'x': _w((lambda *s: torch.randn(*s, dtype=torch.bfloat16) * 0.05)(B, S, Dm)), 'mem0': _w((lambda *s: torch.randn(*s, dtype=torch.bfloat16) * 0.8)(B, M, Dm)), 'Wq': _w((lambda *s: torch.randn(*s, dtype=torch.bfloat16) * 3.2)(Dm, H, Dh) * Dm ** (-0.5)), 'Wk': _w((lambda *s: torch.randn(*s, dtype=torch.bfloat16) * 3.2)(Dm, H, Dh) * Dm ** (-0.5)), 'Wv': _w((lambda *s: torch.randn(*s, dtype=torch.bfloat16) * 0.8)(Dm, H, Dh) * Dm ** (-0.5)), 'Wo': _w((lambda *s: torch.randn(*s, dtype=torch.bfloat16) * 0.8)(H, Dh, Dm) * (H * Dh) ** (-0.5)), 'seg_len': seg}
    _B_in = _B_setup()
    return {'A_x': _A_in['x'], 'A_c_kv': _A_in['c_kv'], 'A_w_q': _A_in['w_q'], 'A_w_uk': _A_in['w_uk'], 'A_w_uv': _A_in['w_uv'], 'A_w_o': _A_in['w_o'], 'B_x': _B_in['x'], 'B_mem0': _B_in['mem0'], 'B_Wq': _B_in['Wq'], 'B_Wk': _B_in['Wk'], 'B_Wv': _B_in['Wv'], 'B_Wo': _B_in['Wo'], 'B_seg_len': _B_in['seg_len'], 'gate_w': _w((lambda *s: torch.randn(*s, dtype=torch.bfloat16) * 0.05)(512) * 16.0)}

def reference(A_x, A_c_kv, A_w_q, A_w_uk, A_w_uv, A_w_o, B_x, B_mem0, B_Wq, B_Wk, B_Wv, B_Wo, B_seg_len, gate_w):

    def _A_ref(x, c_kv, w_q, w_uk, w_uv, w_o):
        B, Sq, M = (x.shape[0], x.shape[1], x.shape[2])
        Sk = c_kv.shape[1]
        H, D = (w_q.shape[1], w_q.shape[2])
        q = torch.einsum('bqm,mhd->bhqd', x, w_q)
        k = torch.einsum('bkc,chd->bhkd', c_kv, w_uk)
        v = torch.einsum('bkc,chd->bhkd', c_kv, w_uv)
        scores = torch.einsum('bhqd,bhkd->bhqk', q, k) * D ** (-0.5)
        off = Sk - Sq
        qi = torch.arange(Sq)[:, None]
        kj = torch.arange(Sk)[None, :]
        cmask = kj <= qi + off
        scores = torch.where(cmask[None, None], scores, -1000000000.0)
        p = _softmax(scores, axis=-1)
        ctx = torch.einsum('bhqk,bhkd->bhqd', p, v)
        return torch.einsum('bhqd,hdm->bqm', ctx, w_o)

    def _B_ref(x, mem0, Wq, Wk, Wv, Wo, seg_len):
        B, S, Dm = x.shape
        H, Dh = (Wq.shape[1], Wq.shape[2])
        M = mem0.shape[1]
        scale = Dh ** (-0.5)
        n_seg = S // seg_len
        L = M + seg_len
        idx = torch.arange(L)
        mask = (idx[:, None] < M) | (idx[:, None] >= idx[None, :])
        mem = mem0
        outs = []
        for s in range(n_seg):
            xs = x[:, s * seg_len:(s + 1) * seg_len, :].clone()
            h = torch.concatenate([mem, xs], axis=1)
            q = torch.einsum('btd,dhe->bhte', h, Wq)
            k = torch.einsum('btd,dhe->bhte', h, Wk)
            v = torch.einsum('btd,dhe->bhte', h, Wv)
            scores = torch.einsum('bhqe,bhke->bhqk', q, k) * scale
            scores = torch.where(mask[None, None], scores, -1000000000.0)
            p = _softmax(scores, axis=-1)
            o = torch.einsum('bhqk,bhke->bhqe', p, v)
            o = torch.einsum('bhte,hed->btd', o, Wo)
            mem = o[:, :M, :].clone()
            outs.append(o[:, M:, :])
        return torch.concatenate(outs, axis=1)
    x = A_x
    g = _sigmoid((x * gate_w).sum(-1, keepdims=True))
    a = _A_ref(x, A_c_kv, A_w_q, A_w_uk, A_w_uv, A_w_o)
    b = _B_ref(x, B_mem0, B_Wq, B_Wk, B_Wv, B_Wo, B_seg_len)
    return g * a + (1 - g) * b
```

```python
class Asm:
    def __init__(self):
        self.lines = []
        self._lab = 0

    def __call__(self, s=""):
        for ln in s.split("\n"):
            ln = ln.strip()
            if not ln:
                continue
            if ln.endswith(":") or ln.startswith("."):
                self.lines.append(ln)
            else:
                self.lines.append("  " + ln)

    def c(self, s):
        self.lines.append("  ; " + s)

    def label(self, base="L"):
        self._lab += 1
        return f"{base}_{self._lab}"

    def text(self):
        return "\n".join(x for x in self.lines if not x.startswith("  ; @") or "@launch" in x) + "\n"


def v(i, n=1):
    assert 0 <= i and i + n <= 256, (i, n)
    return f"v{i}" if n == 1 else f"v[{i}:{i+n-1}]"


def a(i, n=1):
    assert 0 <= i and i + n <= 256, (i, n)
    return f"a{i}" if n == 1 else f"a[{i}:{i+n-1}]"


def r(i, n=1):
    if i >= 256:
        return a(i - 256, n)
    assert i + n <= 256
    return v(i, n)


def s(i, n=1):
    return f"s{i}" if n == 1 else f"s[{i}:{i+n-1}]"


def kernel_header(name):
    return f""".text
.globl {name}
.p2align 8
.type {name},@function
{name}:
"""


def kernel_desc(name, vgpr=512, accum=256, sgpr=102):
    return f""".section .rodata,"a"
.p2align 6
.amdhsa_kernel {name}
  .amdhsa_next_free_vgpr {vgpr}
  .amdhsa_next_free_sgpr {sgpr}
  .amdhsa_accum_offset {accum}
  .amdhsa_group_segment_fixed_size 0
  .amdhsa_kernarg_size 136
  .amdhsa_user_sgpr_count 2
  .amdhsa_user_sgpr_kernarg_segment_ptr 1
  .amdhsa_system_sgpr_workgroup_id_x 1
.end_amdhsa_kernel
"""
```

```python
import struct
from emit import *
from layout import *
from gemm import G_WS, G_W, V_LANE, V_L16, lane_setup, ws_srd

def fbits(x): return struct.unpack("<I", struct.pack("<f", x))[0]

A_KOFF, A_VOFF = 17, 18
A_KMIN, A_VMIN = 19, 20
A_M0 = 21
A_N = 22
A_E = 23
A_T0, A_T1, A_T2 = 26, 27, 28
A_RETRY = 29
A_NEG = 24
A_QOFF = 25
AO, AQ_, AK_, AV_ = 0, 128, 192, 224
V_DMA, V_RDA, V_THR = 3, 4, 5
V_NM = 6
V_LS = 8
V_TM = 12
VS, VC, VP = 32, 64, 96
VO = 112
RING, DEPTH = 8, 5
L_FLAG = RING * 16384

def wsd(): return s(G_WS, 4)
def qk(qt, st): return f"v_mfma_f32_32x32x16_bf16 {v(VS+16*qt,16)}, {a(AK_+4*st,4)}, {a(AQ_+32*qt+4*st,4)}, {v((VC if st == 0 else VS)+16*qt,16)}"
def pv(qt, f):
    st, dt = f >> 2, f & 3
    d = a(AO + 64*qt + 16*dt, 16)
    return f"v_mfma_f32_32x32x16_bf16 {d}, {a(AV_+4*f,4)}, {v(VP+8*qt+4*st,4)}, {d}"
def rd_k(st): return f"ds_read_b128 {a(AK_+4*st,4)}, v{V_RDA} offset:{8192 + 1024*st}"
def rd_v(f): return f"ds_read_b128 {a(AV_+4*f,4)}, v{V_RDA} offset:{1024*(2*(f & 3) + (f >> 2))}"
def ex(qt, e): return f"v_exp_f32 v{VS+16*qt+e}, v{VS+16*qt+e}"
def ad(qt, e): return f"v_add_f32 v{V_LS+2*qt+(e&1)}, v{V_LS+2*qt+(e&1)}, v{VS+16*qt+e}"
def cv(qt, p): return f"v_cvt_pk_bf16_f32 v{VP+8*qt+p}, v{VS+16*qt+2*p}, v{VS+16*qt+2*p+1}"

def fetch(sc):
    ld = lambda so, off: f"buffer_load_dwordx4 v{V_DMA}, {wsd()}, s{so} offen offset:{off}{sc} lds"
    return [f"s_mov_b32 m0, s{A_M0}", ld(A_VOFF, 0), ld(A_VOFF, 1024), f"s_add_u32 m0, s{A_M0}, 8192", ld(A_KOFF, 0), ld(A_KOFF, 1024)]
def fetch_adv():
    return [f"s_sub_u32 s{A_VOFF}, s{A_VOFF}, 8192", f"s_max_i32 s{A_VOFF}, s{A_VOFF}, s{A_VMIN}",
            f"s_sub_u32 s{A_KOFF}, s{A_KOFF}, 8192", f"s_max_i32 s{A_KOFF}, s{A_KOFF}, s{A_KMIN}",
            f"s_add_u32 s{A_M0}, s{A_M0}, 16384", f"s_and_b32 s{A_M0}, s{A_M0}, {RING*16384 - 1}"]
def fetch_now(E, sc, adv=True):
    if adv:
        for x in fetch_adv(): E(x)
    for x in fetch(sc):
        E(x)
        if "m0" in x: E("s_nop 0")
def rda_adv(): return [f"v_add_u32 v{V_RDA}, 16384, v{V_RDA}", f"v_and_b32 v{V_RDA}, {RING*16384 - 1}, v{V_RDA}"]

def set_c(E, qt, kind):
    for i in range(16):
        d = VC + 16*qt + i
        if kind == "open": E(f"v_mov_b32 v{d}, v{V_NM+qt}")
        elif kind == "mask": E(f"v_mov_b32 v{d}, s{A_NEG}")
    if kind == "diag":
        E(f"v_mov_b32 v{V_TM}, s{A_NEG}")
        for i0 in range(0, 16, 4):
            for i in range(i0, i0 + 4):
                E(f"v_cmp_le_i32 s[{40+2*(i&3)}:{41+2*(i&3)}], {8*(i>>2) + (i&3)}, v{V_THR}")
            for i in range(i0, i0 + 4):
                E(f"v_cndmask_b32 v{VC+16*qt+i}, v{V_TM}, v{V_NM+qt}, s[{40+2*(i&3)}:{41+2*(i&3)}]")


def attn_task(E, s_h, s_qb, sc, osc, diag=False):
    errs = []
    l0 = len(E.lines)
    E(f"s_mov_b32 s{A_NEG}, {hex(fbits(-1e30))}\n s_mov_b32 s{A_RETRY}, 0")
    E(f"v_mov_b32 v{V_NM}, 0\n v_mov_b32 v{V_NM+1}, 0")
    E(f"s_lshl_b32 s{A_T0}, s{G_W}, 11\n v_add_u32 v{V_DMA}, s{A_T0}, v{V_L16}")
    E(f"v_and_b32 v{V_THR}, 31, v{V_LANE}\n v_lshrrev_b32 v{V_TM}, 5, v{V_LANE}\n v_lshlrev_b32 v{V_TM}, 2, v{V_TM}\n v_sub_u32 v{V_THR}, v{V_THR}, v{V_TM}")
    E(f"s_lshl_b32 s{A_T0}, s{s_h}, 19\n s_add_u32 s{A_KMIN}, s{A_T0}, {KA}\n s_add_u32 s{A_VMIN}, s{A_T0}, {VA}")
    E(f"s_lshl_b32 s{A_T1}, s{s_qb}, 2\n s_add_u32 s{A_T1}, s{A_T1}, s{G_W}\n s_lshl_b32 s{A_T1}, s{A_T1}, 14\n s_add_u32 s{A_QOFF}, s{A_T0}, s{A_T1}")
    for k in range(4):
        E(f"s_add_u32 s{A_T2}, s{A_QOFF}, {QA + 4096*k}")
        for i in range(4):
            E(f"buffer_load_dwordx4 {a(AQ_ + 16*k + 4*i, 4)}, v{V_L16}, {wsd()}, s{A_T2} offen offset:{1024*i}{sc}")
    again = E.label("A_again")
    E(again + ":")
    E(f"s_lshl_b32 s{A_T1}, s{s_qb}, 16\n s_add_u32 s{A_T1}, s{A_T1}, {7*8192}")
    E(f"s_add_u32 s{A_KOFF}, s{A_KMIN}, s{A_T1}\n s_add_u32 s{A_VOFF}, s{A_VMIN}, s{A_T1}\n s_lshl_b32 s{A_M0}, s{G_W}, 11")
    fetch_now(E, sc, False)
    E(f"s_add_u32 s{A_VOFF}, s{A_VOFF}, 8192")
    for _ in range(DEPTH): fetch_now(E, sc)
    for i in range(128): E(f"v_accvgpr_write_b32 a{AO+i}, 0")
    for i in range(4): E(f"v_mov_b32 v{V_LS+i}, 0")
    for e in range(4, 16): E(f"v_mov_b32 v{VS+16+e}, " + ("0" if e < 6 else f"s{A_NEG}"))
    E(f"v_mov_b32 v{VP+8}, 0\n v_mov_b32 v{VP+9}, 0\n v_mov_b32 v{V_RDA}, v{V_L16}")
    set_c(E, 0, "mask"); set_c(E, 1, "diag")
    E(f"s_lshl_b32 s{A_N}, s{s_qb}, 3\n s_add_u32 s{A_N}, s{A_N}, 8\n s_lshl_b32 s{A_T0}, s{G_W}, 1\n s_sub_u32 s{A_E}, 6, s{A_T0}")
    E(f"s_waitcnt vmcnt({4*DEPTH})\n s_barrier")
    if diag: tmark(E, 1)
    idle, go = E.label("A_idle"), E.label("A_go")
    E(f"s_cmp_eq_u32 s{A_E}, 0\n s_cbranch_scc1 {go}")
    E(idle + ":")
    E(f"s_waitcnt vmcnt({4*(DEPTH-1)})\n s_barrier")
    fetch_now(E, sc)
    for x in rda_adv(): E(x)
    E(f"s_sub_u32 s{A_N}, s{A_N}, 1\n s_sub_u32 s{A_E}, s{A_E}, 1\n s_cmp_lg_u32 s{A_E}, 0\n s_cbranch_scc1 {idle}")
    E(go + ":")
    for f in range(8): E.ds(rd_v(f))
    for st in range(8): E.ds(rd_k(st))
    for x in rda_adv(): E(x)
    E.need(a(AV_, 32))
    errs += hazard.check(E.lines[l0:], "attn prologue")
    lg0 = list(E.lg)
    top, upd, back, out = E.label("A_top"), E.label("A_upd"), E.label("A_back"), E.label("A_out")
    E(".p2align 6")
    E(top + ":")
    l1 = len(E.lines)
    mf = [(qk(0, i), a(AK_+4*i, 4)) for i in range(8)] + [(pv(1, i), None) for i in range(8)] \
        + [(qk(1, i), None) for i in range(8)] + [(pv(0, i), a(AV_+4*i, 4)) for i in range(8)]
    fl = fetch(sc); fa = fetch_adv()
    sca = {n: [] for n in range(32)}; mem = {n: [] for n in range(32)}; val = {n: [] for n in range(32)}
    for f in range(8): mem[8 + f].append(rd_v(f)); mem[16 + f].append(rd_k(f))
    sca[22].append(fl[0]); mem[24].append(fl[1]); mem[26].append(fl[2]); sca[27].append(fl[3]); mem[28].append(fl[4]); mem[30].append(fl[5])
    for k, x in enumerate(fa): sca[9 + k].append(x)
    for qt, b in ((0, 10), (1, 26)):
        for e in range(16):
            val[(b + e) % 32].insert(0, ex(qt, e)); val[(b + 1 + e) % 32].append(ad(qt, e))
        for p in range(8): val[(b + 2 + 2*p) % 32].append(cv(qt, p))
    val[25].append(rda_adv()[0]); val[27].append(rda_adv()[1])
    sca[16].append(f"s_add_u32 s{A_E}, s{A_E}, 1"); sca[17].append(f"s_sub_u32 s{A_N}, s{A_N}, 1")
    sca[18].append(f"s_cmp_lt_u32 s{A_E}, 3"); sca[19].append(f"s_cbranch_scc1 {upd}")
    sca[29].append(f"s_cmp_lg_u32 s{A_N}, 0")
    E.need(mf[0][1])
    for n in range(32):
        E(mf[n][0])
        if n == 7:
            E(f"s_waitcnt vmcnt({4*(DEPTH-1)})\n s_barrier")
        elif n % 2 == 1 or n == 0:
            nx = [mf[k % 32][1] for k in ((n + 1, n + 2) if n else (1,)) if k < 32 and mf[k % 32][1]]
            if nx: E.need(*nx)
        for x in sca[n]: E(x)
        if n == 19: E(back + ":")
        for x in mem[n]: (E.ds if x.startswith("ds_") else E)(x)
        for x in val[n]: E(x)
    assert E.lg == lg0, (E.lg, lg0)
    E(f"s_cbranch_scc1 {top}")
    body = E.lines[l1:]
    errs += hazard.check([rd_k(st) for st in range(8)] + body + body, "attn loop")
    l2 = len(E.lines)
    for n in range(0, 11):
        for x in val[n]:
            if f"v{VS}," in x and n == 10 and x.startswith("v_exp"): continue
            E(x)
    E("s_nop 1")
    for f in range(8): E(pv(1, f))
    if diag: tmark(E, 2)
    for qt in range(2):
        l_ = V_LS + 2*qt
        E(f"v_add_f32 v{l_}, v{l_}, v{l_+1}\n v_mov_b32 v{l_+1}, v{l_}\n s_nop 1\n v_permlane32_swap_b32 v{l_}, v{l_+1}\n s_nop 1\n v_add_f32 v{l_}, v{l_}, v{l_+1}")
    lo, hi = fbits(2.0 ** -32), fbits(2.0 ** 48)
    E(f"v_subrev_u32 v{V_TM}, {hex(lo)}, v{V_LS}\n v_subrev_u32 v{V_TM+1}, {hex(lo)}, v{V_LS+2}\n v_max_u32 v{V_TM}, v{V_TM}, v{V_TM+1}")
    E(f"v_cmp_le_u32 vcc, {hex(hi - lo)}, v{V_TM}\n s_nop 1\n s_cmp_lg_u64 vcc, 0\n s_cselect_b32 s{A_T0}, 1, 0")
    E(f"v_mov_b32 v{V_TM}, s{A_T0}\n s_lshl_b32 s{A_T0}, s{G_W}, 2\n s_add_u32 s{A_T0}, s{A_T0}, {L_FLAG}\n v_mov_b32 v{V_TM+1}, s{A_T0}")
    E(f"ds_write_b32 v{V_TM+1}, v{V_TM}\n v_mov_b32 v{V_TM+2}, {L_FLAG}\n s_waitcnt vmcnt(0) lgkmcnt(0)\n s_barrier")
    E(f"ds_read_b128 {v(V_TM+4,4)}, v{V_TM+2}")
    E(f"v_rcp_f32 v{V_LS}, v{V_LS}\n v_rcp_f32 v{V_LS+2}, v{V_LS+2}\n s_waitcnt lgkmcnt(0)")
    E(f"v_or3_b32 v{V_TM}, v{V_TM+4}, v{V_TM+5}, v{V_TM+6}\n v_or_b32 v{V_TM}, v{V_TM}, v{V_TM+7}\n s_nop 0\n v_readfirstlane_b32 s{A_T0}, v{V_TM}")
    slow = E.label("A_slow")
    E(f"s_nop 1\n s_cmp_gt_u32 s{A_T0}, s{A_RETRY}\n s_cbranch_scc1 {slow}")
    E.lg = []
    for k in range(4):
        qt = k >> 1
        E(f"s_add_u32 s{A_T2}, s{A_QOFF}, {CTXA + 4096*k}")
        for i in range(4):
            t = VO + 12*((4*k + i) % 4)
            for j in range(8): E(f"v_accvgpr_read_b32 v{t+j}, a{AO + 32*k + 8*i + j}")
            for j in range(4): E(f"v_pk_mul_f32 {v(t+2*j,2)}, {v(t+2*j,2)}, {v(V_LS+2*qt,2)} op_sel_hi:[1,0]")
            for j in range(4): E(f"v_cvt_pk_bf16_f32 v{t+8+j}, v{t+2*j}, v{t+2*j+1}")
            E(f"buffer_store_dwordx4 {v(t+8,4)}, v{V_L16}, {wsd()}, s{A_T2} offen offset:{1024*i}{osc}")
    errs += hazard.check(body + E.lines[l2:], "attn tail")
    E(f"s_branch {out}")
    E(upd + ":")
    u2 = E.label("A_upd2")
    l3 = len(E.lines)
    E(f"s_cmp_eq_u32 s{A_E}, 2\n s_cbranch_scc1 {u2}")
    set_c(E, 0, "diag"); set_c(E, 1, "open")
    E(f"s_branch {back}")
    errs += hazard.check(body[:body.index(back + ":")] + E.lines[l3:], "attn upd")
    E(u2 + ":")
    set_c(E, 0, "open")
    E(f"s_branch {back}")
    E(slow + ":")
    l4 = len(E.lines)
    E(f"s_mov_b32 s{A_RETRY}, 1")
    set_c(E, 0, "mask"); set_c(E, 1, "diag")
    E(f"v_mov_b32 v{V_LS}, s{A_NEG}\n v_mov_b32 v{V_LS+2}, s{A_NEG}")
    E(f"s_add_u32 s{A_KOFF}, s{A_QOFF}, {KA + 8192}\n s_mov_b32 s{A_E}, 0")
    ml, m2, m3 = E.label("A_ml"), E.label("A_m2"), E.label("A_m3")
    E(ml + ":")
    E(f"s_add_u32 s{A_T2}, s{A_KOFF}, 4096")
    for st in range(8):
        E(f"buffer_load_dwordx4 {a(AK_+4*st,4)}, v{V_L16}, {wsd()}, s{A_KOFF if st < 4 else A_T2} offen offset:{1024*(st & 3)}{sc}")
    E("s_waitcnt vmcnt(0)")
    for qt in range(2):
        for st in range(8): E(qk(qt, st))
    E("s_nop 7\n s_nop 3")
    for qt in range(2):
        for e in range(0, 16, 2): E(f"v_max3_f32 v{V_LS+2*qt}, v{V_LS+2*qt}, v{VS+16*qt+e}, v{VS+16*qt+e+1}")
    E(f"s_add_u32 s{A_E}, s{A_E}, 1\n s_cmp_lg_u32 s{A_E}, 1\n s_cbranch_scc1 {m2}")
    set_c(E, 0, "diag"); set_c(E, 1, "open")
    E(m2 + ":")
    E(f"s_cmp_lg_u32 s{A_E}, 2\n s_cbranch_scc1 {m3}")
    set_c(E, 0, "open")
    E(m3 + ":")
    E(f"s_sub_u32 s{A_KOFF}, s{A_KOFF}, 8192\n s_cmp_ge_i32 s{A_KOFF}, s{A_KMIN}\n s_cbranch_scc1 {ml}")
    for qt in range(2):
        l_ = V_LS + 2*qt
        E(f"v_mov_b32 v{l_+1}, v{l_}\n s_nop 1\n v_permlane32_swap_b32 v{l_}, v{l_+1}\n s_nop 1\n v_max_f32 v{l_}, v{l_}, v{l_+1}\n v_sub_f32 v{V_NM+qt}, 0, v{l_}")
    errs += hazard.check(E.lines[l4:], "attn slow")
    E(f"s_branch {again}")
    E(out + ":")
    return errs


def attn_kernel(E, name, sc="", osc="", diag=False):
    E(kernel_header(name))
    end = E.label("A_exit")
    E(f"s_cmp_ge_u32 s2, 256\n s_cbranch_scc1 {end}")
    lane_setup(E); ws_srd(E)
    E("s_and_b32 s50, s2, 31\n s_lshr_b32 s51, s2, 5\n s_sub_u32 s51, 7, s51")
    if diag: tmark(E, 0)
    errs = attn_task(E, 50, 51, sc, osc, diag)
    if diag: tmark(E, 3); tdump(E, G_WS, STAMP, 2)
    E(end + ":\n s_endpgm")
    return errs

if __name__ == "__main__":
    E = Em()
    E("; @launch grid=(256,1,1) block=(256,1,1) lds=163840")
    E('.amdgcn_target "amdgcn-amd-amdhsa--gfx950"')
    errs = attn_kernel(E, "attn_kernel")
    E(kernel_desc("attn_kernel"))
    open("attn.s", "w").write(E.text())
    print(len(errs), "hazards")
```

```python
from asmlib import *
import hazard

class Em(Asm):
    def __init__(self):
        super().__init__()
        self.lg = []
        self.vm = []

    @staticmethod
    def _regs(tok):
        return set(hazard.regs_of(tok))

    def ds(self, ins, tag=None):
        d = hazard.parse(ins)
        self.lg.append(set(d["w"]) | ({tag} if tag else set()))
        self(ins)

    def vmem(self, ins, tag=None):
        d = hazard.parse(ins)
        self.vm.append(set(d["w"]) | ({tag} if tag else set()))
        self(ins)

    def _need(self, q, keys):
        last = -1
        for i, e in enumerate(q):
            if e & keys:
                last = i
        if last < 0:
            return None
        n = len(q) - 1 - last
        del q[: last + 1]
        return n

    def need(self, *toks, tags=()):
        keys = set(tags)
        for t in toks:
            keys |= self._regs(t)
        nl = self._need(self.lg, keys)
        nv = self._need(self.vm, keys)
        parts = []
        if nv is not None:
            assert nv <= 63
            parts.append(f"vmcnt({nv})")
        if nl is not None:
            parts.append(f"lgkmcnt({min(nl, 15)})")
        if parts:
            self("s_waitcnt " + " ".join(parts))
            return True
        return False

    def drain(self, lg=False, vm=False):
        parts = []
        if vm:
            parts.append("vmcnt(0)"); self.vm = []
        if lg:
            parts.append("lgkmcnt(0)"); self.lg = []
        self("s_waitcnt " + " ".join(parts))

    def srd(self, base, ptr, nbytes):
        self(f"s_mov_b32 s{base}, s{ptr}")
        self(f"s_and_b32 s{base+1}, s{ptr+1}, 0xffff")
        self(f"s_mov_b32 s{base+2}, {hex(nbytes)}")
        self(f"s_mov_b32 s{base+3}, 0x20000")


def tmark(E, i):
    E(f"s_memrealtime s[98:99]\n s_memtime s[100:101]\n s_waitcnt lgkmcnt(0)\n s_mov_b32 s{80+2*i}, s98\n s_mov_b32 s{81+2*i}, s100")

def tdump(E, srd, off, s_id):
    for i in range(16):
        E(f"v_mov_b32 v{200+i}, s{80+i}")
    E(f"s_lshl_b32 s98, s{s_id}, 6\n s_add_u32 s98, s98, {off}\n v_mov_b32 v216, 0")
    for i in range(4):
        E(f"buffer_store_dwordx4 v[{200+4*i}:{203+4*i}], v216, s[{srd}:{srd+3}], s98 offen offset:{16*i}")
```

```python
from emit import *
from layout import *

G_WS = 4
G_WSRD = 8
G_ASRD = 12
G_W = 16
G_WOFF = 17
G_WSTR = 18
G_AOFF = 19
G_ASTR = 20
G_OOFF = 21
G_OSTR = 22
G_N = 23
G_SCALE = 24
G_M0 = 25
G_T0, G_T1, G_T2, G_T3 = 26, 27, 28, 29
G_DONE = 30
G_FLAG = 31
V_LANE = 1
V_L16 = 2
V_RD = 8
V_DM = 16
V_AF = 24
V_ACC = 64
V_PK = 128
V_T = 144
NF = 8
LEAD = 6


def lane_setup(E):
    E(f"v_lshrrev_b32 v3, 6, v0\n v_and_b32 v{V_LANE}, 63, v0\n v_readfirstlane_b32 s{G_W}, v3\n v_lshlrev_b32 v{V_L16}, 4, v{V_LANE}")


def addr_rowmajor(E):
    t = V_T
    E(f"v_and_b32 v{t}, 31, v{V_LANE}\n v_lshrrev_b32 v{t+1}, 5, v{V_LANE}\n v_and_b32 v{t+2}, 15, v{V_LANE}")
    for j in range(8):
        E(f"v_or_b32 v{t+3}, {2*j}, v{t+1}\n v_xor_b32 v{t+3}, v{t+3}, v{t+2}\n v_lshlrev_b32 v{t+3}, 4, v{t+3}")
        E(f"v_lshl_add_u32 v{V_RD+j}, v{t}, 8, v{t+3}")
    E(f"v_lshrrev_b32 v{t}, 4, v{V_LANE}\n s_lshl_b32 s{G_T0}, s{G_W}, 8")
    for j in range(8):
        E(f"v_add_u32 v{t+1}, {4*j}, v{t}\n v_and_b32 v{t+3}, 15, v{t+1}\n v_xor_b32 v{t+3}, v{t+3}, v{t+2}\n v_lshlrev_b32 v{t+3}, 4, v{t+3}")
        E(f"v_lshl_add_u32 v{t+3}, v{t+1}, 10, v{t+3}\n v_add_u32 v{V_DM+j}, s{G_T0}, v{t+3}")


def addr_frag(E, wave_stride):
    E(f"s_mul_i32 s{G_T0}, s{G_W}, {wave_stride}")
    for j in range(8):
        E(f"v_add_u32 v{V_RD+j}, {1024*j}, v{V_L16}")
        E(f"v_add_u32 v{V_DM+j}, s{G_T0}, v{V_RD+j}")


def load_w(E, perm, hook=None):
    t = V_T
    E(f"v_lshrrev_b32 v{t}, 3, v{V_LANE}\n v_mul_lo_u32 v{t}, v{t}, s{G_WSTR}\n v_and_b32 v{t+1}, 7, v{V_LANE}\n v_lshl_add_u32 v{t}, v{t+1}, 4, v{t}")
    E(f"s_lshl_b32 s{G_T2}, s{G_W}, 15\n s_add_u32 s{G_T2}, s{G_T2}, 32768\n s_lshl_b32 s{G_T3}, s{G_WSTR}, 3")
    n_iss = [0]
    def issue():
        j = n_iss[0]; n_iss[0] += 1
        E(f"s_add_u32 m0, s{G_T2}, {(j % 32) * 1024}")
        E("s_nop 0")
        E.vmem(f"buffer_load_dwordx4 v{t}, {s(G_WSRD,4)}, s{G_WOFF} offen lds", tag=("w", j // 2))
        E(f"s_add_u32 s{G_WOFF}, s{G_WOFF}, s{G_T3}")
    for j in range(32): issue()
    if hook: hook()
    E(f"v_bfe_u32 v{t+4}, v{V_LANE}, 2, 2\n v_lshrrev_b32 v{t+5}, 5, v{V_LANE}")
    E(f"v_lshl_add_u32 v{t+4}, v{t+5}, {2 if perm else 3}, v{t+4}\n v_lshlrev_b32 v{t+4}, 7, v{t+4}")
    E(f"v_bfe_u32 v{t+5}, v{V_LANE}, 4, 1\n v_lshl_add_u32 v{t+4}, v{t+5}, 5, v{t+4}")
    if perm:
        E(f"v_and_b32 v{t+5}, 1, v{V_LANE}\n v_lshl_add_u32 v{t+4}, v{t+5}, 4, v{t+4}")
        E(f"v_bfe_u32 v{t+5}, v{V_LANE}, 1, 1\n v_lshl_add_u32 v{t+4}, v{t+5}, 3, v{t+4}")
    else:
        E(f"v_and_b32 v{t+5}, 3, v{V_LANE}\n v_lshl_add_u32 v{t+4}, v{t+5}, 3, v{t+4}")
    E(f"v_add_u32 v{t+2}, s{G_T2}, v{t+4}\n v_add_u32 v{t+3}, {(8 if perm else 4) * 128}, v{t+2}")
    for k2 in range(16):
        E.need(tags=[("w", 2 * k2 + 1)])
        for ks in (2 * k2, 2 * k2 + 1):
            for ct in range(2):
                for hi in range(2):
                    E.ds(f"ds_read_b64_tr_b16 {a((ks*2 + ct)*4 + 2*hi, 2)}, v{t+2+hi} offset:{(ks % 16)*2048 + ct*64}")
        E.drain(lg=True)
        if n_iss[0] < 64:
            for _ in range(4): issue()


def fetch_list(sc):
    return [(f"s_add_u32 m0, s{G_M0}, {1024*j}", f"buffer_load_dwordx4 v{V_DM+j}, {s(G_ASRD,4)}, s{G_AOFF} offen{sc} lds") for j in range(8)]

def fetch_adv(need):
    return [f"s_cmp_gt_u32 s{G_N}, {need}", f"s_cselect_b32 s{G_T0}, s{G_ASTR}, 0", f"s_add_u32 s{G_AOFF}, s{G_AOFF}, s{G_T0}",
            f"s_add_u32 s{G_M0}, s{G_M0}, 32768", f"s_and_b32 s{G_M0}, s{G_M0}, 0x1ffff"]

def fetch_now(E, sc, tag, idx):
    if idx == 0: E(f"s_lshl_b32 s{G_M0}, s{G_W}, 13")
    for m, d in fetch_list(sc):
        E(m); E("s_nop 0"); E.vmem(d, tag=tag)
    for x in fetch_adv(idx + 1): E(x)

def rd_frag(ks, par):
    return f"ds_read_b128 {v(V_AF + 4*(ks % NF), 4)}, v{V_RD + (ks & 7)} offset:{par*32768 + (ks >> 3)*8192}"

def mfma(vstyle, par, ks, ct):
    d = v(V_ACC + 32*par + 16*ct, 16); w_ = a((ks*2 + ct)*4, 4); x_ = v(V_AF + 4*(ks % NF), 4)
    ops = (x_, w_) if vstyle else (w_, x_)
    return f"v_mfma_f32_32x32x16_bf16 {d}, {ops[0]}, {ops[1]}, {'0' if ks == 0 else d}"

def epilogue_ops(par, sc):
    out = []
    for b in range(4):
        base = V_ACC + 32*par + 8*b
        vl = []
        for i in range(4):
            vl += [f"v_mul_f32 v{base+2*i}, s{G_SCALE}, v{base+2*i}", f"v_mul_f32 v{base+2*i+1}, s{G_SCALE}, v{base+2*i+1}",
                   f"v_cvt_pk_bf16_f32 v{V_PK+4*b+i}, v{base+2*i}, v{base+2*i+1}"]
        out.append((vl, f"buffer_store_dwordx4 {v(V_PK+4*b,4)}, v{V_L16}, {s(G_WS,4)}, s{G_OOFF} offen offset:{1024*b}{sc}"))
    return out


def publish(E):
    sk = E.label("G_pub")
    E(f"s_cmp_lg_u32 s{G_W}, 0\n s_cbranch_scc1 {sk}")
    E(f"v_mov_b32 v{V_T}, s{G_DONE}\n v_mov_b32 v{V_T+1}, 0")
    E(f"buffer_store_dword v{V_T}, v{V_T+1}, {s(G_WS,4)}, s{G_FLAG} offen sc1")
    E(sk + ":")


def stream(E, vstyle, asc, osc, flags):
    errs = []
    top, done = E.label("G_top"), [E.label("G_done0"), E.label("G_done1")]
    fin = E.label("G_fin")
    E(f"s_mov_b32 s{G_T1}, s{G_OOFF}\n s_mov_b32 s{G_OOFF}, {TRASH}")
    if flags:
        E(f"s_cmp_eq_u32 s{G_W}, 0\n s_cselect_b32 s{G_T2}, s{G_FLAG}, {TRASH + 4096}\n s_mov_b32 s{G_T3}, -3\n v_mov_b32 v{V_T+1}, 0")
    for ks in range(LEAD): E.ds(rd_frag(ks, 0))
    lg0 = list(E.lg)
    E(".p2align 6")
    E(top + ":")
    l0 = len(E.lines)
    NV = 13 if flags else 12
    for par in range(2):
        ep = epilogue_ops(1 - par, osc)
        fl = fetch_list(asc)
        slots = {n: [] for n in range(64)}
        for j in range(8):
            slots[4*j].append(fl[j][0]); slots[4*j + 1].append(fl[j][1])
        for k, x in enumerate(fetch_adv(3)): slots[30 + k].append(x)
        n = 2
        for b, (vl, st) in enumerate(ep):
            for k in range(0, 12, 2):
                slots[n] += vl[k:k+2]; n += 1
            slots[35 + 4*b].append(st)
        slots[48].append(f"s_mov_b32 s{G_OOFF}, s{G_T1}"); slots[50].append(f"s_add_u32 s{G_T1}, s{G_T1}, s{G_OSTR}")
        if flags:
            slots[54] += [f"s_add_u32 s{G_T3}, s{G_T3}, 1"]
            slots[55] += [f"s_max_i32 s{G_DONE}, s{G_T3}, 0", f"v_mov_b32 v{V_T}, s{G_DONE}"]
            slots[57] += [f"buffer_store_dword v{V_T}, v{V_T+1}, {s(G_WS,4)}, s{G_T2} offen sc1"]
        slots[60].append(f"s_sub_u32 s{G_N}, s{G_N}, 1"); slots[62].append(f"s_cmp_eq_u32 s{G_N}, 0")
        for n in range(64):
            ks, ct = n >> 1, n & 1
            if n == 0: E.need(v(V_AF, 4))
            E(mfma(vstyle, par, ks, ct))
            if ct == 1 and ks < 31:
                E.need(v(V_AF + 4*((ks + 1) % NF), 4))
            kb = 32 - LEAD
            if n == 2 * kb - 1:
                E(f"s_waitcnt vmcnt({NV + 4})\n s_barrier")
            sl = slots[n]
            sc_ = [x for x in sl if x.startswith("s_")]; vm_ = [x for x in sl if x.startswith("buffer")]; va_ = [x for x in sl if x.startswith("v_")]
            for x in sc_: E(x)
            if ct == 0:
                k2 = ks + LEAD
                if k2 < 32: E.ds(rd_frag(k2, par))
                else: E.ds(rd_frag(k2 - 32, 1 - par))
            for x in vm_: E(x)
            for x in va_: E(x)
            if par == 1 and ct == 1:
                k2 = ks + LEAD
                if 24 <= k2 < 32: E(f"v_xor_b32 v{V_RD + (k2 & 7)}, 0x10000, v{V_RD + (k2 & 7)}")
        E(f"s_cbranch_scc1 {done[par]}")
    assert E.lg == lg0
    E(f"s_branch {top}")
    body = E.lines[l0:]
    errs += hazard.check([rd_frag(ks, 0) for ks in range(LEAD)] + body + body, "gemm stream")
    for par in range(2):
        E(done[par] + ":")
        l1 = len(E.lines)
        E("s_nop 7\n s_nop 3")
        for vl, st in epilogue_ops(par, osc):
            for x in vl: E(x)
            E(st)
        if par == 0: E(f"s_branch {fin}")
        errs += hazard.check([mfma(vstyle, par, 31, 1)] + E.lines[l1:], "gemm tail")
    E(fin + ":")
    E.drain(lg=True, vm=True)
    E("s_barrier")
    if flags:
        E(f"s_add_u32 s{G_DONE}, s{G_T3}, 3")
        publish(E)
    return errs


def proj_setup(E, s_kind, s_h, s_t0, s_dt):
    import math, struct
    c = struct.unpack("<I", struct.pack("<f", math.log2(math.e) / math.sqrt(128.0)))[0]
    T0, T1, T2, T3 = G_T0, G_T1, G_T2, G_T3
    E(f"s_lshr_b32 s{T3}, s{G_W}, 1")
    def pick(dst, tab):
        E(f"s_cmp_eq_u32 s{T3}, 0")
        E(f"s_cselect_b32 s{dst}, {tab[0][0]}, {tab[0][1]}\n s_cselect_b32 s{T1}, {tab[1][0]}, {tab[1][1]}\n s_cselect_b32 s{T2}, {tab[2][0]}, {tab[2][1]}")
        E(f"s_cmp_eq_u32 s{s_kind}, 1\n s_cselect_b32 s{dst}, s{T1}, s{dst}\n s_cmp_eq_u32 s{s_kind}, 2\n s_cselect_b32 s{dst}, s{T2}, s{dst}")
    pick(T0, [(ARG["wq"] // 8, ARG["bwq"] // 8), (ARG["wuk"] // 8, ARG["wuv"] // 8), (ARG["bwk"] // 8, ARG["bwv"] // 8)])
    E(f"s_lshl_b32 s{T0}, s{T0}, 3\n s_load_dwordx2 s[{G_WSRD}:{G_WSRD+1}], s[0:1], s{T0}")
    E(f"s_cmp_eq_u32 s{s_kind}, 1\n s_cselect_b32 s{T0}, {ARG['ckv']}, {ARG['x']}\n s_load_dwordx2 s[{G_ASRD}:{G_ASRD+1}], s[0:1], s{T0}")
    pick(G_OOFF, [(QA >> 24, QB >> 24), (KA >> 24, VA >> 24), (KB >> 24, VB >> 24)])
    E(f"s_lshl_b32 s{G_OOFF}, s{G_OOFF}, 5\n s_add_u32 s{G_OOFF}, s{G_OOFF}, s{s_h}\n s_lshl_b32 s{G_OOFF}, s{G_OOFF}, 6\n s_add_u32 s{G_OOFF}, s{G_OOFF}, s{s_t0}")
    E(f"s_and_b32 s{T1}, s{G_W}, 1\n s_lshl_b32 s{G_OOFF}, s{G_OOFF}, 1\n s_add_u32 s{G_OOFF}, s{G_OOFF}, s{T1}\n s_lshl_b32 s{G_OOFF}, s{G_OOFF}, 12")
    E(f"s_lshl_b32 s{G_OSTR}, s{s_dt}, 13\n s_lshl_b32 s{G_AOFF}, s{s_t0}, 15\n s_lshl_b32 s{G_ASTR}, s{s_dt}, 15")
    E(f"s_lshl_b32 s{G_WOFF}, s{s_h}, 1\n s_add_u32 s{G_WOFF}, s{G_WOFF}, s{T1}\n s_lshl_b32 s{G_WOFF}, s{G_WOFF}, 7\n s_mov_b32 s{G_WSTR}, 8192")
    E(f"s_cmp_eq_u32 s{s_kind}, 0\n s_cselect_b32 s{G_SCALE}, {hex(c)}, 1.0")
    E("s_waitcnt lgkmcnt(0)")
    E(f"s_and_b32 s{G_WSRD+1}, s{G_WSRD+1}, 0xffff\n s_mov_b32 s{G_WSRD+2}, {4*MB}\n s_mov_b32 s{G_WSRD+3}, 0x20000")
    E(f"s_and_b32 s{G_ASRD+1}, s{G_ASRD+1}, 0xffff\n s_mov_b32 s{G_ASRD+2}, {2*MB}\n s_mov_b32 s{G_ASRD+3}, 0x20000")


def proj_task(E, s_kind, s_h, s_t0, s_dt, osc, flags, diag=False):
    errs = []
    l0 = len(E.lines)
    proj_setup(E, s_kind, s_h, s_t0, s_dt)
    addr_rowmajor(E)
    load_w(E, False, hook=lambda: fetch_now(E, "", "a", 0))
    E("s_barrier")
    fetch_now(E, "", "a", 1)
    E.drain(vm=True)
    E("s_barrier")
    errs += hazard.check(E.lines[l0:], "proj prologue")
    if diag: tmark(E, 1)
    lv, le = E.label("P_v"), E.label("P_end")
    E(f"s_cmp_eq_u32 s{s_kind}, 0\n s_cselect_b32 s{G_T0}, 0, s{G_W}\n s_cmp_ge_u32 s{G_T0}, 2\n s_cbranch_scc1 {lv}")
    errs += stream(E, False, "", osc, flags)
    E(f"s_branch {le}")
    E(lv + ":")
    errs += stream(E, True, "", osc, flags)
    E(le + ":")
    return errs


def ws_srd(E):
    E(f"s_load_dwordx2 s[{G_WS}:{G_WS+1}], s[0:1], {ARG['ws']}\n s_waitcnt lgkmcnt(0)")
    E(f"s_and_b32 s{G_WS+1}, s{G_WS+1}, 0xffff\n s_mov_b32 s{G_WS+2}, {WS_BYTES}\n s_mov_b32 s{G_WS+3}, 0x20000")


def proj_kernel(E, name, osc="", split=2, diag=False):
    E(kernel_header(name))
    end = E.label("P_exit")
    E(f"s_cmp_ge_u32 s2, {96*split}\n s_cbranch_scc1 {end}")
    lane_setup(E); ws_srd(E)
    E(f"s_and_b32 s40, s2, 31\n s_lshr_b32 s41, s2, 5\n s_mul_i32 s42, s41, 43\n s_lshr_b32 s42, s42, 7\n s_mul_i32 s43, s42, 3\n s_sub_u32 s41, s41, s43")
    E(f"s_mov_b32 s43, {split}\n s_mov_b32 s{G_N}, {64 // split}")
    if diag: tmark(E, 0)
    errs = proj_task(E, 41, 40, 42, 43, osc, False, diag)
    if diag: tmark(E, 2); tdump(E, G_WS, STAMP, 2)
    E(end + ":\n s_endpgm")
    return errs

if __name__ == "__main__":
    E = Em()
    E("; @launch grid=(192,1,1) block=(256,1,1) lds=163840")
    E('.amdgcn_target "amdgcn-amd-amdhsa--gfx950"')
    errs = proj_kernel(E, "proj_kernel")
    E(kernel_desc("proj_kernel"))
    open("proj.s", "w").write(E.text())
    print(len(errs), "hazards")
```

```python
import re

REG = re.compile(r"\b([vas])(\d+)\b|\b([vas])\[(\d+):(\d+)\]|\b(vcc|exec|m0|scc)\b")

def regs_of(tok):
    out = []
    for m in REG.finditer(tok):
        if m.group(1):
            out.append((m.group(1), int(m.group(2))))
        elif m.group(3):
            out += [(m.group(3), i) for i in range(int(m.group(4)), int(m.group(5)) + 1)]
        else:
            out.append((m.group(6), 0))
    return out

TRANS = ("v_exp_f32", "v_log_f32", "v_rcp_f32", "v_rsq_f32", "v_sqrt_f32", "v_sin_f32", "v_cos_f32")

def parse(line):
    line = line.split(";")[0].strip()
    if not line or line.endswith(":") or line.startswith("."):
        return None
    p = line.split(None, 1)
    op = p[0]
    rest = p[1] if len(p) > 1 else ""
    ops = [x.strip() for x in re.split(r",(?![^\[]*\])", rest)] if rest else []
    d = dict(op=op, ops=ops, line=line, w=[], r=[], kind="other")
    R = lambda k: regs_of(ops[k]) if k < len(ops) else []
    allr = lambda k: sum((regs_of(x) for x in ops[k:]), [])
    if op.startswith("v_mfma") or op.startswith("v_smfmac"):
        d["kind"] = "mfma"
        d["passes"] = 8 if "32x32" in op else 4
        d["w"] = R(0)
        d["ab"] = R(1) + R(2)
        if op.startswith("v_smfmac"):
            d["c"] = R(0); d["ab"] += R(3)
        else:
            d["c"] = R(3)
        d["r"] = d["ab"] + d["c"]
    elif op.startswith("v_"):
        d["kind"] = "valu"
        if op.startswith("v_nop"):
            pass
        elif op.startswith("v_cmp"):
            d["w"] = R(0); d["r"] = allr(1)
        elif op.startswith("v_permlane") and "swap" in op:
            d["w"] = R(0) + R(1); d["r"] = R(0) + R(1)
        elif "_co_" in op:
            d["w"] = R(0) + R(1); d["r"] = allr(2)
        else:
            d["w"] = R(0); d["r"] = allr(1)
            if op.startswith(("v_fmac", "v_dot2c", "v_writelane")) or "dpp" in op or "_d16" in op:
                d["r"] = d["r"] + R(0)
            if op.startswith("v_cndmask") and len(ops) == 3:
                d["r"].append(("vcc", 0))
    elif op.startswith("ds_"):
        d["kind"] = "ds"
        if op.startswith(("ds_read", "ds_bpermute", "ds_swizzle")):
            d["w"] = R(0); d["r"] = allr(1)
        else:
            d["r"] = allr(0)
    elif op.startswith(("buffer_", "global_")):
        d["kind"] = "vmem"
        lds = " lds" in line or "_lds_" in op
        d["lds"] = lds
        if op in ("buffer_inv", "buffer_wbl2"):
            pass
        elif lds:
            d["r"] = allr(0) + [("m0", 0)]
        elif "load" in op:
            d["w"] = R(0); d["r"] = allr(1)
        elif "atomic" in op:
            d["r"] = allr(0)
            if " sc0" in line:
                d["w"] = R(0)
        else:
            d["r"] = allr(0)
            data = R(0) if op.startswith("buffer_") else R(1)
            if "x4" in op or "x3" in op:
                d["wide"] = data
    elif op.startswith("s_"):
        d["kind"] = "salu"
        if op.startswith(("s_load", "s_memtime", "s_memrealtime", "s_buffer_load", "s_atomic")):
            d["kind"] = "smem"; d["w"] = R(0); d["r"] = allr(1)
        elif op.startswith(("s_waitcnt", "s_nop", "s_barrier", "s_branch", "s_cbranch", "s_endpgm", "s_setprio", "s_sleep")):
            pass
        elif op.startswith("s_cmp"):
            d["r"] = allr(0)
        else:
            d["w"] = R(0); d["r"] = allr(1)
    return d


def check(lines, name="trace", quiet=False, timed=True):
    errs = []
    last_m = [None, 0]
    pos = 0
    lastw = {}
    lastc = {}
    wide = {}
    lg, vm = [], []
    def err(msg, ins):
        errs.append(f"{name}: {msg}: `{ins['line']}`")
    for ln in lines:
        ins = parse(ln)
        if ins is None:
            continue
        op, kind = ins["op"], ins["kind"]
        if kind == "mfma":
            if timed and last_m[0] is not None:
                pos = max(pos, last_m[0] + last_m[1] - 1)
            last_m[:] = [pos, ins["passes"]]
        if op == "s_waitcnt":
            m = re.search(r"vmcnt\((\d+)\)", ins["line"])
            if m:
                n = int(m.group(1)); vm[:] = vm[len(vm) - n:] if n < len(vm) and n > 0 else ([] if n == 0 else vm)
            m = re.search(r"lgkmcnt\((\d+)\)", ins["line"])
            if m:
                n = int(m.group(1))
                if n == 0:
                    lg[:] = []
                else:
                    ds = [x for x in lg if x[0] == "ds"]; sm = [x for x in lg if x[0] != "ds"]
                    ds = ds[len(ds) - n:] if n < len(ds) else ds
                    lg[:] = sm + ds
        touched = set(ins["r"]) | set(ins["w"])
        for q, nm in ((lg, "lgkm"), (vm, "vm")):
            for (k, dst, src) in q:
                if touched & dst:
                    if kind == k and not (set(ins["r"]) & dst) and k != "smem":
                        continue
                    err(f"touches {sorted(touched & dst)[:2]} with outstanding {nm} load `{src}`", ins)
        def need(reg, n, why):
            p, pi = lastw[reg]
            if pos - p - 1 < n:
                err(f"{why}: need {n} wait states after `{pi['line']}` have {pos - p - 1}", ins)
        for reg in set(ins["r"]):
            if reg not in lastw:
                continue
            p, pi = lastw[reg]
            pk = pi["kind"]
            if pk == "mfma":
                P = pi["passes"]
                if kind == "mfma":
                    if reg in ins["ab"]:
                        need(reg, {4: 8, 8: 12}[P], "mfma D->AB")
                    elif not (ins["c"] == pi["w"] and ins["passes"] == P):
                        need(reg, {4: 6, 8: 10}[P], "mfma D->C overlap")
                else:
                    need(reg, {4: 8, 8: 12}[P], "mfma D->read")
            elif pk == "valu":
                if reg[0] in "va" :
                    if kind == "mfma":
                        need(reg, 2, "valu->mfma")
                    elif kind == "valu":
                        if op.startswith("v_permlane") or "dpp" in op:
                            need(reg, 2, "valu->permlane/dpp")
                        elif op.startswith(("v_readlane", "v_readfirstlane")):
                            need(reg, 1, "valu->readlane")
                        elif pi["op"].startswith(TRANS) and not op.startswith(TRANS):
                            need(reg, 1, "trans->valu")
                else:
                    if kind == "valu":
                        need(reg, 2, "valu sgpr->valu")
                    elif kind == "vmem":
                        need(reg, 5, "valu sgpr->vmem")
            elif pk == "salu" and reg == ("m0", 0) and kind in ("vmem", "ds"):
                need(reg, 1, "m0->lds dma")
        for reg in set(ins["w"]):
            if reg in lastw and lastw[reg][1]["kind"] == "mfma" and kind != "mfma":
                need(reg, {4: 8, 8: 12}[lastw[reg][1]["passes"]], "mfma D WAW")
            if reg in lastw and lastw[reg][1]["kind"] == "mfma" and kind == "mfma" and reg not in ins["c"]:
                need(reg, {4: 6, 8: 10}[lastw[reg][1]["passes"]], "mfma D WAW mfma")
            if reg in lastc and kind == "valu":
                p, P = lastc[reg]
                n = {4: 3, 8: 7}[P]
                if pos - p - 1 < n:
                    err(f"srcC WAR need {n}", ins)
            if reg in wide and pos - wide[reg] - 1 < 2:
                err("wide store data WAR need 2", ins)
        for reg in ins["w"]:
            lastw[reg] = (pos, ins)
        if kind == "mfma":
            for reg in ins["c"]:
                lastc[reg] = (pos, ins["passes"])
        for reg in ins.get("wide", []):
            wide[reg] = pos
        if kind == "ds":
            lg.append(("ds", set(ins["w"]), ins["line"]))
            if len([x for x in lg]) > 15 + 0:
                pass
        elif kind == "smem":
            lg.append(("smem", set(ins["w"]), ins["line"]))
        elif kind == "vmem":
            vm.append(("vmem", set(ins["w"]), ins["line"]))
            if len(vm) > 63:
                err("more than 63 vmem outstanding", ins)
        if op == "s_nop":
            pos += int(ins["ops"][0], 0) + 1
        else:
            pos += 1
    if not quiet:
        for e in errs[:40]:
            print("HAZARD", e)
    return errs
```

```python
MB = 1 << 20
WS_BYTES = 256 * MB
QA, KA, VA, QB, KB, VB = 0, 16 * MB, 32 * MB, 48 * MB, 64 * MB, 80 * MB
CTXA, CTXB = 96 * MB, 112 * MB
KM = 129 * MB
KMB = 4096
MHS = 1152
INBOX = 138 * MB
MEMS = 139 * MB
STAMP = 140 * MB
FLAGS = 142 * MB
TRASH = 143 * MB
PART = 144 * MB
ARG = dict(x=0, ckv=8, wq=16, wuk=24, wuv=32, wo=40, bx=48, mem0=56, bwq=64, bwk=72, bwv=80, bwo=88,
           seg=96, gate=104, out=112, dbg=120, ws=128)
```

```python
import struct, math
from emit import *
from layout import *
from gemm import *

def fbits(x): return struct.unpack("<I", struct.pack("<f", x))[0]
def wsd(): return s(G_WS, 4)

def wo_setup(E, arg, s_hg, s_half, s_t0, s_dt, pbase):
    T0, T1 = G_T0, G_T1
    E(f"s_load_dwordx2 s[{G_WSRD}:{G_WSRD+1}], s[0:1], {ARG[arg]}")
    E(f"s_lshl_b32 s{G_WOFF}, s{s_hg}, 19\n s_lshl_b32 s{T0}, s{s_half}, 2\n s_add_u32 s{T0}, s{T0}, s{G_W}\n s_lshl_b32 s{T1}, s{T0}, 7")
    E(f"s_add_u32 s{G_WOFF}, s{G_WOFF}, s{T1}\n s_mov_b32 s{G_WSTR}, 1024")
    E(f"s_lshl_b32 s{G_OOFF}, s{s_hg}, 6\n s_add_u32 s{G_OOFF}, s{G_OOFF}, s{s_t0}\n s_lshl_b32 s{G_OOFF}, s{G_OOFF}, 3\n s_add_u32 s{G_OOFF}, s{G_OOFF}, s{T0}")
    E(f"s_lshl_b32 s{G_OOFF}, s{G_OOFF}, 12\n s_add_u32 s{G_OOFF}, s{G_OOFF}, {PART + pbase*2*MB}\n s_lshl_b32 s{G_OSTR}, s{s_dt}, 15")
    E(f"s_mov_b32 s{G_SCALE}, 1.0\n s_waitcnt lgkmcnt(0)")
    E(f"s_and_b32 s{G_WSRD+1}, s{G_WSRD+1}, 0xffff\n s_mov_b32 s{G_WSRD+2}, {4*MB}\n s_mov_b32 s{G_WSRD+3}, 0x20000")


def oproj_task(E, s_hg, s_half, s_t0, s_dt, sc, osc, flags, wait=None):
    l0 = len(E.lines)
    wo_setup(E, "wo", s_hg, s_half, s_t0, s_dt, 0)
    E(f"s_mov_b32 s{G_ASRD}, s{G_WS}\n s_mov_b32 s{G_ASRD+1}, s{G_WS+1}\n s_mov_b32 s{G_ASRD+2}, {WS_BYTES}\n s_mov_b32 s{G_ASRD+3}, 0x20000")
    E(f"s_lshl_b32 s{G_AOFF}, s{s_hg}, 8\n s_add_u32 s{G_AOFF}, s{G_AOFF}, s{s_t0}\n s_lshl_b32 s{G_AOFF}, s{G_AOFF}, 13\n s_add_u32 s{G_AOFF}, s{G_AOFF}, {CTXA}")
    E(f"s_lshl_b32 s{G_ASTR}, s{s_dt}, 13")
    addr_frag(E, 64 * 8192)
    load_w(E, True)
    if wait: wait()
    E("s_barrier")
    fetch_now(E, sc, "a", 0); fetch_now(E, sc, "a", 1)
    E.drain(vm=True)
    E("s_barrier")
    errs = hazard.check(E.lines[l0:], "oproj prologue")
    errs += stream(E, False, sc, osc, flags)
    return errs


FQ, FK, FV, FC = 144, 176, 208, 240
FSX, FSM, FVM, FO, FP = 24, 40, 56, 64, 128
F_WR, F_TR, F_VMA, F_M, F_L, F_T = 3, 4, 5, 6, 7, 16
F_QOFF, F_KMOFF, F_KML = 19, 20, 25
L_KMF = 65536

def follower_task(E, s_hg, s_half, s_t0, s_dt, sc, osc, wait_x=None, wait_m=None, mid=None):
    errs = []
    l0 = len(E.lines)
    wo_setup(E, "bwo", s_hg, s_half, s_t0, s_dt, 8)
    addr_frag(E, 0)
    load_w(E, True)
    T0, T1, T2, T3 = G_T0, G_T1, G_T2, G_T3
    E(f"s_lshl_b32 s{T0}, s{s_hg}, 2\n s_add_u32 s{T0}, s{T0}, s{G_W}")
    E(f"s_lshl_b32 s{T1}, s{T0}, 6\n s_add_u32 s{T1}, s{T1}, s{s_t0}\n s_lshl_b32 s{F_QOFF}, s{T1}, 13")
    E(f"s_lshl_b32 s{T1}, s{s_t0}, 5\n s_add_u32 s{T1}, s{T1}, s{T0}\n s_mul_i32 s{T1}, s{T1}, {KMB}\n s_add_u32 s{F_KMOFF}, s{T1}, {KM}")
    E(f"s_lshl_b32 s{F_KML}, s{G_W}, 12\n s_add_u32 s{F_KML}, s{F_KML}, {L_KMF}")
    E(f"s_lshl_b32 s{T0}, s{G_W}, 13\n v_add_u32 v{F_WR}, s{T0}, v{V_L16}")
    t = F_T
    E(f"v_lshrrev_b32 v{t}, 5, v{V_LANE}\n v_and_b32 v{t+1}, 31, v{V_LANE}")
    E(f"v_mul_u32_u24 v{t+2}, {MHS}, v{t}\n v_lshl_add_u32 v{F_VMA}, v{t+1}, 3, v{t+2}")
    E(f"v_bfe_u32 v{t+2}, v{V_LANE}, 2, 2\n v_lshl_add_u32 v{t+2}, v{t}, 2, v{t+2}\n v_and_b32 v{t+3}, 1, v{V_LANE}\n v_mul_u32_u24 v{t+3}, {MHS}, v{t+3}")
    E(f"v_lshl_add_u32 v{t+2}, v{t+2}, 3, v{t+3}\n v_add_u32 v{F_TR}, s{F_KML}, v{t+2}")
    E(f"v_lshlrev_b32 v{t}, 2, v{t}\n v_sub_u32 v{t+1}, v{t+1}, v{t}\n v_mov_b32 v{t+2}, {hex(fbits(-1e30))}")
    for i in range(16):
        E(f"v_cmp_le_i32 vcc, {8*(i>>2) + (i&3)}, v{t+1}\n s_nop 1\n v_cndmask_b32 v{FC+i}, v{t+2}, 0, vcc")
    def xloads():
        out = []
        for reg, base in ((FQ, QB), (FK, KB), (FV, VB)):
            for hf in range(2):
                out.append(f"s_add_u32 s{T2 + hf}, s{F_QOFF}, {base + 4096*hf}")
                out += [f"buffer_load_dwordx4 {v(reg + 16*hf + 4*i, 4)}, v{V_L16}, {wsd()}, s{T2 + hf} offen offset:{1024*i}{sc}" for i in range(4)]
        return out
    E("s_barrier")
    if wait_x: wait_x()
    for x in xloads(): (E.vmem if x.startswith("buffer") else E)(x)
    for _ in range(4): E.vm.append({"st"})
    E("s_waitcnt vmcnt(0)")
    errs += hazard.check(E.lines[l0:], "follower prologue")
    vm0 = [set(x) for x in E.vm]
    top = E.label("F_top")
    E(top + ":")
    l1 = len(E.lines)
    m32 = lambda d, a_, b_, c_: f"v_mfma_f32_32x32x16_bf16 {v(d,16)}, {v(a_,4)}, {v(b_,4)}, {c_}"
    E.need(v(FQ, 64))
    for st in range(8): E(m32(FSX, FK + 4*st, FQ + 4*st, v(FC if st == 0 else FSX, 16)))
    if wait_m: wait_m()
    for mh in range(2):
        if mh == 0: E(f"s_mov_b32 m0, s{F_KML}\n s_nop 0")
        E.vmem(f"buffer_load_dwordx4 v{V_L16}, {wsd()}, s{F_KMOFF} offen offset:{MHS*mh}{sc} lds", tag="km")
    for dt in range(4):
        E.vmem(f"buffer_load_dwordx2 {v(FVM + 2*dt, 2)}, v{F_VMA}, {wsd()}, s{F_KMOFF} offen offset:{2*MHS + 256*dt}{sc}")
    E("s_nop 3")
    E(f"v_max_f32 v{F_M}, v{FSX}, v{FSX+1}")
    for e in range(2, 16, 2): E(f"v_max3_f32 v{F_M}, v{F_M}, v{FSX+e}, v{FSX+e+1}")
    E.need(tags=["km"])
    for st in range(8):
        for hi in range(2):
            E.ds(f"ds_read_b64_tr_b16 {v(FK + 4*st + 2*hi, 2)}, v{F_TR} offset:{(16*st + 8*hi)*8}")
    for st in range(8):
        E.need(v(FK + 4*st, 4))
        E(m32(FSM, FK + 4*st, FQ + 4*st, "0" if st == 0 else v(FSM, 16)))
    E("s_nop 7\n s_nop 3")
    E(f"v_max3_f32 v{F_M}, v{F_M}, v{FSM}, v{FSM+1}\n v_max3_f32 v{F_M}, v{F_M}, v{FSM+2}, v{FSM+3}")
    E(f"v_mov_b32 v{t}, v{F_M}\n s_nop 1\n v_permlane32_swap_b32 v{F_M}, v{t}\n s_nop 1\n v_max_f32 v{F_M}, v{F_M}, v{t}")
    vals = [FSM + i for i in range(4)] + [FSX + i for i in range(16)]
    def soft(lst):
        return [f"v_sub_f32 v{x}, v{x}, v{F_M}" for x in lst] + [f"v_exp_f32 v{x}, v{x}" for x in lst]
    cv = lambda d, x: f"v_cvt_pk_bf16_f32 v{d}, v{x}, v{x+1}"
    for x in soft(vals[:4]): E(x)
    E(cv(FP + 8, FSM)); E(cv(FP + 9, FSM + 2))
    E.need(v(FVM, 8))
    sx = soft(vals[4:12]) + [cv(FP + p, FSX + 2*p) for p in range(4)]
    E(sx.pop(0))
    for dt in range(4):
        E(f"v_mfma_f32_32x32x8_bf16 {v(FO+16*dt,16)}, {v(FVM+2*dt,2)}, {v(FP+8,2)}, 0")
        for _ in range(5):
            if sx: E(sx.pop(0))
    sx = soft(vals[12:]) + [cv(FP + p, FSX + 2*p) for p in range(4, 8)]
    E(sx.pop(0)); E(sx.pop(0))
    for dt in range(4):
        E(m32(FO + 16*dt, FV + 8*dt, FP, v(FO + 16*dt, 16)))
        for _ in range(5):
            if sx: E(sx.pop(0))
    sm = [f"v_add_f32 v{F_L}, v{vals[0]}, v{vals[1]}"] + [f"v_add_f32 v{F_L}, v{F_L}, v{x}" for x in vals[2:]]
    E(sm.pop(0)); E(sm.pop(0))
    for dt in range(4):
        E(m32(FO + 16*dt, FV + 8*dt + 4, FP + 4, v(FO + 16*dt, 16)))
        for _ in range(5):
            if sm: E(sm.pop(0))
    E(f"v_mov_b32 v{t}, v{F_L}\n s_nop 1\n v_permlane32_swap_b32 v{F_L}, v{t}\n s_nop 1\n v_add_f32 v{F_L}, v{F_L}, v{t}\n v_rcp_f32 v{F_M}, v{F_L}\n s_nop 0")
    for b in range(8):
        o = FO + 8*b; pk = FP + 4*(b & 3)
        for j in range(4): E(f"v_pk_mul_f32 {v(o+2*j,2)}, {v(o+2*j,2)}, {v(F_M,2)} op_sel_hi:[1,0]")
        for j in range(4): E(cv(pk + j, o + 2*j))
        E.ds(f"ds_write_b128 v{F_WR}, {v(pk,4)} offset:{1024*b}")
    E(f"s_sub_u32 s{G_N}, s{G_N}, 1\n s_cmp_gt_u32 s{G_N}, 0\n s_cselect_b32 s{T0}, s{s_dt}, 0")
    E(f"s_lshl_b32 s{T1}, s{T0}, 13\n s_add_u32 s{F_QOFF}, s{F_QOFF}, s{T1}\n s_mul_i32 s{T1}, s{T0}, {32*KMB}\n s_add_u32 s{F_KMOFF}, s{F_KMOFF}, s{T1}")
    E.drain(lg=True)
    E("s_barrier")
    for ks in range(LEAD): E.ds(rd_frag(ks, 0))
    if mid: mid()
    xl = xloads()
    for n in range(64):
        ks, ct = n >> 1, n & 1
        if n == 0: E.need(v(V_AF, 4))
        E(mfma(False, 0, ks, ct))
        if ct == 1 and ks < 31: E.need(v(V_AF + 4*((ks + 1) % NF), 4))
        if ct == 0:
            if xl and xl[0].startswith("s_"): E(xl.pop(0))
            if ks + LEAD < 32: E.ds(rd_frag(ks + LEAD, 0))
        elif xl:
            E.vmem(xl.pop(0))
        if n >= 54 and n < 62: E(f"v_xor_b32 v{V_RD + n - 54}, 0x8000, v{V_RD + n - 54}")
        if n == 62: E(f"v_xor_b32 v{F_WR}, 0x8000, v{F_WR}")
    assert not xl
    E("s_nop 4")
    for b in range(4):
        if b == 2: E("s_nop 1")
        for j in range(4): E(cv(V_PK + 4*b + j, V_ACC + 8*b + 2*j))
        E.vmem(f"buffer_store_dwordx4 {v(V_PK+4*b,4)}, v{V_L16}, {wsd()}, s{G_OOFF} offen offset:{1024*b}{osc}", tag="st")
    E(f"s_add_u32 s{G_OOFF}, s{G_OOFF}, s{G_OSTR}")
    assert E.vm == vm0
    E(f"s_cmp_gt_u32 s{G_N}, 0\n s_cbranch_scc1 {top}")
    body = E.lines[l1:]
    errs += hazard.check(body + body, "follower loop")
    E.drain(vm=True, lg=True)
    E("s_barrier")
    return errs


def final_task(E, s_t, s_cq, sc, wait_a=None, wait_b=None):
    l0 = len(E.lines)
    T0, T1, T2, T3 = G_T0, G_T1, G_T2, G_T3
    X, GW, D, LD, SA, SB, t = 16, 48, 80, 96, 160, 176, 4
    E(f"s_load_dwordx2 s[8:9], s[0:1], {ARG['x']}\n s_load_dwordx2 s[12:13], s[0:1], {ARG['gate']}\n s_load_dwordx2 s[32:33], s[0:1], {ARG['out']}")
    E(f"v_and_b32 v{t}, 31, v{V_LANE}\n v_lshrrev_b32 v{t+1}, 5, v{V_LANE}\n v_lshlrev_b32 v{t+1}, 4, v{t+1}\n v_lshl_add_u32 v{t+2}, v{t}, 10, v{t+1}")
    E(f"s_lshl_b32 s{T0}, s{G_W}, 8\n s_lshl_b32 s{T1}, s{s_t}, 15\n s_add_u32 s{T1}, s{T1}, s{T0}\n s_waitcnt lgkmcnt(0)")
    for b, n in ((8, 2*MB), (12, 1024), (32, 2*MB)):
        E(f"s_and_b32 s{b+1}, s{b+1}, 0xffff\n s_mov_b32 s{b+2}, {n}\n s_mov_b32 s{b+3}, 0x20000")
    for k in range(8):
        E.vmem(f"buffer_load_dwordx4 {v(X+4*k,4)}, v{t+2}, s[8:11], s{T1} offen offset:{32*k}")
        E.vmem(f"buffer_load_dwordx4 {v(GW+4*k,4)}, v{t+1}, s[12:15], s{T0} offen offset:{32*k}")
    E(f"s_lshl_b32 s{T2}, s{s_t}, 2\n s_add_u32 s{T2}, s{T2}, s{s_cq}\n s_lshl_b32 s{T2}, s{T2}, 2\n s_add_u32 s{T2}, s{T2}, s{G_W}\n s_lshl_b32 s{T2}, s{T2}, 11")
    def loads(p0):
        for p in range(8):
            E(f"s_add_u32 s{T3}, s{T2}, {PART + (p0 + p)*2*MB}")
            for b in range(2):
                E.vmem(f"buffer_load_dwordx4 {v(LD + 8*p + 4*b, 4)}, v{V_L16}, {wsd()}, s{T3} offen offset:{1024*b}{sc}")
    def accum(S):
        for p in range(8):
            E.need(v(LD + 8*p, 8))
            for j in range(8):
                x = LD + 8*p + j
                if p == 0:
                    E(f"v_lshlrev_b32 v{S+2*j}, 16, v{x}\n v_and_b32 v{S+2*j+1}, 0xffff0000, v{x}")
                else:
                    u = t + 4 + 2*(j & 3)
                    E(f"v_lshlrev_b32 v{u}, 16, v{x}\n v_and_b32 v{u+1}, 0xffff0000, v{x}\n v_pk_add_f32 {v(S+2*j,2)}, {v(S+2*j,2)}, {v(u,2)}")
    for k in range(8):
        E.need(v(X+4*k, 4), v(GW+4*k, 4))
        E(f"v_mfma_f32_32x32x16_bf16 {v(D,16)}, {v(GW+4*k,4)}, {v(X+4*k,4)}, {'0' if k == 0 else v(D,16)}")
    if wait_a: wait_a()
    loads(0)
    E(f"v_lshlrev_b32 v{t+3}, 4, v{t}\n s_lshl_b32 s{T0}, s{G_W}, 2\n v_add_u32 v{t}, s{T0}, v{t+3}")
    E(f"s_barrier\n ds_write_b32 v{t}, v{D}\n s_waitcnt lgkmcnt(0)\n s_barrier\n ds_read_b128 {v(D+4,4)}, v{t+3}\n s_waitcnt lgkmcnt(0)")
    E(f"v_add_f32 v{D}, v{D+4}, v{D+5}\n v_add_f32 v{D+1}, v{D+6}, v{D+7}\n v_add_f32 v{D}, v{D}, v{D+1}")
    E(f"v_mul_f32 v{D}, {hex(fbits(-math.log2(math.e)))}, v{D}\n v_exp_f32 v{D}, v{D}\n s_nop 0\n v_add_f32 v{D}, 1.0, v{D}\n v_rcp_f32 v{D}, v{D}\n s_nop 0\n v_sub_f32 v{D+2}, 1.0, v{D}")
    accum(SA)
    if wait_b: wait_b()
    loads(8)
    for j in range(8): E(f"v_pk_mul_f32 {v(SA+2*j,2)}, {v(SA+2*j,2)}, {v(D,2)} op_sel_hi:[1,0]")
    accum(SB)
    for j in range(8):
        E(f"v_pk_fma_f32 {v(SA+2*j,2)}, {v(SB+2*j,2)}, {v(D+2,2)}, {v(SA+2*j,2)} op_sel_hi:[1,0,1]")
        E(f"v_cvt_pk_bf16_f32 v{X+j}, v{SA+2*j}, v{SA+2*j+1}")
    E(f"s_lshl_b32 s{T0}, s{s_cq}, 2\n s_add_u32 s{T0}, s{T0}, s{G_W}\n s_lshl_b32 s{T0}, s{T0}, 6\n s_lshl_b32 s{T1}, s{s_t}, 15\n s_add_u32 s{T0}, s{T0}, s{T1}")
    for b in range(2):
        E(f"buffer_store_dwordx4 {v(X+4*b,4)}, v{t+2}, s[32:35], s{T0} offen offset:{32*b}")
    return hazard.check(E.lines[l0:], "final")


def simple_kernel(E, name, nwg, body):
    E(kernel_header(name))
    end = E.label("K_exit")
    E(f"s_cmp_ge_u32 s2, {nwg}\n s_cbranch_scc1 {end}")
    lane_setup(E); ws_srd(E)
    errs = body()
    E(end + ":\n s_endpgm")
    return errs

def oproj_kernel(E, name):
    def body():
        E(f"s_and_b32 s40, s2, 7\n s_bfe_u32 s41, s2, 0x10003\n s_lshr_b32 s42, s2, 4\n s_mov_b32 s43, 16\n s_mov_b32 s{G_N}, 4")
        return oproj_task(E, 40, 41, 42, 43, "", "", False)
    return simple_kernel(E, name, 256, body)

def follower_kernel(E, name):
    def body():
        E(f"s_and_b32 s40, s2, 7\n s_bfe_u32 s41, s2, 0x10003\n s_lshr_b32 s42, s2, 4\n s_mov_b32 s43, 16\n s_mov_b32 s{G_N}, 4")
        return follower_task(E, 40, 41, 42, 43, "", "")
    return simple_kernel(E, name, 256, body)

def final_kernel(E, name):
    def body():
        E("s_lshr_b32 s40, s2, 2\n s_and_b32 s41, s2, 3")
        return final_task(E, 40, 41, "")
    return simple_kernel(E, name, 256, body)
```

```python
import math, struct
from emit import *
from layout import *

def fbits(x):
    return struct.unpack("<I", struct.pack("<f", x))[0]

L_MEM, L_KX, L_VX, L_QM, L_KM, L_OM, L_SEL, L_W = 0, 8192, 16384, 24576, 26880, 29184, 31232, 32768
IDX, MRD, L16, WL16, WOP, QW, TR, PS, MP, KD, VD, OW = range(12)
ONES = 12
AQ, AK, AV = 16, 20, 24
VX = 28
def KX(i): return 36 + 4 * i
def Q(i): return 68 + 4 * i
S_WS = 4
S_WQ, S_WK, S_WV, S_WO = 8, 40, 44, 48
S_H, S_W, S_STEP = 12, 13, 14
S_HI = 16
S_SCALE, S_CNT = 18, 19
S_PST0, S_PST1, S_IN0, S_IN1, S_MEM0, S_MEM1, S_MRE = 20, 21, 22, 23, 24, 25, 26
S_KD, S_VD, S_KE, S_VE = 27, 28, 29, 30
S_MK0, S_MK1, S_MV0, S_MV1 = 31, 32, 33, 34
S_PUB = 35
S_MB = 23
S_T0, S_T1, S_T2, S_T3 = 36, 37, 38, 39
S_DBG = 52
S_LO, S_RNG = 54, 55
S_MODE = 56
S_PH = 57
S_ONE = 2
S_ST = 60
POLL_MAX = 1 << 15

def ws(): return s(S_WS, 4)

P_OPS = [("q", 0), ("k", 0), ("v", 0), ("q", 1), ("k", 1), ("v", 1)]
J_OPS = [("v", 3), ("v", 5), ("k", 6), ("k", 9), ("k", 13), ("v", 6)]
O_OPS = [("o", 2, 2), ("o", 2, 3), ("o", 3, 2), ("o", 3, 3)]
LDS_OPS = P_OPS + J_OPS + O_OPS
ALL_QKV = [(m, i) for i in range(16) for m in "qkv"]
ALL_O = [("o", p, t) for p in range(4) for t in range(4)]
RES_OPS = [o for o in ALL_QKV + ALL_O if o not in LDS_OPS]
assert len(RES_OPS) == 48 and len(LDS_OPS) == 16
RES_REG = {o: 128 + 8 * n for n, o in enumerate(RES_OPS)}
LDS_SLOT = {o: n for n, o in enumerate(LDS_OPS)}


class Team:
    def __init__(self, E, stamps=False, **opt):
        self.opt = dict(swz=0, h1ack=1, h1pre=12, h1mid=12, h1nop=16, w1nop=0, h1mask=1, h2sets=3, h2cut=(0, 4, 8), h2mask=1,
                        u0at=0, b3at=3, dma_at=(19, 25, 29, 33), m0_at=(10, 21, 27, 29), h1w64=1)
        self.opt.update(opt)
        self.E = E
        self.stamps = stamps
        self.nst = 0

    def stamp(self, name):
        if self.stamps and (self.stamps is True or name in self.stamps):
            self.E(f"s_memtime s[{S_ST + 2*self.nst}:{S_ST + 2*self.nst + 1}]")
            self.names.append(name)
            self.nst += 1
            assert self.nst <= 14

    def startup(self, fail):
        E = self.E
        E(f"s_load_dwordx4 s[60:63], s[0:1], {ARG['bwq']}")
        E(f"s_load_dwordx4 s[64:67], s[0:1], {ARG['bwv']}")
        E(f"s_load_dwordx4 s[68:71], s[0:1], {ARG['dbg']}")
        E(f"s_load_dwordx2 s[72:73], s[0:1], {ARG['mem0']}")
        E(f"v_lshrrev_b32 v1, 6, v0")
        E(f"v_and_b32 v20, 63, v0")
        E(f"v_readfirstlane_b32 s{S_W}, v1")
        E(f"s_getreg_b32 s{S_T0}, hwreg(HW_REG_XCC_ID, 0, 4)")
        E(f"s_lshl_b32 s{S_T0}, 1, s{S_T0}")
        E("s_waitcnt lgkmcnt(0)")
        E.srd(S_WQ, 60, 4 * MB); E.srd(S_WK, 62, 4 * MB); E.srd(S_WV, 64, 4 * MB); E.srd(S_WO, 66, 4 * MB)
        E.srd(S_WS, 70, WS_BYTES)
        E.srd(76, 72, 8192)
        E(f"s_mov_b64 s[{S_DBG}:{S_DBG+1}], s[68:69]")
        skip = E.label("T_reg")
        E(f"s_cmp_lg_u32 s{S_W}, 0\n s_cbranch_scc1 {skip}")
        E(f"s_atomic_or s{S_T0}, s[{S_DBG}:{S_DBG+1}], 4 glc\n s_waitcnt lgkmcnt(0)")
        E(f"s_mov_b32 s{S_T0}, 1\n s_atomic_add s{S_T0}, s[{S_DBG}:{S_DBG+1}], 0 glc\n s_waitcnt lgkmcnt(0)")
        E(skip + ":")
        E("v_lshrrev_b32 v21, 4, v20\n v_and_b32 v22, 15, v20\n v_and_b32 v23, 1, v21\n v_lshrrev_b32 v24, 1, v21")
        E(f"v_lshlrev_b32 v{L16}, 4, v20")
        E(f"s_lshl_b32 s{S_T0}, s{S_W}, 10\n v_add_u32 v{WL16}, s{S_T0}, v{L16}")
        E(f"s_lshl_b32 s{S_T1}, s{S_W}, 15\n s_add_u32 s{S_T1}, s{S_T1}, {L_W}\n v_add_u32 v{WOP}, s{S_T1}, v{L16}")
        E(f"v_lshrrev_b32 v25, 2, v20\n v_lshlrev_b32 v25, 13, v25\n v_and_b32 v1, 3, v20\n v_lshl_add_u32 v25, v1, 4, v25")
        E(f"s_lshl_b32 s{S_T0}, s{S_W}, 6\n s_lshl_b32 s{S_T2}, s{S_H}, 8\n s_add_u32 s{S_T0}, s{S_T0}, s{S_T2}\n v_add_u32 v25, s{S_T0}, v25")
        E(f"v_lshrrev_b32 v26, 3, v20\n v_lshlrev_b32 v26, 10, v26\n v_and_b32 v1, 7, v20\n v_lshl_add_u32 v26, v1, 4, v26")
        E(f"s_lshl_b32 s{S_T0}, s{S_W}, 7\n s_lshl_b32 s{S_T2}, s{S_H}, 17\n s_add_u32 s{S_T0}, s{S_T0}, s{S_T2}\n v_add_u32 v26, s{S_T0}, v26")
        E("v_bfe_u32 v29, v20, 2, 1\n v_bfe_u32 v30, v20, 3, 1\n v_and_b32 v31, 3, v20")
        E("v_lshl_add_u32 v27, v24, 1, v29\n v_lshl_add_u32 v27, v27, 1, v23\n v_lshlrev_b32 v27, 7, v27\n v_lshl_add_u32 v27, v30, 5, v27\n v_lshl_add_u32 v27, v31, 3, v27")
        E(f"v_add_u32 v27, s{S_T1}, v27")
        E("v_lshl_add_u32 v28, v23, 2, v24\n v_lshl_add_u32 v28, v28, 2, v29\n v_lshlrev_b32 v28, 7, v28\n v_lshl_add_u32 v28, v30, 6, v28\n v_lshl_add_u32 v28, v31, 4, v28")
        E(f"v_add_u32 v28, s{S_T1}, v28")
        E(f"s_mov_b32 s{S_T3}, s{S_T1}")
        qkv_res = [o for o in RES_OPS if o[0] != "o"]; o_res = [o for o in RES_OPS if o[0] == "o"]
        order = qkv_res + o_res + LDS_OPS
        units = [order[i:i + 2] for i in range(0, 64, 2)]
        srd = dict(q=S_WQ, k=S_WK, v=S_WV)
        def issue(n):
            u = units[n]; base = (n % 8) * 4096
            if u[0][0] == "o":
                (_, p, t), (_, p2, t2) = u
                assert p == p2 and t2 == t + 1 and t % 2 == 0
                E(f"s_xor_b32 s{S_T0}, s{S_W}, {p}\n s_lshl_b32 s{S_T0}, s{S_T0}, 15")
                for j in range(4):
                    E(f"s_add_u32 m0, s{S_T3}, {base + j*1024}")
                    E(f"s_add_u32 s{S_T1}, s{S_T0}, {j*8192 + (t//2)*512}")
                    E.vmem(f"buffer_load_dwordx4 v26, {s(S_WO,4)}, s{S_T1} offen lds", tag=("u", n))
            else:
                for k, (m, i) in enumerate(u):
                    for j in range(2):
                        E(f"s_add_u32 m0, s{S_T3}, {base + k*2048 + j*1024}")
                        E(f"s_mov_b32 s{S_T1}, {(32*i + 16*j) * 8192}")
                        E.vmem(f"buffer_load_dwordx4 v25, {s(srd[m],4)}, s{S_T1} offen lds", tag=("u", n))
        def consume(n):
            u = units[n]; base = (n % 8) * 4096
            E.need(tags=[("u", n)])
            for k, o in enumerate(u):
                dst = RES_REG[o] if o in RES_REG else 64 + 8 * k
                for hi in range(2):
                    for lo in range(2):
                        if o[0] == "o":
                            E.ds(f"ds_read_b64_tr_b16 {r(dst + 4*hi + 2*lo, 2)}, v28 offset:{base + (8*hi + 2*lo)*128 + k*8}")
                        else:
                            E.ds(f"ds_read_b64_tr_b16 {r(dst + 4*hi + 2*lo, 2)}, v27 offset:{base + k*2048 + hi*1024 + lo*64}")
            E.drain(lg=True)
            if u[0] not in RES_REG:
                for k, o in enumerate(u):
                    assert LDS_SLOT[o] * 2048 == base + k * 2048
                    for hf in range(2):
                        E.ds(f"ds_write_b128 v{WOP}, {v(64 + 8*k + 4*hf, 4)} offset:{base + k*2048 + hf*1024}")
                E.drain(lg=True)
        for n in range(8):
            issue(n)
        E(f"v_mov_b32 v{IDX}, 0x4444\n v_mov_b32 v1, 0xeeee\n v_cmp_lt_u32 vcc, 7, v22\n s_nop 1\n v_cndmask_b32 v32, v{IDX}, v1, vcc")
        E(f"v_mov_b32 v{IDX}, v32")
        E(f"v_and_b32 v32, 7, v20\n v_lshlrev_b32 v32, 4, v32\n v_lshl_add_u32 v{MRD}, v21, 7, v32")
        E(f"s_lshl_b32 s{S_T0}, s{S_W}, 9\n v_add_u32 v{OW}, s{S_T0}, v{MRD}")
        E(f"v_lshl_add_u32 v33, v24, 4, v22\n s_lshl_b32 s{S_T0}, s{S_W}, 5\n v_add_u32 v33, s{S_T0}, v33\n v_lshlrev_b32 v33, 3, v33")
        E(f"v_mul_u32_u24 v34, {MHS}, v23\n v_add_u32 v{QW}, v33, v34")
        E(f"v_bfe_u32 v33, v20, 2, 2\n v_lshl_add_u32 v33, v23, 2, v33\n v_lshl_add_u32 v33, v24, 4, v33\n v_lshlrev_b32 v33, 3, v33")
        E(f"v_and_b32 v34, 1, v20\n v_mul_u32_u24 v34, {MHS}, v34\n v_add_u32 v{TR}, v33, v34")
        E(f"s_lshl_b32 s{S_T0}, s{S_W}, 3\n v_lshrrev_b32 v33, 3, v20\n v_add_u32 v33, s{S_T0}, v33")
        E(f"v_mul_u32_u24 v34, {self.opt['swz']}, v33\n v_add_u32 v34, s{S_H}, v34\n v_and_b32 v34, 31, v34")
        E(f"v_lshl_add_u32 v33, v33, 13, v32\n v_lshl_add_u32 v{PS}, v34, 7, v33")
        E(f"s_lshr_b32 s{S_T0}, s{S_H}, 2\n s_lshl_b32 s{S_T0}, s{S_T0}, 9\n s_and_b32 s{S_T1}, s{S_H}, 1\n s_lshl_b32 s{S_T1}, s{S_T1}, 8\n s_add_u32 s{S_T0}, s{S_T0}, s{S_T1}")
        E(f"s_and_b32 s{S_T1}, s{S_H}, 2\n s_lshl_b32 s{S_T1}, s{S_T1}, 5\n s_add_u32 s{S_T0}, s{S_T0}, s{S_T1}")
        E(f"v_lshlrev_b32 v33, 4, v21\n v_lshl_add_u32 v33, v31, 2, v33\n v_lshl_add_u32 v33, v29, 7, v33\n v_lshl_add_u32 v33, v30, 30, v33\n v_add_u32 v{MP}, s{S_T0}, v33")
        E(f"s_lshr_b32 s{S_T0}, s{S_H}, 2\n s_lshl_b32 s{S_T0}, s{S_T0}, 6\n s_and_b32 s{S_T1}, s{S_H}, 1\n s_lshl_b32 s{S_T1}, s{S_T1}, 5\n s_add_u32 s{S_T0}, s{S_T0}, s{S_T1}")
        E(f"s_and_b32 s{S_T1}, s{S_H}, 2\n s_lshl_b32 s{S_T1}, s{S_T1}, 11\n s_add_u32 s{S_T0}, s{S_T0}, s{S_T1}")
        E(f"v_lshlrev_b32 v35, 10, v21\n v_lshl_add_u32 v35, v31, 1, v35\n v_lshl_add_u32 v35, v29, 4, v35\n v_add_u32 v35, s{S_T0}, v35")
        for k in range(4):
            E.vmem(f"buffer_load_ushort v{44+k}, v35, s[76:79], 0 offen offset:{(k >> 1)*512 + (k & 1)*8}")
        E("v_lshlrev_b32 v33, 4, v29\n v_mov_b32 v34, 0x3f80\n v_lshlrev_b32 v33, v33, v34\n v_and_b32 v34, 1, v20\n v_lshl_add_u32 v34, v34, 1, v30")
        for a_ in range(4):
            E(f"v_cmp_eq_u32 vcc, {a_}, v34\n s_nop 1\n v_cndmask_b32 v{48+a_}, 0, v33, vcc")
        E.ds(f"ds_write_b128 v{L16}, v[48:51] offset:{L_SEL}")
        E(f"v_lshlrev_b32 v33, 9, v21\n s_lshl_b32 s{S_T0}, s{S_W}, 11\n v_add_u32 v33, s{S_T0}, v33")
        E(f"v_lshl_add_u32 v{VD}, v22, 4, v33")
        E(f"v_lshl_add_u32 v33, v30, 8, v33\n v_add_u32 v{KD}, v33, v32")
        E(f"s_mov_b32 s{S_ONE}, 0x3f803f80\n s_mov_b32 s{S_ONE+1}, 0x3f803f80")
        E(f"s_mov_b32 s{S_HI}, 0\n s_mov_b32 s{S_HI+1}, -1")
        E(f"s_mov_b32 s{S_SCALE}, {hex(fbits(math.log2(math.e) / math.sqrt(128.0)))}")
        lo, hi = fbits(2.0 ** -32), fbits(2.0 ** 48)
        E(f"s_mov_b32 s{S_LO}, {hex(lo)}\n s_mov_b32 s{S_RNG}, {hex(hi - lo)}")
        E(f"s_lshl_b32 s{S_T0}, s{S_W}, 10")
        E(f"s_add_u32 s{S_MK0}, s{S_T0}, {L_KX}\n s_add_u32 s{S_MK1}, s{S_T0}, {L_KX + 4096 - 128}")
        E(f"s_add_u32 s{S_MV0}, s{S_T0}, {L_VX}\n s_add_u32 s{S_MV1}, s{S_T0}, {L_VX + 4096 - 256}")
        E(f"s_lshl_b32 s{S_T0}, s{S_H}, 19\n s_add_u32 s{S_KD}, s{S_T0}, {KB}\n s_add_u32 s{S_VD}, s{S_T0}, {VB}")
        E(f"s_mul_i32 s{S_T0}, s{S_H}, {KMB}\n s_add_u32 s{S_KE}, s{S_T0}, {KM}")
        E(f"s_lshl_b32 s{S_T0}, s{S_H}, 13\n s_add_u32 s{S_IN0}, s{S_T0}, {INBOX}\n s_add_u32 s{S_IN1}, s{S_T0}, {INBOX + 4096}")
        E(f"s_mov_b32 s{S_PST0}, {INBOX}\n s_mov_b32 s{S_PST1}, {INBOX + 4096}")
        for n in range(32):
            consume(n)
            if n + 8 < 32:
                issue(n + 8)
            if n == 12:
                self.spin_counter(0, 32, fail)
                E(f"s_mov_b32 s{S_T0}, 0\n s_atomic_or s{S_T0}, s[{S_DBG}:{S_DBG+1}], 4 glc\n s_waitcnt lgkmcnt(0)")
                E(f"s_bcnt1_i32_b32 s{S_T0}, s{S_T0}\n s_cmp_eq_u32 s{S_T0}, 1\n s_cselect_b32 s{S_MODE}, 0, 1")
                for i in range(4):
                    E(f"v_mov_b32 v{40+i}, -1")
                E.need("v[44:47]")
                E("v_lshl_or_b32 v44, v45, 16, v44\n v_lshl_or_b32 v46, v47, 16, v46\n v_min_u32 v44, -2, v44\n v_min_u32 v46, -2, v46")
                E(f"s_cmp_eq_u32 s{S_W}, 0\n s_cselect_b32 s{S_T0}, 0, -1\n v_or_b32 v44, s{S_T0}, v44\n v_or_b32 v46, s{S_T0}, v46")
                E(f"s_lshl_b32 s{S_T0}, s{S_W}, 13\n s_add_u32 s{S_T0}, s{S_T0}, {MEMS}\n s_add_u32 s{S_T1}, s{S_T0}, 4096")
                lg, ld = E.label("T_initg"), E.label("T_initd")
                E(f"s_cmp_lg_u32 s{S_MODE}, 0\n s_cbranch_scc1 {lg}")
                for mode in (0, 1):
                    sc = " sc1" if mode else ""
                    if mode:
                        E(lg + ":")
                    for ins in (f"buffer_store_dwordx4 v[40:43], v{WL16}, {ws()}, s{S_IN0} offen{sc}",
                                f"buffer_store_dwordx4 v[40:43], v{WL16}, {ws()}, s{S_IN1} offen{sc}",
                                f"buffer_store_dword v44, v{MP}, {ws()}, s{S_T0} offen{sc}",
                                f"buffer_store_dword v46, v{MP}, {ws()}, s{S_T1} offen{sc}"):
                        E.vmem(ins, tag="init") if mode else E(ins)
                    if not mode:
                        E(f"s_branch {ld}")
                E(ld + ":")
            if n == 21:
                E.need(tags=["init"])
                E("s_barrier")
                skip = E.label("T_arm")
                E(f"s_cmp_lg_u32 s{S_W}, 0\n s_cbranch_scc1 {skip}")
                E(f"s_mov_b32 s{S_T0}, 1\n s_atomic_add s{S_T0}, s[{S_DBG}:{S_DBG+1}], 8 glc\n s_waitcnt lgkmcnt(0)")
                E(skip + ":")
            if n == 23:
                for x in self.dma_list():
                    E(x[0]); E("s_nop 0"); E.vmem(x[1], tag="dma")
                self.dma_adv()
            if n == 29:
                self.spin_counter(8, 32, fail)
        E.drain(vm=True, lg=True)
        E("s_barrier")
        self.prefetch_p(); self.prefetch_vx(); self.prefetch_kx()
        E(f"s_and_b32 s{S_T0}, s{S_W}, 1\n s_lshl_b32 s{S_T0}, s{S_T0}, 12\n s_add_u32 s{S_IN0}, s{S_IN0}, s{S_T0}\n s_add_u32 s{S_MB}, s{S_T0}, {MEMS}")
        E(f"s_mov_b32 s{S_STEP}, -1")
        self.step_scalars()
        E.drain(lg=True)

    def spin_counter(self, off, target, fail):
        E = self.E
        lp = E.label("T_spin")
        E(f"s_mov_b32 s{S_CNT}, 0")
        E(lp + ":")
        E(f"s_add_u32 s{S_CNT}, s{S_CNT}, 1\n s_cmp_gt_u32 s{S_CNT}, {POLL_MAX}\n s_cbranch_scc1 {fail}")
        E(f"s_mov_b32 s{S_T0}, 0\n s_atomic_or s{S_T0}, s[{S_DBG}:{S_DBG+1}], {off} glc\n s_waitcnt lgkmcnt(0)")
        E(f"s_cmp_lt_u32 s{S_T0}, {target}\n s_cbranch_scc1 {lp}")
        E.lg = []

    def dma_list(self):
        return [(f"s_mov_b32 m0, s{S_MK0}", f"buffer_load_dwordx4 v{KD}, {ws()}, s{S_KD} offen sc1 lds"),
                (f"s_mov_b32 m0, s{S_MK1}", f"buffer_load_dwordx4 v{KD}, {ws()}, s{S_KD} offen offset:128 sc1 lds"),
                (f"s_mov_b32 m0, s{S_MV0}", f"buffer_load_dwordx4 v{VD}, {ws()}, s{S_VD} offen sc1 lds"),
                (f"s_mov_b32 m0, s{S_MV1}", f"buffer_load_dwordx4 v{VD}, {ws()}, s{S_VD} offen offset:256 sc1 lds")]

    def dma_adv(self):
        self.E(f"s_add_u32 s{S_KD}, s{S_KD}, 8192\n s_add_u32 s{S_VD}, s{S_VD}, 8192")

    def rd_op(self, o, half, reg):
        return f"ds_read_b128 {v(reg + 4*half, 4)}, v{WOP} offset:{LDS_SLOT[o]*2048 + half*1024}"

    def prefetch_p(self):
        for n, o in enumerate(P_OPS):
            for hf in range(2):
                self.E.ds(self.rd_op(o, hf, Q(2 * n)))

    def prefetch_vx(self):
        for j in range(2):
            self.E.ds(f"ds_read_b128 {v(VX + 4*j, 4)}, v{WL16} offset:{L_VX + 4096*j}")

    def prefetch_kx(self):
        for f in range(8):
            self.E.ds(f"ds_read_b128 {v(KX(f), 4)}, v{L16} offset:{L_KX + 1024*f}")

    def zero_acc(self):
        for i in range(6):
            self.E(f"v_mov_b64 {v(AQ + 2*i, 2)}, 0")

    def scalar_list(self):
        return [f"s_and_b32 s{S_PH}, s{S_STEP}, 1", f"s_and_b32 s{S_T0}, s{S_STEP}, 3", f"s_lshl_b32 s{S_T0}, s{S_T0}, 13",
                f"s_add_u32 s{S_MRE}, s{S_T0}, s{S_MB}", f"s_add_u32 s{S_T0}, s{S_T0}, 8192", f"s_and_b32 s{S_T0}, s{S_T0}, 0x7fff",
                f"s_add_u32 s{S_MEM0}, s{S_T0}, {MEMS}", f"s_add_u32 s{S_MEM1}, s{S_T0}, {MEMS + 4096}",
                f"s_add_u32 s{S_PUB}, s{S_T0}, s{S_MB}"]

    def step_scalars(self):
        for x in self.scalar_list(): self.E(x)

    def run(self, prog, first_need=True):
        E = self.E
        if first_need:
            E.need(*prog[0][1])
        for n, (ins, _, fill) in enumerate(prog):
            E(ins)
            toks = list(prog[n + 1][1]) if n + 1 < len(prog) else []
            tags = []
            for f in fill:
                if isinstance(f, tuple) and f[0] == "need":
                    toks += list(f[1]); tags += list(f[2])
            E.need(*toks, tags=tags)
            for f in fill:
                self.put(f)

    def put(self, f):
        E = self.E
        if callable(f):
            f()
        elif isinstance(f, tuple):
            if f[0] == "need":
                return
            (E.ds if f[0].startswith("ds_") else E.vmem)(f[0], tag=f[1])
        elif f.startswith("ds_"):
            E.ds(f)
        elif f.startswith("buffer_"):
            E.vmem(f)
        else:
            E(f)

    def loop(self, mode, done, fail, xsc=""):
        E = self.E
        O = self.opt
        sc = " sc1" if mode else ""
        self.nst = 0; self.names = []
        cvt = lambda d, a0: f"v_cvt_pk_bf16_f32 v{d}, v{a0}, v{a0+1}"
        zero = lambda d: f"v_mov_b64 {v(d,2)}, 0"
        st = lambda name: (lambda: self.stamp(name))
        def smf(d, a_, b_, first): return f"v_mfma_f32_16x16x32_bf16 {v(d,4)}, {v(a_,4)}, {v(b_,4)}, {'0' if first else v(d,4)}"
        cntchk = f"s_add_u32 s{S_CNT}, s{S_CNT}, 1\n s_cmp_gt_u32 s{S_CNT}, {POLL_MAX}\n s_cbranch_scc1 {fail}"
        NS = O["h2sets"]
        H0, CK, H1 = Q(14), Q(13) + 2, ONES
        ld0 = f"buffer_load_dwordx4 {v(H0,4)}, v{WL16}, {ws()}, s{S_MEM0} offen sc1"
        ld1 = f"buffer_load_dwordx4 {v(H1,4)}, v{WL16}, {ws()}, s{S_MEM1} offen sc1"
        chk = lambda x, t: [f"v_max3_u32 v{t}, v{x}, v{x+1}, v{x+2}", f"v_max_u32 v{t}, v{t}, v{x+3}", f"v_cmp_eq_u32 vcc, -1, v{t}"]
        top, retry = E.label("T_loop"), E.label("T_retry")
        E(f"s_mov_b32 s{S_CNT}, 0")
        self.zero_acc()
        for k in range(NS): E(ld0)
        E(f"s_branch {top}")
        E(".p2align 6")
        E(retry + ":")
        if O["h2mask"]: E("s_mov_b64 exec, vcc")
        E(ld0)
        if O["h2mask"]: E("s_mov_b64 exec, -1")
        E(cntchk)
        E(top + ":")
        E(f"s_waitcnt vmcnt({NS - 1})")
        body0 = len(E.lines)
        for x in chk(H0, CK): E(x)
        E(f"s_cbranch_vccnz {retry}")
        E(f"ds_write_b128 v{WL16}, {v(H0,4)} offset:{L_MEM}")
        E.vm = [{"poll"}]
        E.vmem(ld1)
        if self.stamps: E(f"s_mov_b32 s95, s{S_CNT}")
        self.stamp("hop2")
        E(f"s_add_u32 s{S_STEP}, s{S_STEP}, 1")
        E.drain(lg=True)
        E("s_barrier")
        FR = {0: 12, 1: 13, 2: 14, 3: 4, 4: 5, 5: 12, 6: 6, 7: 7, 8: 8, 9: 9, 10: 10, 11: 11, 12: 13, 13: 14, 14: 4, 15: 5}
        def F(i): return f"ds_read_b128 {v(Q(FR[i]),4)}, v{MRD} offset:{L_MEM + 512*i}"
        for i in range(2):
            E.ds(F(i))
        self.stamp("B1")
        opreg = dict(RES_REG)
        for n, o in enumerate(P_OPS): opreg[o] = Q(2 * n)
        for n, o in enumerate(J_OPS): opreg[o] = Q(2 * (n & 1))
        acc = dict(q=AQ, k=AK, v=AV)
        def sm(m, i):
            return (f"v_smfmac_f32_16x16x64_bf16 {v(acc[m],4)}, {v(Q(FR[i]),4)}, {r(opreg[(m,i)],8)}, v{IDX}",
                    (v(Q(FR[i]), 4), r(opreg[(m, i)], 8)))
        seq = [(m, i) for i in range(6) for m in "qkv"] + [(m, i) for m in "qkv" for i in range(6, 16)]
        J = lambda n, hf: self.rd_op(J_OPS[n], hf, Q(2 * (n & 1)))
        PQ, PK = Q(12), Q(12) + 2
        PV_ = PQ
        mul = lambda i: f"v_mul_f32 v{AQ+i}, s{S_SCALE}, v{AQ+i}"
        c1 = chk(H1, Q(6))
        dma = self.dma_list()
        sal = self.scalar_list()
        late, lateok = E.label("T_late"), E.label("T_lateok")
        trq = [f"ds_read_b64_tr_b16 {v(Q(kk) + 2*hi, 2)}, v{TR} offset:{L_QM + (32*kk + 8*hi)*8}" for kk in range(4) for hi in range(2)]
        trk = [f"ds_read_b64_tr_b16 {v(Q(6+kk) + 2*hi, 2)}, v{TR} offset:{L_KM + (32*kk + 8*hi)*8}" for kk in range(4) for hi in range(2)]
        tr = trq + trk
        WA = [Q(10), Q(11), KX(0), KX(1)]
        fill = {n: [] for n in range(48)}
        for n, x in {0: J(0,0), 1: F(2), 2: F(3), 3: J(0,1), 4: F(4), 5: F(5), 9: J(1,0), 10: J(1,1), 11: F(6), 12: F(7),
                     22: J(2,0), 23: J(2,1), 24: J(3,0), 26: J(3,1), 28: J(4,0), 30: J(4,1), 31: J(5,0), 32: J(5,1)}.items():
            fill[n].append(x)
        for i in range(8, 16): fill[6 + i].append(F(i))
        fill[1] = [("need", [], ["poll"])] + fill[1]
        fill[3] = [("need", [v(H1, 4)], [])] + fill[3] + [c1[0]]
        fill[4].append(c1[1]); fill[5].append(c1[2])
        if O["h1w64"]:
            fill[6] = [f"s_cbranch_vccnz {late}", lateok + ":", f"ds_write_b64 v{WL16}, {v(H1,2)} offset:{L_MEM + 4096}"]
            fill[8] = [(f"ds_write_b64 v{WL16}, {v(H1+2,2)} offset:{L_MEM + 4096 + 8}", "h1w")]
        else:
            fill[6] = [f"s_cbranch_vccnz {late}", lateok + ":", (f"ds_write_b128 v{WL16}, {v(H1,4)} offset:{L_MEM + 4096}", "h1w")]
        fill[13] = [("need", [], ["h1w"]), "s_barrier"]
        fill[14].append(f"v_mov_b64 {v(ONES,2)}, s[{S_ONE}:{S_ONE+1}]"); fill[15].append(f"v_mov_b64 {v(ONES+2,2)}, s[{S_ONE}:{S_ONE+1}]")
        for k, n in enumerate(O["dma_at"]):
            fill[O["m0_at"][k]].append(dma[k][0]); fill[n].append((dma[k][1], "dma"))
        fill[7] += sal[0:3]; fill[8] += sal[3:4]; fill[9] = sal[4:5] + fill[9] + sal[5:6]; fill[16] += sal[6:7]; fill[17] += sal[7:8]; fill[18] += sal[8:9]
        for k in range(4): fill[30 + k].append(mul(k))
        fill[34].append(cvt(PQ, AQ)); fill[35].append(cvt(PQ + 1, AQ + 2))
        fill[36] += [(f"ds_write_b64 v{QW}, {v(PQ,2)} offset:{L_QM}", "qw")]
        adv = 0 if O.get("noadv") else 8192
        fill[37] += [f"s_add_u32 s{S_KD}, s{S_KD}, {adv}", f"s_add_u32 s{S_VD}, s{S_VD}, {adv}", st("qk")]
        if self.stamps: fill[37] += [self.dump_stamps, st("dump")]
        fill[39] += ["s_nop 1", cvt(PK, AK), cvt(PK + 1, AK + 2)]
        fill[40] += [(f"ds_write_b64 v{QW}, {v(PK,2)} offset:{L_KM}", "kw"), f"buffer_store_dwordx2 {v(PK,2)}, v{QW}, {ws()}, s{S_KE} offen{xsc}"]
        zl = [zero(WA[0]), zero(WA[0] + 2), zero(WA[1]), zero(WA[1] + 2)]
        fill[41] += [("need", [], ["qw"]), "s_barrier", tr[0]]
        fill[42] += ["s_nop 0"] + tr[1:3]; fill[43] += ["s_nop 0"] + tr[3:5]; fill[44] += ["s_nop 0"] + tr[5:7]
        fill[45] += [("need", [], ["kw"]), tr[7], "s_barrier"]
        fill[46] += ["s_nop 0"] + tr[8:10]
        fill[47] += tr[10:12] + [st("B2")]
        t0 = 12
        for n in O.get("pst", ()): fill[n].insert(0, st(f"n{n}"))
        prog = [sm(m, i) + (fill[n],) for n, (m, i) in enumerate(seq)]
        E.need(*prog[0][1])
        SX0, SX1, SM_ = AQ, AK, Q(13)
        TMP, PX, PM, PMM, LA, O0, O1 = Q(14), KX(2), Q(4), KX(3), Q(5), AV, Q(6)
        sq = [(SX0, KX(kk), Q(kk), kk == 0) for kk in range(4)] + [(SM_, Q(6+kk), Q(kk), kk == 0) for kk in range(4)] \
            + [(SX1, KX(4+kk), Q(kk), kk == 0) for kk in range(4)]
        ex = lambda i, src: f"v_exp_f32 v{TMP+i}, v{src+i}"
        cnds = [f"v_cndmask_b32 v{PMM}, v{PM}, 0, s[{S_HI}:{S_HI+1}]", f"v_cndmask_b32 v{PMM+1}, v{PM+1}, 0, s[{S_HI}:{S_HI+1}]",
                f"v_cndmask_b32 v{PMM+2}, 0, v{PM}, s[{S_HI}:{S_HI+1}]", f"v_cndmask_b32 v{PMM+3}, 0, v{PM+1}, s[{S_HI}:{S_HI+1}]"]
        sf = {n: [] for n in range(12)}
        sf[0] += tr[12:14]; sf[1] += tr[14:16]
        sf[2] += [cvt(PV_, AV), cvt(PV_ + 1, AV + 2)]
        sf[3] += [f"buffer_store_dwordx2 {v(PV_,2)}, v{QW}, {ws()}, s{S_KE} offen offset:{2*MHS}{xsc}", zl[0]]
        sf[4] += zl[1:3]
        sf[5] += [zl[3], zero(WA[2])]
        sf[6] += [ex(0, SX0)]
        sf[7] += [f"s_add_u32 s{S_KE}, s{S_KE}, {0 if O.get('noexp') else 32*KMB}", ex(1, SX0)]
        sf[8] += [f"s_cmp_eq_u32 s{S_STEP}, 63", ex(2, SX0)]
        sf[9] += [f"s_cbranch_scc1 {done}", ex(3, SX0)]
        sf[10] += [cvt(PX, TMP), cvt(PX + 1, TMP + 2)]
        sf[11] += [ex(0, SM_), ex(1, SM_), ex(2, SM_), ex(3, SM_), cvt(PM, TMP), cvt(PM + 1, TMP + 2)] + cnds + [st("S"), ex(0, SX1)]
        prog += [(smf(*x), (v(x[1], 4), v(x[2], 4)), sf[n]) for n, x in enumerate(sq)]
        m16 = lambda d, a_, b_: f"v_mfma_f32_16x16x16_bf16 {v(d,4)}, {v(a_,2)}, {v(b_,2)}, 0"
        pvm = [m16(LA, ONES, PMM), m16(O0, PV_, PMM), m16(O1, PV_, PMM + 2)]
        pvx = [smf(LA, ONES, PX, False), smf(O0, VX, PX, False), smf(O1, VX + 4, PX, False)]
        XA = [PM + 2, PM + 3, Q(1)]
        slow, back = E.label("T_slow"), E.label("T_back")
        prog += [(pvm[0], (), [ex(1, SX1)]), (pvm[1], (), [ex(2, SX1)]),
                 (pvm[2], (), [ex(3, SX1), cvt(PX + 2, TMP), cvt(PX + 3, TMP + 2), zero(WA[2] + 2), zero(WA[3])]),
                 (pvx[0], (), [f"v_xor_b32 v{XA[0]}, 512, v{OW}", f"v_xor_b32 v{XA[1]}, 1024, v{OW}"]),
                 (pvx[1], (), [f"v_xor_b32 v{XA[2]}, 1536, v{OW}", zero(WA[3] + 2)]),
                 (pvx[2], (), ["s_nop 1", f"v_rcp_f32 v{LA+1}, v{LA}", f"v_subrev_u32 v{TMP}, s{S_LO}, v{LA}",
                               f"v_cmp_le_u32 vcc, s{S_RNG}, v{TMP}", f"s_cbranch_vccnz {slow}", back + ":"])]
        self.run(prog, first_need=False)
        OWN = Q(7)
        for i in range(4): E(f"v_mul_f32 v{O0+i}, v{LA+1}, v{O0+i}")
        E(cvt(OWN, O0)); E(cvt(OWN+1, O0+2))
        for i in range(2): E(f"v_pk_mul_f32 {v(O1+2*i,2)}, {v(O1+2*i,2)}, {v(LA,2)} op_sel:[0,1] op_sel_hi:[1,1]")
        E(cvt(OWN+2, O1)); E(cvt(OWN+3, O1+2))
        E.ds(f"ds_write_b128 v{OW}, {v(OWN,4)} offset:{L_OM}", tag="ow")
        self.stamp("PV")
        E("s_nop 0")
        OF = [OWN, Q(8), Q(9), Q(0)]
        SEL, RD, TG = Q(12), Q(13), KX(3)
        U0, U1 = AQ, AK
        OREG = [KX(4), KX(6), Q(2), VX]
        for n, o in enumerate(O_OPS): opreg[o] = OREG[n]
        rdo = [self.rd_op(o, hf, OREG[n]) for n, o in enumerate(O_OPS) for hf in range(2)]
        so = lambda p, t: (f"v_smfmac_f32_16x16x64_bf16 {v(WA[t],4)}, {v(OF[p],4)}, {r(opreg[('o',p,t)],8)}, v{IDX}",
                           (v(OF[p], 4), r(opreg[('o', p, t)], 8)))
        tag = lambda x: f"v_bfi_b32 v{x}, 1, s{S_PH}, v{x}"
        oq = [(0, t) for t in range(4)] + [(p, t) for p in (1, 2, 3) for t in (0, 1)] + [(p, t) for p in (1, 2, 3) for t in (2, 3)]
        of = {n: [] for n in range(16)}
        nb3 = O["b3at"]
        of[nb3] = [("need", [], ["ow"]), "s_barrier"] + [f"ds_read_b128 {v(OF[p],4)}, v{XA[p-1]} offset:{L_OM}" for p in (1, 2, 3)] + [st("B3")]
        of[3] += [lambda: E.need(v(OF[1], 4))]
        of[0] += rdo[0:1]; of[1] += rdo[1:2]
        for k in range(6): of[4 + k] += rdo[2 + k:3 + k]
        of[10] += [f"ds_read_b128 {v(SEL,4)}, v{L16} offset:{L_SEL}"]
        u0v = [cvt(U0, WA[0]), cvt(U0+1, WA[0]+2), tag(U0), cvt(U0+2, WA[1]), cvt(U0+3, WA[1]+2)]
        u0s = [f"buffer_store_dwordx4 {v(U0,4)}, v{PS}, {ws()}, s{S_PST0} offen{sc}", st("u0")]
        if O["u0at"] == 0:
            of[11] += u0v; of[12] += u0s
        else:
            of[10] += ["s_nop 1"] + u0v[:1]; of[11] += u0v[1:2]; of[12] += u0v[2:4]; of[13] += u0v[4:]; of[14] += u0s
        of[15] += ["s_nop 4", cvt(U1, WA[2]), cvt(U1+1, WA[2]+2), tag(U1), cvt(U1+2, WA[3]), cvt(U1+3, WA[3]+2),
                   f"buffer_store_dwordx4 {v(U1,4)}, v{PS}, {ws()}, s{S_PST1} offen{sc}", st("Wo")]
        self.run([so(p, t) + (of[n],) for n, (p, t) in enumerate(oq)])
        if O.get("acku"):
            E("s_waitcnt vmcnt(0)"); self.stamp("acku1")
        pre = ["s_waitcnt vmcnt(0)"] + E.lines[body0:]
        def gather(base):
            return [f"buffer_load_dwordx4 {v(KX(base + i),4)}, v{L16}, {ws()}, s{S_IN0} offen offset:{i*1024} sc1" for i in range(4)]
        def reduce_(base, after):
            for i in range(4):
                E(f"s_waitcnt vmcnt({3 - i + after})")
                E(smf(RD, SEL, KX(base + i), i == 0))
                if i == 0: E(f"v_xor_b32 v{TG}, s{S_PH}, v{KX(base)}")
                else: E(f"v_bitop3_b32 v{TG}, v{TG}, v{KX(base + i)}, s{S_PH} bitop3:0xf6")
            E(f"v_and_b32 v{TG}, 1, v{TG}\n v_cmp_ne_u32 vcc, 0, v{TG}")
        def finish():
            E("s_nop 3")
            for i in range(2):
                E(f"v_add_f32_dpp v{RD+i}, v{RD+i}, v{RD+i} row_ror:8 row_mask:0xf bank_mask:0xf")
            E(cvt(TG, RD))
            E(f"v_min_u32 v{TG}, -2, v{TG}")
        def publish():
            E(f"buffer_store_dword v{TG}, v{MP}, {ws()}, s{S_PUB} offen{sc}")
            E(f"buffer_store_dword v{TG+1}, v{MP}, {ws()}, s{S_MRE} offen{sc}")
            if self.stamps: E(f"s_mov_b32 s58, s{S_CNT}")
        def nops(n):
            for k in range(0, n, 16): E(f"s_nop {min(16, n - k) - 1}")
        w23, join = E.label("T_w23"), E.label("T_join")
        errs = []
        pl = [self.rd_op(o, hf, Q(2 * n)) for n, o in enumerate(P_OPS) for hf in range(2)]
        rds = [f"ds_read_b128 {v(VX + 4*j, 4)}, v{WL16} offset:{L_VX + 4096*j}" for j in range(2)] \
            + [f"ds_read_b128 {v(KX(f), 4)}, v{L16} offset:{L_KX + 1024*f}" for f in range(8)]
        l0 = len(E.lines)
        for x in pl[:O["h1pre"]]: E(x)
        self.zero_acc()
        E(f"s_mov_b32 s{S_CNT}, 0\n v_mov_b32 v{TG+1}, -1")
        E(f"s_cmp_gt_u32 s{S_W}, 1\n s_cbranch_scc1 {w23}")
        l1 = len(E.lines)
        if O["h1ack"] is not None: E(f"s_waitcnt vmcnt({O['h1ack']})")
        for x in pl[O["h1pre"]:O["h1mid"]]: E(x)
        nops(O["h1nop"])
        if O["w1nop"]:
            sk = E.label("T_sk")
            E(f"s_cmp_eq_u32 s{S_W}, 0\n s_cbranch_scc1 {sk}")
            nops(O["w1nop"])
            E(sk + ":")
        for x in gather(4): E(x)
        self.stamp("g1")
        p1, p1re = E.label("T_p1"), E.label("T_p1re")
        for x in pl[O["h1mid"]:]: E(x)
        E(f"s_waitcnt lgkmcnt({min(15, len(pl))})")
        lp1 = len(E.lines)
        E(p1 + ":")
        reduce_(4, 0)
        E(f"s_cbranch_vccnz {p1re}")
        l2 = len(E.lines)
        finish(); publish()
        E(join + ":")
        l4 = len(E.lines)
        self.stamp("hop1")
        E("s_barrier")
        cuts = list(O["h2cut"]) + [10]
        for x in rds[:cuts[0]]: E(x)
        for k in range(NS):
            E(ld0)
            for x in rds[cuts[k]:(cuts[k + 1] if k + 1 < NS else 10)]: E(x)
        E(f"s_mov_b32 s{S_CNT}, 0")
        self.stamp("top")
        E(f"s_branch {top}")
        l5 = len(E.lines)
        E(p1re + ":")
        if O["h1mask"]: E("s_mov_b64 exec, vcc")
        for x in gather(4): E(x)
        if O["h1mask"]: E("s_mov_b64 exec, -1")
        E(cntchk)
        E(f"s_branch {p1}")
        l6 = len(E.lines)
        E(w23 + ":")
        for x in pl[O["h1pre"]:]: E(x)
        E(f"s_waitcnt vmcnt(4)\n s_branch {join}")
        Ls = E.lines
        errs += hazard.check(pre + Ls[l0:l5] + pre, "team w01")
        errs += hazard.check(pre + Ls[l0:l2] + Ls[l5:l6] + Ls[lp1:l5] + pre, "team w01 retry")
        errs += hazard.check(pre + Ls[l0:l1] + Ls[l6:] + Ls[l4:l5] + pre, "team w23")
        E.lg = []; E.vm = []
        E(late + ":")
        E(ld1); E(cntchk); E("s_waitcnt vmcnt(0)")
        for x in c1: E(x)
        if self.stamps: E(f"s_add_u32 s95, s95, 0x100")
        E(f"s_cbranch_vccnz {late}\n s_branch {lateok}")
        s0 = len(E.lines)
        E(slow + ":")
        M0, M1 = TMP, TMP + 1
        E("s_nop 7")
        E(f"v_max3_f32 v{M0}, v{SX0}, v{SX0+1}, v{SX0+2}\n v_max3_f32 v{M0}, v{M0}, v{SX0+3}, v{SX1}")
        E(f"v_max3_f32 v{M0}, v{M0}, v{SX1+1}, v{SX1+2}\n v_max3_f32 v{M0}, v{M0}, v{SX1+3}, v{SM_}")
        E(f"v_max3_f32 v{M0}, v{M0}, v{SM_+1}, v{SM_+2}\n v_max_f32 v{M0}, v{M0}, v{SM_+3}")
        for sw in ("32", "16"):
            E(f"v_mov_b32 v{M1}, v{M0}\n s_nop 1\n v_permlane{sw}_swap_b32 v{M0}, v{M1}\n s_nop 1\n v_max_f32 v{M0}, v{M0}, v{M1}")
        for base in (SX0, SX1, SM_):
            for i in range(4): E(f"v_sub_f32 v{base+i}, v{base+i}, v{M0}")
            for i in range(4): E(f"v_exp_f32 v{base+i}, v{base+i}")
        E("s_nop 0")
        E(cvt(PX, SX0)); E(cvt(PX+1, SX0+2)); E(cvt(PX+2, SX1)); E(cvt(PX+3, SX1+2)); E(cvt(PM, SM_)); E(cvt(PM+1, SM_+2))
        for x in cnds: E(x)
        E("s_nop 1")
        for x in pvm + pvx: E(x)
        E("s_nop 7\n s_nop 1")
        E(f"v_rcp_f32 v{LA+1}, v{LA}\n s_nop 0\n s_branch {back}")
        errs += hazard.check(E.lines[s0:], "team slow")
        return errs

    def dump_stamps(self):
        E = self.E
        E("s_memrealtime s[88:89]\n s_memtime s[90:91]\n s_waitcnt lgkmcnt(0)")
        E.lg = []
        E(f"s_lshl_b32 s{S_T0}, s{S_H}, 2\n s_add_u32 s{S_T0}, s{S_T0}, s{S_W}\n s_lshl_b32 s{S_T0}, s{S_T0}, 6\n s_add_u32 s{S_T0}, s{S_T0}, s{S_STEP}")
        E(f"s_lshl_b32 s{S_T0}, s{S_T0}, 7\n s_add_u32 s{S_T0}, s{S_T0}, {STAMP}")
        t = Q(12) + 2
        E(f"v_mov_b32 v{t}, 0")
        for i in range(16):
            E(f"v_writelane_b32 v{t}, s{S_ST + 2*i}, {i}")
        E(f"v_writelane_b32 v{t}, s58, 16\n v_writelane_b32 v{t}, s95, 17")
        E(f"v_lshrrev_b32 v{t+1}, 2, v{L16}\n s_mov_b64 exec, 0xffffffff")
        E(f"buffer_store_dword v{t}, v{t+1}, {ws()}, s{S_T0} offen\n s_mov_b64 exec, -1\n s_nop 3")


def standalone(stamps=False, force_mode=None, **opt):
    E = Em()
    E("; @launch grid=(256,1,1) block=(256,1,1) lds=163840")
    E('.amdgcn_target "amdgcn-amd-amdhsa--gfx950"')
    E(kernel_header("team_kernel"))
    T = Team(E, stamps, **opt)
    E("s_cmp_ge_u32 s2, 256\n s_cbranch_scc1 T_exit\n s_and_b32 s3, s2, 7\n s_cbranch_scc1 T_exit")
    E(f"s_lshr_b32 s{S_H}, s2, 3")
    E("s_memrealtime s[100:101]\n s_waitcnt lgkmcnt(0)\n s_mov_b32 s59, s100\n s_mov_b32 s58, 0")
    l0 = len(E.lines)
    T.startup("T_fail")
    errs = hazard.check(E.lines[l0:], "team startup")
    E("s_memrealtime s[100:101]\n s_waitcnt lgkmcnt(0)\n s_mov_b32 s96, s100\n s_memtime s[100:101]\n s_waitcnt lgkmcnt(0)\n s_mov_b32 s15, s100")
    if force_mode is not None:
        E(f"s_mov_b32 s{S_MODE}, {force_mode}")
    E(f"s_cmp_lg_u32 s{S_MODE}, 0\n s_cbranch_scc1 T_global")
    errs += T.loop(0, "T_done", "T_fail")
    E("T_global:")
    errs += T.loop(1, "T_done", "T_fail")
    E("T_fail:")
    E(f"s_mov_b32 s{S_T0}, 1\n s_atomic_add s{S_T0}, s[{S_DBG}:{S_DBG+1}], 12 glc\n s_waitcnt lgkmcnt(0)")
    E("T_done:")
    E("s_memrealtime s[100:101]\n s_waitcnt lgkmcnt(0)\n s_mov_b32 s97, s100\n s_memtime s[100:101]\n s_waitcnt lgkmcnt(0)")
    E(f"s_sub_u32 s15, s100, s15\n v_mov_b32 v40, s59\n v_mov_b32 v41, s96\n v_mov_b32 v42, s97\n v_mov_b32 v43, s15")
    E(f"s_lshl_b32 s{S_T0}, s{S_H}, 4\n s_add_u32 s{S_T0}, s{S_T0}, {STAMP + MB}\n v_mov_b32 v44, 0")
    E(f"buffer_store_dwordx4 v[40:43], v44, {ws()}, s{S_T0} offen")
    E("T_exit:\n s_endpgm")
    E(kernel_desc("team_kernel"))
    txt = E.text()
    if opt.get("norty") or opt.get("nomem"):
        import re
        txt = re.sub(r"s_cbranch_vccnz T_(retry|late|p1re|slow)_\d+", "s_nop 0", txt)
    if opt.get("nomem"):
        i = txt.index("T_retry_")
        pat = {1: r"buffer_(load|store)_dword(x4)? v\S+, v\d+, s\[4:7\], s(20|21|22|24|25|26|35) offen.*",
               2: r"buffer_(load|store)_dword(x4)? v\S+, v\d+, s\[4:7\], s(24|25|26|35) offen.*",
               3: r"buffer_(load|store)_dword(x4)? v\S+, v\d+, s\[4:7\], s(20|21|22) offen.*"}[opt["nomem"]]
        txt = txt[:i] + re.sub(pat, "s_mov_b32 s94, 0x12345", txt[i:])
    return txt, errs, T.names

if __name__ == "__main__":
    for st in (False, True):
        txt, errs, names = standalone(st)
        print(len(errs), "hazards", names)
    open("team.s", "w").write(txt)
```

```python
import sys
from emit import *
import gemm, attn, outp, team
NAME = "gated_mix__compressed_kv_cla__memory_aug_recurrent_mem_tr__prompt"
def build():
    E = Em()
    ks = [("proj_kernel", 192), ("team_kernel", 256), ("attn_kernel", 256), ("oproj_kernel", 256), ("follow_kernel", 256), ("final_kernel", 256)]
    for k, g in ks:
        E.lines.append(f"; @launch kernel={k} grid=({g},1,1) block=(256,1,1) lds=163840")
    E('.amdgcn_target "amdgcn-amd-amdhsa--gfx950"')
    errs = gemm.proj_kernel(E, "proj_kernel")
    E(kernel_header("team_kernel"))
    T = team.Team(E)
    E("s_cmp_ge_u32 s2, 256\n s_cbranch_scc1 T_exit\n s_and_b32 s3, s2, 7\n s_cbranch_scc1 T_exit")
    E(f"s_lshr_b32 s{team.S_H}, s2, 3")
    T.startup("T_exit")
    E(f"s_cmp_lg_u32 s{team.S_MODE}, 0\n s_cbranch_scc1 T_global")
    errs += T.loop(0, "T_exit", "T_exit")
    E("T_global:")
    errs += T.loop(1, "T_exit", "T_exit")
    E("T_exit:\n s_endpgm")
    errs += attn.attn_kernel(E, "attn_kernel")
    errs += outp.oproj_kernel(E, "oproj_kernel")
    errs += outp.follower_kernel(E, "follow_kernel")
    errs += outp.final_kernel(E, "final_kernel")
    for k, g in ks: E(kernel_desc(k))
    return E.text(), errs
if __name__ == "__main__":
    txt, errs = build()
    print(len(errs), "hazards", len(txt), "bytes")
    open(sys.argv[1] if len(sys.argv) > 1 else f"cdna_kernels/{NAME}.s", "w").write(txt)
```

```python
import struct
from emit import *
from layout import *
from gemm import G_WS, G_W, V_LANE, V_L16, lane_setup, ws_srd

def fbits(x): return struct.unpack("<I", struct.pack("<f", x))[0]

A_KOFF, A_VOFF = 17, 18
A_KMIN, A_VMIN = 19, 20
A_M0 = 21
A_N = 22
A_E = 23
A_T0, A_T1, A_T2 = 26, 27, 28
A_RETRY = 29
A_NEG = 24
A_QOFF = 25
A_RDY = 36
AO, AQ_, AK_, AV_ = 0, 128, 192, 224
V_DMA, V_RDA, V_THR = 3, 4, 5
V_NM = 6
V_LS = 8
V_TM = 12
VS, VC, VP = 32, 64, 96
VO = 112
RING, DEPTH = 8, 5
L_FLAG = RING * 16384

def wsd(): return s(G_WS, 4)
def qk(qt, st): return f"v_mfma_f32_32x32x16_bf16 {v(VS+16*qt,16)}, {a(AK_+4*st,4)}, {a(AQ_+32*qt+4*st,4)}, {v((VC if st == 0 else VS)+16*qt,16)}"
def pv(qt, f):
    st, dt = f >> 2, f & 3
    d = a(AO + 64*qt + 16*dt, 16)
    return f"v_mfma_f32_32x32x16_bf16 {d}, {a(AV_+4*f,4)}, {v(VP+8*qt+4*st,4)}, {d}"
def rd_k(st): return f"ds_read_b128 {a(AK_+4*st,4)}, v{V_RDA} offset:{8192 + 1024*st}"
def rd_v(f): return f"ds_read_b128 {a(AV_+4*f,4)}, v{V_RDA} offset:{1024*(2*(f & 3) + (f >> 2))}"
def ex(qt, e): return f"v_exp_f32 v{VS+16*qt+e}, v{VS+16*qt+e}"
def ad(qt, e): return f"v_add_f32 v{V_LS+2*qt+(e&1)}, v{V_LS+2*qt+(e&1)}, v{VS+16*qt+e}"
def cv(qt, p): return f"v_cvt_pk_bf16_f32 v{VP+8*qt+p}, v{VS+16*qt+2*p}, v{VS+16*qt+2*p+1}"

def fetch(sc):
    ld = lambda so, off: f"buffer_load_dwordx4 v{V_DMA}, {wsd()}, s{so} offen offset:{off}{sc} lds"
    return [f"s_mov_b32 m0, s{A_M0}", ld(A_VOFF, 0), ld(A_VOFF, 1024), f"s_add_u32 m0, s{A_M0}, 8192", ld(A_KOFF, 0), ld(A_KOFF, 1024)]
def fetch_adv():
    return [f"s_sub_u32 s{A_VOFF}, s{A_VOFF}, 8192", f"s_max_i32 s{A_VOFF}, s{A_VOFF}, s{A_VMIN}",
            f"s_sub_u32 s{A_KOFF}, s{A_KOFF}, 8192", f"s_max_i32 s{A_KOFF}, s{A_KOFF}, s{A_KMIN}",
            f"s_add_u32 s{A_M0}, s{A_M0}, 16384", f"s_and_b32 s{A_M0}, s{A_M0}, {RING*16384 - 1}"]
def fetch_now(E, sc, adv=True):
    if adv:
        for x in fetch_adv(): E(x)
    for x in fetch(sc):
        E(x)
        if "m0" in x: E("s_nop 0")
def rda_adv(): return [f"v_add_u32 v{V_RDA}, 16384, v{V_RDA}", f"v_and_b32 v{V_RDA}, {RING*16384 - 1}, v{V_RDA}"]

def set_c(E, qt, kind):
    for i in range(16):
        d = VC + 16*qt + i
        if kind == "open": E(f"v_mov_b32 v{d}, v{V_NM+qt}")
        elif kind == "mask": E(f"v_mov_b32 v{d}, s{A_NEG}")
    if kind == "diag":
        E(f"v_mov_b32 v{V_TM}, s{A_NEG}")
        for i0 in range(0, 16, 4):
            for i in range(i0, i0 + 4):
                E(f"v_cmp_le_i32 s[{40+2*(i&3)}:{41+2*(i&3)}], {8*(i>>2) + (i&3)}, v{V_THR}")
            for i in range(i0, i0 + 4):
                E(f"v_cndmask_b32 v{VC+16*qt+i}, v{V_TM}, v{V_NM+qt}, s[{40+2*(i&3)}:{41+2*(i&3)}]")


def attn_task(E, s_h, s_qb, sc, osc, diag=False, wait_q=None, wait_kv=None):
    errs = []
    l0 = len(E.lines)
    E(f"s_mov_b32 s{A_NEG}, {hex(fbits(-1e30))}\n s_mov_b32 s{A_RETRY}, 0")
    E(f"v_mov_b32 v{V_NM}, 0\n v_mov_b32 v{V_NM+1}, 0")
    E(f"s_lshl_b32 s{A_T0}, s{G_W}, 11\n v_add_u32 v{V_DMA}, s{A_T0}, v{V_L16}")
    E(f"v_and_b32 v{V_THR}, 31, v{V_LANE}\n v_lshrrev_b32 v{V_TM}, 5, v{V_LANE}\n v_lshlrev_b32 v{V_TM}, 2, v{V_TM}\n v_sub_u32 v{V_THR}, v{V_THR}, v{V_TM}")
    E(f"s_lshl_b32 s{A_T0}, s{s_h}, 19\n s_add_u32 s{A_KMIN}, s{A_T0}, {KA}\n s_add_u32 s{A_VMIN}, s{A_T0}, {VA}")
    E(f"s_lshl_b32 s{A_T1}, s{s_qb}, 2\n s_add_u32 s{A_T1}, s{A_T1}, s{G_W}\n s_lshl_b32 s{A_T1}, s{A_T1}, 14\n s_add_u32 s{A_QOFF}, s{A_T0}, s{A_T1}")
    if wait_q: wait_q()
    if wait_kv:
        E(f"s_lshl_b32 s{A_T1}, s{s_qb}, 16\n s_add_u32 s{A_T1}, s{A_T1}, {(7 - DEPTH)*8192}\n s_add_u32 s{A_KOFF}, s{A_KMIN}, s{A_T1}")
        wait_kv()
    for k in range(4):
        E(f"s_add_u32 s{A_T2}, s{A_QOFF}, {QA + 4096*k}")
        for i in range(4):
            E(f"buffer_load_dwordx4 {a(AQ_ + 16*k + 4*i, 4)}, v{V_L16}, {wsd()}, s{A_T2} offen offset:{1024*i}{sc}")
    again = E.label("A_again")
    E(again + ":")
    E(f"s_lshl_b32 s{A_T1}, s{s_qb}, 16\n s_add_u32 s{A_T1}, s{A_T1}, {7*8192}")
    E(f"s_add_u32 s{A_KOFF}, s{A_KMIN}, s{A_T1}\n s_add_u32 s{A_VOFF}, s{A_VMIN}, s{A_T1}\n s_lshl_b32 s{A_M0}, s{G_W}, 11")
    fetch_now(E, sc, False)
    E(f"s_add_u32 s{A_VOFF}, s{A_VOFF}, 8192")
    for _ in range(DEPTH): fetch_now(E, sc)
    for i in range(128): E(f"v_accvgpr_write_b32 a{AO+i}, 0")
    for i in range(4): E(f"v_mov_b32 v{V_LS+i}, 0")
    for e in range(4, 16): E(f"v_mov_b32 v{VS+16+e}, " + ("0" if e < 6 else f"s{A_NEG}"))
    E(f"v_mov_b32 v{VP+8}, 0\n v_mov_b32 v{VP+9}, 0\n v_mov_b32 v{V_RDA}, v{V_L16}")
    set_c(E, 0, "mask"); set_c(E, 1, "diag")
    E(f"s_lshl_b32 s{A_N}, s{s_qb}, 3\n s_add_u32 s{A_N}, s{A_N}, 8\n s_lshl_b32 s{A_T0}, s{G_W}, 1\n s_sub_u32 s{A_E}, 6, s{A_T0}")
    E(f"s_waitcnt vmcnt({4*DEPTH})\n s_barrier")
    if diag: tmark(E, 1)
    idle, go = E.label("A_idle"), E.label("A_go")
    E(f"s_cmp_eq_u32 s{A_E}, 0\n s_cbranch_scc1 {go}")
    E(idle + ":")
    E(f"s_waitcnt vmcnt({4*(DEPTH-1)})\n s_barrier")
    for x in fetch_adv(): E(x)
    if wait_kv: wait_kv()
    fetch_now(E, sc, False)
    for x in rda_adv(): E(x)
    E(f"s_sub_u32 s{A_N}, s{A_N}, 1\n s_sub_u32 s{A_E}, s{A_E}, 1\n s_cmp_lg_u32 s{A_E}, 0\n s_cbranch_scc1 {idle}")
    E(go + ":")
    for f in range(8): E.ds(rd_v(f))
    for st in range(8): E.ds(rd_k(st))
    for x in rda_adv(): E(x)
    E.need(a(AV_, 32))
    errs += hazard.check(E.lines[l0:], "attn prologue")
    lg0 = list(E.lg)
    top, upd, back, out = E.label("A_top"), E.label("A_upd"), E.label("A_back"), E.label("A_out")
    E(".p2align 6")
    E(top + ":")
    l1 = len(E.lines)
    mf = [(qk(0, i), a(AK_+4*i, 4)) for i in range(8)] + [(pv(1, i), None) for i in range(8)] \
        + [(qk(1, i), None) for i in range(8)] + [(pv(0, i), a(AV_+4*i, 4)) for i in range(8)]
    fl = fetch(sc); fa = fetch_adv()
    sca = {n: [] for n in range(32)}; mem = {n: [] for n in range(32)}; val = {n: [] for n in range(32)}
    for f in range(8): mem[8 + f].append(rd_v(f)); mem[16 + f].append(rd_k(f))
    sca[22].append(fl[0]); mem[24].append(fl[1]); mem[26].append(fl[2]); sca[27].append(fl[3]); mem[28].append(fl[4]); mem[30].append(fl[5])
    for k, x in enumerate(fa): sca[9 + k].append(x)
    for qt, b in ((0, 10), (1, 26)):
        for e in range(16):
            val[(b + e) % 32].insert(0, ex(qt, e)); val[(b + 1 + e) % 32].append(ad(qt, e))
        for p in range(8): val[(b + 2 + 2*p) % 32].append(cv(qt, p))
    val[25].append(rda_adv()[0]); val[27].append(rda_adv()[1])
    sca[16].append(f"s_add_u32 s{A_E}, s{A_E}, 1"); sca[17].append(f"s_sub_u32 s{A_N}, s{A_N}, 1")
    sca[18].append(f"s_cmp_lt_u32 s{A_E}, 3"); sca[19].append(f"s_cbranch_scc1 {upd}")
    sca[29].append(f"s_cmp_lg_u32 s{A_N}, 0")
    kvw, kvb = E.label("A_kvw"), E.label("A_kvb")
    if wait_kv:
        sca[20].append(f"s_cmp_lt_u32 s{A_KOFF}, s{A_RDY}"); sca[21] += [f"s_cbranch_scc1 {kvw}", kvb + ":"]
    E.need(mf[0][1])
    for n in range(32):
        E(mf[n][0])
        if n == 7:
            E(f"s_waitcnt vmcnt({4*(DEPTH-1)})\n s_barrier")
        elif n % 2 == 1 or n == 0:
            nx = [mf[k % 32][1] for k in ((n + 1, n + 2) if n else (1,)) if k < 32 and mf[k % 32][1]]
            if nx: E.need(*nx)
        for x in sca[n]: E(x)
        if n == 19: E(back + ":")
        for x in mem[n]: (E.ds if x.startswith("ds_") else E)(x)
        for x in val[n]: E(x)
    assert E.lg == lg0, (E.lg, lg0)
    E(f"s_cbranch_scc1 {top}")
    body = E.lines[l1:]
    errs += hazard.check([rd_k(st) for st in range(8)] + body + body, "attn loop")
    l2 = len(E.lines)
    for n in range(0, 11):
        for x in val[n]:
            if f"v{VS}," in x and n == 10 and x.startswith("v_exp"): continue
            E(x)
    E("s_nop 1")
    for f in range(8): E(pv(1, f))
    if diag: tmark(E, 2)
    for qt in range(2):
        l_ = V_LS + 2*qt
        E(f"v_add_f32 v{l_}, v{l_}, v{l_+1}\n v_mov_b32 v{l_+1}, v{l_}\n s_nop 1\n v_permlane32_swap_b32 v{l_}, v{l_+1}\n s_nop 1\n v_add_f32 v{l_}, v{l_}, v{l_+1}")
    lo, hi = fbits(2.0 ** -32), fbits(2.0 ** 48)
    E(f"v_subrev_u32 v{V_TM}, {hex(lo)}, v{V_LS}\n v_subrev_u32 v{V_TM+1}, {hex(lo)}, v{V_LS+2}\n v_max_u32 v{V_TM}, v{V_TM}, v{V_TM+1}")
    E(f"v_cmp_le_u32 vcc, {hex(hi - lo)}, v{V_TM}\n s_nop 1\n s_cmp_lg_u64 vcc, 0\n s_cselect_b32 s{A_T0}, 1, 0")
    E(f"v_mov_b32 v{V_TM}, s{A_T0}\n s_lshl_b32 s{A_T0}, s{G_W}, 2\n s_add_u32 s{A_T0}, s{A_T0}, {L_FLAG}\n v_mov_b32 v{V_TM+1}, s{A_T0}")
    E(f"ds_write_b32 v{V_TM+1}, v{V_TM}\n v_mov_b32 v{V_TM+2}, {L_FLAG}\n s_waitcnt vmcnt(0) lgkmcnt(0)\n s_barrier")
    E(f"ds_read_b128 {v(V_TM+4,4)}, v{V_TM+2}")
    E(f"v_rcp_f32 v{V_LS}, v{V_LS}\n v_rcp_f32 v{V_LS+2}, v{V_LS+2}\n s_waitcnt lgkmcnt(0)")
    E(f"v_or3_b32 v{V_TM}, v{V_TM+4}, v{V_TM+5}, v{V_TM+6}\n v_or_b32 v{V_TM}, v{V_TM}, v{V_TM+7}\n s_nop 0\n v_readfirstlane_b32 s{A_T0}, v{V_TM}")
    slow = E.label("A_slow")
    E(f"s_nop 1\n s_cmp_gt_u32 s{A_T0}, s{A_RETRY}\n s_cbranch_scc1 {slow}")
    E.lg = []
    for k in range(4):
        qt = k >> 1
        E(f"s_add_u32 s{A_T2}, s{A_QOFF}, {CTXA + 4096*k}")
        for i in range(4):
            t = VO + 12*((4*k + i) % 4)
            for j in range(8): E(f"v_accvgpr_read_b32 v{t+j}, a{AO + 32*k + 8*i + j}")
            for j in range(4): E(f"v_pk_mul_f32 {v(t+2*j,2)}, {v(t+2*j,2)}, {v(V_LS+2*qt,2)} op_sel_hi:[1,0]")
            for j in range(4): E(f"v_cvt_pk_bf16_f32 v{t+8+j}, v{t+2*j}, v{t+2*j+1}")
            E(f"buffer_store_dwordx4 {v(t+8,4)}, v{V_L16}, {wsd()}, s{A_T2} offen offset:{1024*i}{osc}")
    errs += hazard.check(body + E.lines[l2:], "attn tail")
    E(f"s_branch {out}")
    if wait_kv:
        E(kvw + ":")
        wait_kv()
        E(f"s_branch {kvb}")
    E(upd + ":")
    u2 = E.label("A_upd2")
    l3 = len(E.lines)
    E(f"s_cmp_eq_u32 s{A_E}, 2\n s_cbranch_scc1 {u2}")
    set_c(E, 0, "diag"); set_c(E, 1, "open")
    E(f"s_branch {back}")
    errs += hazard.check(body[:body.index(back + ":")] + E.lines[l3:], "attn upd")
    E(u2 + ":")
    set_c(E, 0, "open")
    E(f"s_branch {back}")
    E(slow + ":")
    l4 = len(E.lines)
    E(f"s_mov_b32 s{A_RETRY}, 1")
    set_c(E, 0, "mask"); set_c(E, 1, "diag")
    E(f"v_mov_b32 v{V_LS}, s{A_NEG}\n v_mov_b32 v{V_LS+2}, s{A_NEG}")
    E(f"s_add_u32 s{A_KOFF}, s{A_QOFF}, {KA + 8192}\n s_mov_b32 s{A_E}, 0")
    ml, m2, m3 = E.label("A_ml"), E.label("A_m2"), E.label("A_m3")
    E(ml + ":")
    E(f"s_add_u32 s{A_T2}, s{A_KOFF}, 4096")
    for st in range(8):
        E(f"buffer_load_dwordx4 {a(AK_+4*st,4)}, v{V_L16}, {wsd()}, s{A_KOFF if st < 4 else A_T2} offen offset:{1024*(st & 3)}{sc}")
    E("s_waitcnt vmcnt(0)")
    for qt in range(2):
        for st in range(8): E(qk(qt, st))
    E("s_nop 7\n s_nop 3")
    for qt in range(2):
        for e in range(0, 16, 2): E(f"v_max3_f32 v{V_LS+2*qt}, v{V_LS+2*qt}, v{VS+16*qt+e}, v{VS+16*qt+e+1}")
    E(f"s_add_u32 s{A_E}, s{A_E}, 1\n s_cmp_lg_u32 s{A_E}, 1\n s_cbranch_scc1 {m2}")
    set_c(E, 0, "diag"); set_c(E, 1, "open")
    E(m2 + ":")
    E(f"s_cmp_lg_u32 s{A_E}, 2\n s_cbranch_scc1 {m3}")
    set_c(E, 0, "open")
    E(m3 + ":")
    E(f"s_sub_u32 s{A_KOFF}, s{A_KOFF}, 8192\n s_cmp_ge_i32 s{A_KOFF}, s{A_KMIN}\n s_cbranch_scc1 {ml}")
    for qt in range(2):
        l_ = V_LS + 2*qt
        E(f"v_mov_b32 v{l_+1}, v{l_}\n s_nop 1\n v_permlane32_swap_b32 v{l_}, v{l_+1}\n s_nop 1\n v_max_f32 v{l_}, v{l_}, v{l_+1}\n v_sub_f32 v{V_NM+qt}, 0, v{l_}")
    errs += hazard.check(E.lines[l4:], "attn slow")
    E(f"s_branch {again}")
    E(out + ":")
    return errs


def attn_kernel(E, name, sc="", osc="", diag=False):
    E(kernel_header(name))
    end = E.label("A_exit")
    E(f"s_cmp_ge_u32 s2, 256\n s_cbranch_scc1 {end}")
    lane_setup(E); ws_srd(E)
    E("s_and_b32 s50, s2, 31\n s_lshr_b32 s51, s2, 5\n s_sub_u32 s51, 7, s51")
    if diag: tmark(E, 0)
    errs = attn_task(E, 50, 51, sc, osc, diag)
    if diag: tmark(E, 3); tdump(E, G_WS, STAMP, 2)
    E(end + ":\n s_endpgm")
    return errs

if __name__ == "__main__":
    E = Em()
    E("; @launch grid=(256,1,1) block=(256,1,1) lds=163840")
    E('.amdgcn_target "amdgcn-amd-amdhsa--gfx950"')
    errs = attn_kernel(E, "attn_kernel")
    E(kernel_desc("attn_kernel"))
    open("attn.s", "w").write(E.text())
    print(len(errs), "hazards")
```

```python
from emit import *
from layout import *

G_WS = 4
G_WSRD = 8
G_ASRD = 12
G_W = 16
G_WOFF = 17
G_WSTR = 18
G_AOFF = 19
G_ASTR = 20
G_OOFF = 21
G_OSTR = 22
G_N = 23
G_SCALE = 24
G_M0 = 25
G_T0, G_T1, G_T2, G_T3 = 26, 27, 28, 29
G_DONE = 30
G_FLAG = 31
V_LANE = 1
V_L16 = 2
V_ST = 7
V_RD = 8
V_DM = 16
V_AF = 24
V_ACC = 64
V_PK = 128
V_T = 144
NF = 8
LEAD = 6


def lane_setup(E):
    E(f"v_lshrrev_b32 v3, 6, v0\n v_and_b32 v{V_LANE}, 63, v0\n v_readfirstlane_b32 s{G_W}, v3\n v_lshlrev_b32 v{V_L16}, 4, v{V_LANE}")


def addr_rowmajor(E):
    t = V_T
    E(f"v_and_b32 v{t}, 31, v{V_LANE}\n v_lshrrev_b32 v{t+1}, 5, v{V_LANE}\n v_and_b32 v{t+2}, 15, v{V_LANE}")
    for j in range(8):
        E(f"v_or_b32 v{t+3}, {2*j}, v{t+1}\n v_xor_b32 v{t+3}, v{t+3}, v{t+2}\n v_lshlrev_b32 v{t+3}, 4, v{t+3}")
        E(f"v_lshl_add_u32 v{V_RD+j}, v{t}, 8, v{t+3}")
    E(f"v_lshrrev_b32 v{t}, 4, v{V_LANE}\n s_lshl_b32 s{G_T0}, s{G_W}, 8")
    for j in range(8):
        E(f"v_add_u32 v{t+1}, {4*j}, v{t}\n v_and_b32 v{t+3}, 15, v{t+1}\n v_xor_b32 v{t+3}, v{t+3}, v{t+2}\n v_lshlrev_b32 v{t+3}, 4, v{t+3}")
        E(f"v_lshl_add_u32 v{t+3}, v{t+1}, 10, v{t+3}\n v_add_u32 v{V_DM+j}, s{G_T0}, v{t+3}")


def addr_frag(E, wave_stride):
    E(f"s_mul_i32 s{G_T0}, s{G_W}, {wave_stride}")
    for j in range(8):
        E(f"v_add_u32 v{V_RD+j}, {1024*j}, v{V_L16}")
        E(f"v_add_u32 v{V_DM+j}, s{G_T0}, v{V_RD+j}")


def load_w(E, perm, hook=None):
    t = V_T
    E(f"v_lshrrev_b32 v{t}, 3, v{V_LANE}\n v_mul_lo_u32 v{t}, v{t}, s{G_WSTR}\n v_and_b32 v{t+1}, 7, v{V_LANE}\n v_lshl_add_u32 v{t}, v{t+1}, 4, v{t}")
    E(f"s_lshl_b32 s{G_T2}, s{G_W}, 15\n s_add_u32 s{G_T2}, s{G_T2}, 32768\n s_lshl_b32 s{G_T3}, s{G_WSTR}, 3")
    n_iss = [0]
    def issue():
        j = n_iss[0]; n_iss[0] += 1
        E(f"s_add_u32 m0, s{G_T2}, {(j % 32) * 1024}")
        E("s_nop 0")
        E.vmem(f"buffer_load_dwordx4 v{t}, {s(G_WSRD,4)}, s{G_WOFF} offen lds", tag=("w", j // 2))
        E(f"s_add_u32 s{G_WOFF}, s{G_WOFF}, s{G_T3}")
    for j in range(32): issue()
    if hook: hook()
    E(f"v_bfe_u32 v{t+4}, v{V_LANE}, 2, 2\n v_lshrrev_b32 v{t+5}, 5, v{V_LANE}")
    E(f"v_lshl_add_u32 v{t+4}, v{t+5}, {2 if perm else 3}, v{t+4}\n v_lshlrev_b32 v{t+4}, 7, v{t+4}")
    E(f"v_bfe_u32 v{t+5}, v{V_LANE}, 4, 1\n v_lshl_add_u32 v{t+4}, v{t+5}, 5, v{t+4}")
    if perm:
        E(f"v_and_b32 v{t+5}, 1, v{V_LANE}\n v_lshl_add_u32 v{t+4}, v{t+5}, 4, v{t+4}")
        E(f"v_bfe_u32 v{t+5}, v{V_LANE}, 1, 1\n v_lshl_add_u32 v{t+4}, v{t+5}, 3, v{t+4}")
    else:
        E(f"v_and_b32 v{t+5}, 3, v{V_LANE}\n v_lshl_add_u32 v{t+4}, v{t+5}, 3, v{t+4}")
    E(f"v_add_u32 v{t+2}, s{G_T2}, v{t+4}\n v_add_u32 v{t+3}, {(8 if perm else 4) * 128}, v{t+2}")
    for k2 in range(16):
        E.need(tags=[("w", 2 * k2 + 1)])
        for ks in (2 * k2, 2 * k2 + 1):
            for ct in range(2):
                for hi in range(2):
                    E.ds(f"ds_read_b64_tr_b16 {a((ks*2 + ct)*4 + 2*hi, 2)}, v{t+2+hi} offset:{(ks % 16)*2048 + ct*64}")
        E.drain(lg=True)
        if n_iss[0] < 64:
            for _ in range(4): issue()


def fetch_list(sc):
    return [(f"s_add_u32 m0, s{G_M0}, {1024*j}", f"buffer_load_dwordx4 v{V_DM+j}, {s(G_ASRD,4)}, s{G_AOFF} offen{sc} lds") for j in range(8)]

def fetch_adv(need):
    return [f"s_cmp_gt_u32 s{G_N}, {need}", f"s_cselect_b32 s{G_T0}, s{G_ASTR}, 0", f"s_add_u32 s{G_AOFF}, s{G_AOFF}, s{G_T0}",
            f"s_add_u32 s{G_M0}, s{G_M0}, 32768", f"s_and_b32 s{G_M0}, s{G_M0}, 0x1ffff"]

def fetch_now(E, sc, tag, idx):
    if idx == 0: E(f"s_lshl_b32 s{G_M0}, s{G_W}, 13")
    for m, d in fetch_list(sc):
        E(m); E("s_nop 0"); E.vmem(d, tag=tag)
    for x in fetch_adv(idx + 1): E(x)

def rd_frag(ks, par):
    return f"ds_read_b128 {v(V_AF + 4*(ks % NF), 4)}, v{V_RD + (ks & 7)} offset:{par*32768 + (ks >> 3)*8192}"

def mfma(vstyle, par, ks, ct):
    d = v(V_ACC + 32*par + 16*ct, 16); w_ = a((ks*2 + ct)*4, 4); x_ = v(V_AF + 4*(ks % NF), 4)
    ops = (x_, w_) if vstyle else (w_, x_)
    return f"v_mfma_f32_32x32x16_bf16 {d}, {ops[0]}, {ops[1]}, {'0' if ks == 0 else d}"

def epilogue_ops(par, sc):
    out = []
    for b in range(4):
        base = V_ACC + 32*par + 8*b
        vl = []
        for i in range(4):
            vl += [f"v_mul_f32 v{base+2*i}, s{G_SCALE}, v{base+2*i}", f"v_mul_f32 v{base+2*i+1}, s{G_SCALE}, v{base+2*i+1}",
                   f"v_cvt_pk_bf16_f32 v{V_PK+4*b+i}, v{base+2*i}, v{base+2*i+1}"]
        out.append((vl, f"buffer_store_dwordx4 {v(V_PK+4*b,4)}, v{V_ST}, {s(G_WS,4)}, s{G_OOFF} offen offset:{1024*b}{sc}"))
    return out


def publish(E, t=V_T):
    E(f"v_mov_b32 v{t}, s{G_DONE}\n v_min_u32 v{t+1}, 1, v0\n v_lshlrev_b32 v{t+1}, 30, v{t+1}")
    E(f"buffer_store_dword v{t}, v{t+1}, {s(G_WS,4)}, s{G_FLAG} offen sc1")


def stream(E, vstyle, asc, osc, flags):
    errs = []
    top, done = E.label("G_top"), [E.label("G_done0"), E.label("G_done1")]
    fin = E.label("G_fin")
    E(f"s_mov_b32 s{G_T1}, s{G_OOFF}\n v_mov_b32 v{V_ST}, 0x40000000")
    if flags:
        E(f"s_mov_b32 s{G_T3}, -3\n v_min_u32 v{V_T+1}, 1, v0\n v_lshlrev_b32 v{V_T+1}, 30, v{V_T+1}")
    for ks in range(LEAD): E.ds(rd_frag(ks, 0))
    lg0 = list(E.lg)
    E(".p2align 6")
    E(top + ":")
    l0 = len(E.lines)
    NV = 13 if flags else 12
    for par in range(2):
        ep = epilogue_ops(1 - par, osc)
        fl = fetch_list(asc)
        slots = {n: [] for n in range(64)}
        for j in range(8):
            slots[4*j].append(fl[j][0]); slots[4*j + 1].append(fl[j][1])
        for k, x in enumerate(fetch_adv(3)): slots[30 + k].append(x)
        n = 2
        for b, (vl, st) in enumerate(ep):
            for k in range(0, 12, 2):
                slots[n] += vl[k:k+2]; n += 1
            slots[35 + 4*b].append(st)
        slots[48] += [f"s_mov_b32 s{G_OOFF}, s{G_T1}", f"v_mov_b32 v{V_ST}, v{V_L16}"]; slots[50].append(f"s_add_u32 s{G_T1}, s{G_T1}, s{G_OSTR}")
        if flags:
            slots[54] += [f"s_add_u32 s{G_T3}, s{G_T3}, 1"]
            slots[55] += [f"s_max_i32 s{G_DONE}, s{G_T3}, 0", f"v_mov_b32 v{V_T}, s{G_DONE}"]
            slots[57] += [f"buffer_store_dword v{V_T}, v{V_T+1}, {s(G_WS,4)}, s{G_FLAG} offen sc1"]
        slots[60].append(f"s_sub_u32 s{G_N}, s{G_N}, 1"); slots[62].append(f"s_cmp_eq_u32 s{G_N}, 0")
        for n in range(64):
            ks, ct = n >> 1, n & 1
            if n == 0: E.need(v(V_AF, 4))
            E(mfma(vstyle, par, ks, ct))
            if ct == 1 and ks < 31:
                E.need(v(V_AF + 4*((ks + 1) % NF), 4))
            kb = 32 - LEAD
            if n == 2 * kb - 1:
                E(f"s_waitcnt vmcnt({NV + 4})\n s_barrier")
            sl = slots[n]
            sc_ = [x for x in sl if x.startswith("s_")]; vm_ = [x for x in sl if x.startswith("buffer")]; va_ = [x for x in sl if x.startswith("v_")]
            for x in sc_: E(x)
            if ct == 0:
                k2 = ks + LEAD
                if k2 < 32: E.ds(rd_frag(k2, par))
                else: E.ds(rd_frag(k2 - 32, 1 - par))
            for x in vm_: E(x)
            for x in va_: E(x)
            if par == 1 and ct == 1:
                k2 = ks + LEAD
                if 24 <= k2 < 32: E(f"v_xor_b32 v{V_RD + (k2 & 7)}, 0x10000, v{V_RD + (k2 & 7)}")
        E(f"s_cbranch_scc1 {done[par]}")
    assert E.lg == lg0
    E(f"s_branch {top}")
    body = E.lines[l0:]
    errs += hazard.check([rd_frag(ks, 0) for ks in range(LEAD)] + body + body, "gemm stream")
    for par in range(2):
        E(done[par] + ":")
        l1 = len(E.lines)
        E("s_nop 7\n s_nop 3")
        for vl, st in epilogue_ops(par, osc):
            for x in vl: E(x)
            E(st)
        if par == 0: E(f"s_branch {fin}")
        errs += hazard.check([mfma(vstyle, par, 31, 1)] + E.lines[l1:], "gemm tail")
    E(fin + ":")
    E.drain(lg=True, vm=True)
    E("s_barrier")
    if flags:
        E(f"s_add_u32 s{G_DONE}, s{G_T3}, 3")
        publish(E)
    return errs


def proj_setup(E, s_kind, s_h, s_t0, s_dt):
    import math, struct
    c = struct.unpack("<I", struct.pack("<f", math.log2(math.e) / math.sqrt(128.0)))[0]
    T0, T1, T2, T3 = G_T0, G_T1, G_T2, G_T3
    E(f"s_lshr_b32 s{T3}, s{G_W}, 1")
    def pick(dst, tab):
        E(f"s_cmp_eq_u32 s{T3}, 0")
        E(f"s_cselect_b32 s{dst}, {tab[0][0]}, {tab[0][1]}\n s_cselect_b32 s{T1}, {tab[1][0]}, {tab[1][1]}\n s_cselect_b32 s{T2}, {tab[2][0]}, {tab[2][1]}")
        E(f"s_cmp_eq_u32 s{s_kind}, 1\n s_cselect_b32 s{dst}, s{T1}, s{dst}\n s_cmp_eq_u32 s{s_kind}, 2\n s_cselect_b32 s{dst}, s{T2}, s{dst}")
    pick(T0, [(ARG["wq"] // 8, ARG["bwq"] // 8), (ARG["wuk"] // 8, ARG["wuv"] // 8), (ARG["bwk"] // 8, ARG["bwv"] // 8)])
    E(f"s_lshl_b32 s{T0}, s{T0}, 3\n s_load_dwordx2 s[{G_WSRD}:{G_WSRD+1}], s[0:1], s{T0}")
    E(f"s_cmp_eq_u32 s{s_kind}, 1\n s_cselect_b32 s{T0}, {ARG['ckv']}, {ARG['x']}\n s_load_dwordx2 s[{G_ASRD}:{G_ASRD+1}], s[0:1], s{T0}")
    pick(G_OOFF, [(QA >> 24, QB >> 24), (KA >> 24, VA >> 24), (KB >> 24, VB >> 24)])
    E(f"s_lshl_b32 s{G_OOFF}, s{G_OOFF}, 5\n s_add_u32 s{G_OOFF}, s{G_OOFF}, s{s_h}\n s_lshl_b32 s{G_OOFF}, s{G_OOFF}, 6\n s_add_u32 s{G_OOFF}, s{G_OOFF}, s{s_t0}")
    E(f"s_and_b32 s{T1}, s{G_W}, 1\n s_lshl_b32 s{G_OOFF}, s{G_OOFF}, 1\n s_add_u32 s{G_OOFF}, s{G_OOFF}, s{T1}\n s_lshl_b32 s{G_OOFF}, s{G_OOFF}, 12")
    E(f"s_lshl_b32 s{G_OSTR}, s{s_dt}, 13\n s_lshl_b32 s{G_AOFF}, s{s_t0}, 15\n s_lshl_b32 s{G_ASTR}, s{s_dt}, 15")
    E(f"s_lshl_b32 s{G_WOFF}, s{s_h}, 1\n s_add_u32 s{G_WOFF}, s{G_WOFF}, s{T1}\n s_lshl_b32 s{G_WOFF}, s{G_WOFF}, 7\n s_mov_b32 s{G_WSTR}, 8192")
    E(f"s_cmp_eq_u32 s{s_kind}, 0\n s_cselect_b32 s{G_SCALE}, {hex(c)}, 1.0")
    E("s_waitcnt lgkmcnt(0)")
    E(f"s_and_b32 s{G_WSRD+1}, s{G_WSRD+1}, 0xffff\n s_mov_b32 s{G_WSRD+2}, {4*MB}\n s_mov_b32 s{G_WSRD+3}, 0x20000")
    E(f"s_and_b32 s{G_ASRD+1}, s{G_ASRD+1}, 0xffff\n s_mov_b32 s{G_ASRD+2}, {2*MB}\n s_mov_b32 s{G_ASRD+3}, 0x20000")


def proj_task(E, s_kind, s_h, s_t0, s_dt, osc, flags, diag=False, hook=None):
    errs = []
    l0 = len(E.lines)
    proj_setup(E, s_kind, s_h, s_t0, s_dt)
    addr_rowmajor(E)
    if diag and diag > 1: tmark(E, diag - 1)
    load_w(E, False, hook=lambda: (fetch_now(E, "", "a", 0), hook and hook()))
    E("s_barrier")
    fetch_now(E, "", "a", 1)
    E.drain(vm=True)
    E("s_barrier")
    errs += hazard.check(E.lines[l0:], "proj prologue")
    if diag: tmark(E, diag)
    lv, le = E.label("P_v"), E.label("P_end")
    E(f"s_cmp_eq_u32 s{s_kind}, 0\n s_cselect_b32 s{G_T0}, 0, s{G_W}\n s_cmp_ge_u32 s{G_T0}, 2\n s_cbranch_scc1 {lv}")
    errs += stream(E, False, "", osc, flags)
    E(f"s_branch {le}")
    E(lv + ":")
    errs += stream(E, True, "", osc, flags)
    E(le + ":")
    return errs


def ws_srd(E):
    E(f"s_load_dwordx2 s[{G_WS}:{G_WS+1}], s[0:1], {ARG['ws']}\n s_waitcnt lgkmcnt(0)")
    E(f"s_and_b32 s{G_WS+1}, s{G_WS+1}, 0xffff\n s_mov_b32 s{G_WS+2}, {WS_BYTES}\n s_mov_b32 s{G_WS+3}, 0x20000")


def proj_kernel(E, name, osc="", split=2, diag=False):
    E(kernel_header(name))
    end = E.label("P_exit")
    E(f"s_cmp_ge_u32 s2, {96*split}\n s_cbranch_scc1 {end}")
    lane_setup(E); ws_srd(E)
    E(f"s_and_b32 s40, s2, 31\n s_lshr_b32 s41, s2, 5\n s_mul_i32 s42, s41, 43\n s_lshr_b32 s42, s42, 7\n s_mul_i32 s43, s42, 3\n s_sub_u32 s41, s41, s43")
    E(f"s_mov_b32 s43, {split}\n s_mov_b32 s{G_N}, {64 // split}")
    if diag: tmark(E, 0)
    errs = proj_task(E, 41, 40, 42, 43, osc, False, diag)
    if diag: tmark(E, 2); tdump(E, G_WS, STAMP, 2)
    E(end + ":\n s_endpgm")
    return errs

if __name__ == "__main__":
    E = Em()
    E("; @launch grid=(192,1,1) block=(256,1,1) lds=163840")
    E('.amdgcn_target "amdgcn-amd-amdhsa--gfx950"')
    errs = proj_kernel(E, "proj_kernel")
    E(kernel_desc("proj_kernel"))
    open("proj.s", "w").write(E.text())
    print(len(errs), "hazards")
```

```python
import math, struct
from emit import *
from layout import *

def fbits(x):
    return struct.unpack("<I", struct.pack("<f", x))[0]

L_MEM, L_KX, L_VX, L_QM, L_KM, L_OM, L_SEL, L_W = 0, 8192, 16384, 24576, 26880, 29184, 31232, 32768
IDX, MRD, L16, WL16, WOP, QW, TR, PS, MP, KD, VD, OW = range(12)
ONES = 12
AQ, AK, AV = 16, 20, 24
VX = 28
def KX(i): return 36 + 4 * i
def Q(i): return 68 + 4 * i
S_WS = 4
S_WQ, S_WK, S_WV, S_WO = 8, 40, 44, 48
S_H, S_W, S_STEP = 12, 13, 14
S_HI = 16
S_SCALE, S_CNT = 18, 19
S_PST0, S_PST1, S_IN0, S_IN1, S_MEM0, S_MEM1, S_MRE = 20, 21, 22, 23, 24, 25, 26
S_KD, S_VD, S_KE = 27, 28, 29
S_MK0, S_MK1, S_MV0, S_MV1 = 31, 32, 33, 34
S_PUB = 35
S_MB = 23
S_T0, S_T1, S_T2, S_T3 = 36, 37, 38, 39
S_DBG = 52
S_LO, S_RNG = 54, 55
S_MODE = 56
S_RDY, S_FLG, S_WSP = 30, 15, 58
S_PH = 57
S_ONE = 2
S_ST = 60
POLL_MAX = 1 << 15

def ws(): return s(S_WS, 4)

P_OPS = [("q", 0), ("k", 0), ("v", 0), ("q", 1), ("k", 1), ("v", 1)]
J_OPS = [("v", 3), ("v", 5), ("k", 6), ("k", 9), ("k", 13), ("v", 6)]
O_OPS = [("o", 2, 2), ("o", 2, 3), ("o", 3, 2), ("o", 3, 3)]
LDS_OPS = P_OPS + J_OPS + O_OPS
ALL_QKV = [(m, i) for i in range(16) for m in "qkv"]
ALL_O = [("o", p, t) for p in range(4) for t in range(4)]
RES_OPS = [o for o in ALL_QKV + ALL_O if o not in LDS_OPS]
assert len(RES_OPS) == 48 and len(LDS_OPS) == 16
RES_REG = {o: 128 + 8 * n for n, o in enumerate(RES_OPS)}
LDS_SLOT = {o: n for n, o in enumerate(LDS_OPS)}


class Team:
    def __init__(self, E, stamps=False, **opt):
        self.opt = dict(swz=0, h1ack=1, h1pre=12, h1mid=12, h1nop=16, w1nop=0, h1mask=1, h2sets=3, h2cut=(0, 4, 8), h2mask=1,
                        u0at=0, b3at=3, dma_at=(19, 25, 29, 33), m0_at=(10, 21, 27, 29), h1w64=1)
        self.opt.update(opt)
        self.E = E
        self.stamps = stamps
        self.merged = None
        self.nst = 0

    def stamp(self, name):
        if self.stamps and (self.stamps is True or name in self.stamps):
            self.E(f"s_memtime s[{S_ST + 2*self.nst}:{S_ST + 2*self.nst + 1}]")
            self.names.append(name)
            self.nst += 1
            assert self.nst <= 14

    def startup(self, fail):
        E = self.E
        E(f"s_load_dwordx4 s[60:63], s[0:1], {ARG['bwq']}")
        E(f"s_load_dwordx4 s[64:67], s[0:1], {ARG['bwv']}")
        E(f"s_load_dwordx4 s[68:71], s[0:1], {ARG['dbg']}")
        E(f"s_load_dwordx2 s[72:73], s[0:1], {ARG['mem0']}")
        E(f"v_lshrrev_b32 v1, 6, v0")
        E(f"v_and_b32 v20, 63, v0")
        E(f"v_readfirstlane_b32 s{S_W}, v1")
        E(f"s_getreg_b32 s{S_T0}, hwreg(HW_REG_XCC_ID, 0, 4)")
        E(f"s_lshl_b32 s{S_T0}, 1, s{S_T0}")
        E("s_waitcnt lgkmcnt(0)")
        E.srd(S_WQ, 60, 4 * MB); E.srd(S_WK, 62, 4 * MB); E.srd(S_WV, 64, 4 * MB); E.srd(S_WO, 66, 4 * MB)
        E.srd(S_WS, 70, WS_BYTES)
        E.srd(76, 72, 8192)
        E(f"s_mov_b64 s[{S_DBG}:{S_DBG+1}], s[68:69]")
        if self.merged:
            E(f"s_mov_b64 s[{S_WSP}:{S_WSP+1}], s[70:71]")
            E(f"s_lshl_b32 s{S_FLG}, s{S_H}, 7\n s_add_u32 s{S_FLG}, s{S_FLG}, {FLAGS + 224*128}")
        skip = E.label("T_reg")
        E(f"s_cmp_lg_u32 s{S_W}, 0\n s_cbranch_scc1 {skip}")
        E(f"s_atomic_or s{S_T0}, s[{S_DBG}:{S_DBG+1}], 4 glc\n s_waitcnt lgkmcnt(0)")
        E(f"s_mov_b32 s{S_T0}, 1\n s_atomic_add s{S_T0}, s[{S_DBG}:{S_DBG+1}], 0 glc\n s_waitcnt lgkmcnt(0)")
        E(skip + ":")
        E("v_lshrrev_b32 v21, 4, v20\n v_and_b32 v22, 15, v20\n v_and_b32 v23, 1, v21\n v_lshrrev_b32 v24, 1, v21")
        E(f"v_lshlrev_b32 v{L16}, 4, v20")
        E(f"s_lshl_b32 s{S_T0}, s{S_W}, 10\n v_add_u32 v{WL16}, s{S_T0}, v{L16}")
        E(f"s_lshl_b32 s{S_T1}, s{S_W}, 15\n s_add_u32 s{S_T1}, s{S_T1}, {L_W}\n v_add_u32 v{WOP}, s{S_T1}, v{L16}")
        E(f"v_lshrrev_b32 v25, 2, v20\n v_lshlrev_b32 v25, 13, v25\n v_and_b32 v1, 3, v20\n v_lshl_add_u32 v25, v1, 4, v25")
        E(f"s_lshl_b32 s{S_T0}, s{S_W}, 6\n s_lshl_b32 s{S_T2}, s{S_H}, 8\n s_add_u32 s{S_T0}, s{S_T0}, s{S_T2}\n v_add_u32 v25, s{S_T0}, v25")
        E(f"v_lshrrev_b32 v26, 3, v20\n v_lshlrev_b32 v26, 10, v26\n v_and_b32 v1, 7, v20\n v_lshl_add_u32 v26, v1, 4, v26")
        E(f"s_lshl_b32 s{S_T0}, s{S_W}, 7\n s_lshl_b32 s{S_T2}, s{S_H}, 17\n s_add_u32 s{S_T0}, s{S_T0}, s{S_T2}\n v_add_u32 v26, s{S_T0}, v26")
        E("v_bfe_u32 v29, v20, 2, 1\n v_bfe_u32 v30, v20, 3, 1\n v_and_b32 v31, 3, v20")
        E("v_lshl_add_u32 v27, v24, 1, v29\n v_lshl_add_u32 v27, v27, 1, v23\n v_lshlrev_b32 v27, 7, v27\n v_lshl_add_u32 v27, v30, 5, v27\n v_lshl_add_u32 v27, v31, 3, v27")
        E(f"v_add_u32 v27, s{S_T1}, v27")
        E("v_lshl_add_u32 v28, v23, 2, v24\n v_lshl_add_u32 v28, v28, 2, v29\n v_lshlrev_b32 v28, 7, v28\n v_lshl_add_u32 v28, v30, 6, v28\n v_lshl_add_u32 v28, v31, 4, v28")
        E(f"v_add_u32 v28, s{S_T1}, v28")
        E(f"s_mov_b32 s{S_T3}, s{S_T1}")
        qkv_res = [o for o in RES_OPS if o[0] != "o"]; o_res = [o for o in RES_OPS if o[0] == "o"]
        order = qkv_res + o_res + LDS_OPS
        units = [order[i:i + 2] for i in range(0, 64, 2)]
        srd = dict(q=S_WQ, k=S_WK, v=S_WV)
        def issue(n):
            u = units[n]; base = (n % 8) * 4096
            if u[0][0] == "o":
                (_, p, t), (_, p2, t2) = u
                assert p == p2 and t2 == t + 1 and t % 2 == 0
                E(f"s_xor_b32 s{S_T0}, s{S_W}, {p}\n s_lshl_b32 s{S_T0}, s{S_T0}, 15")
                for j in range(4):
                    E(f"s_add_u32 m0, s{S_T3}, {base + j*1024}")
                    E(f"s_add_u32 s{S_T1}, s{S_T0}, {j*8192 + (t//2)*512}")
                    E.vmem(f"buffer_load_dwordx4 v26, {s(S_WO,4)}, s{S_T1} offen lds", tag=("u", n))
            else:
                for k, (m, i) in enumerate(u):
                    for j in range(2):
                        E(f"s_add_u32 m0, s{S_T3}, {base + k*2048 + j*1024}")
                        E(f"s_mov_b32 s{S_T1}, {(32*i + 16*j) * 8192}")
                        E.vmem(f"buffer_load_dwordx4 v25, {s(srd[m],4)}, s{S_T1} offen lds", tag=("u", n))
        def consume(n):
            u = units[n]; base = (n % 8) * 4096
            E.need(tags=[("u", n)])
            for k, o in enumerate(u):
                dst = RES_REG[o] if o in RES_REG else 64 + 8 * k
                for hi in range(2):
                    for lo in range(2):
                        if o[0] == "o":
                            E.ds(f"ds_read_b64_tr_b16 {r(dst + 4*hi + 2*lo, 2)}, v28 offset:{base + (8*hi + 2*lo)*128 + k*8}")
                        else:
                            E.ds(f"ds_read_b64_tr_b16 {r(dst + 4*hi + 2*lo, 2)}, v27 offset:{base + k*2048 + hi*1024 + lo*64}")
            E.drain(lg=True)
            if u[0] not in RES_REG:
                for k, o in enumerate(u):
                    assert LDS_SLOT[o] * 2048 == base + k * 2048
                    for hf in range(2):
                        E.ds(f"ds_write_b128 v{WOP}, {v(64 + 8*k + 4*hf, 4)} offset:{base + k*2048 + hf*1024}")
                E.drain(lg=True)
        for n in range(8):
            issue(n)
        E(f"v_mov_b32 v{IDX}, 0x4444\n v_mov_b32 v1, 0xeeee\n v_cmp_lt_u32 vcc, 7, v22\n s_nop 1\n v_cndmask_b32 v32, v{IDX}, v1, vcc")
        E(f"v_mov_b32 v{IDX}, v32")
        E(f"v_and_b32 v32, 7, v20\n v_lshlrev_b32 v32, 4, v32\n v_lshl_add_u32 v{MRD}, v21, 7, v32")
        E(f"s_lshl_b32 s{S_T0}, s{S_W}, 9\n v_add_u32 v{OW}, s{S_T0}, v{MRD}")
        E(f"v_lshl_add_u32 v33, v24, 4, v22\n s_lshl_b32 s{S_T0}, s{S_W}, 5\n v_add_u32 v33, s{S_T0}, v33\n v_lshlrev_b32 v33, 3, v33")
        E(f"v_mul_u32_u24 v34, {MHS}, v23\n v_add_u32 v{QW}, v33, v34")
        E(f"v_bfe_u32 v33, v20, 2, 2\n v_lshl_add_u32 v33, v23, 2, v33\n v_lshl_add_u32 v33, v24, 4, v33\n v_lshlrev_b32 v33, 3, v33")
        E(f"v_and_b32 v34, 1, v20\n v_mul_u32_u24 v34, {MHS}, v34\n v_add_u32 v{TR}, v33, v34")
        E(f"s_lshl_b32 s{S_T0}, s{S_W}, 3\n v_lshrrev_b32 v33, 3, v20\n v_add_u32 v33, s{S_T0}, v33")
        E(f"v_mul_u32_u24 v34, {self.opt['swz']}, v33\n v_add_u32 v34, s{S_H}, v34\n v_and_b32 v34, 31, v34")
        E(f"v_lshl_add_u32 v33, v33, 13, v32\n v_lshl_add_u32 v{PS}, v34, 7, v33")
        E(f"s_lshr_b32 s{S_T0}, s{S_H}, 2\n s_lshl_b32 s{S_T0}, s{S_T0}, 9\n s_and_b32 s{S_T1}, s{S_H}, 1\n s_lshl_b32 s{S_T1}, s{S_T1}, 8\n s_add_u32 s{S_T0}, s{S_T0}, s{S_T1}")
        E(f"s_and_b32 s{S_T1}, s{S_H}, 2\n s_lshl_b32 s{S_T1}, s{S_T1}, 5\n s_add_u32 s{S_T0}, s{S_T0}, s{S_T1}")
        E(f"v_lshlrev_b32 v33, 4, v21\n v_lshl_add_u32 v33, v31, 2, v33\n v_lshl_add_u32 v33, v29, 7, v33\n v_lshl_add_u32 v33, v30, 30, v33\n v_add_u32 v{MP}, s{S_T0}, v33")
        E(f"s_lshr_b32 s{S_T0}, s{S_H}, 2\n s_lshl_b32 s{S_T0}, s{S_T0}, 6\n s_and_b32 s{S_T1}, s{S_H}, 1\n s_lshl_b32 s{S_T1}, s{S_T1}, 5\n s_add_u32 s{S_T0}, s{S_T0}, s{S_T1}")
        E(f"s_and_b32 s{S_T1}, s{S_H}, 2\n s_lshl_b32 s{S_T1}, s{S_T1}, 11\n s_add_u32 s{S_T0}, s{S_T0}, s{S_T1}")
        E(f"v_lshlrev_b32 v35, 10, v21\n v_lshl_add_u32 v35, v31, 1, v35\n v_lshl_add_u32 v35, v29, 4, v35\n v_add_u32 v35, s{S_T0}, v35")
        for k in range(4):
            E.vmem(f"buffer_load_ushort v{44+k}, v35, s[76:79], 0 offen offset:{(k >> 1)*512 + (k & 1)*8}")
        E("v_lshlrev_b32 v33, 4, v29\n v_mov_b32 v34, 0x3f80\n v_lshlrev_b32 v33, v33, v34\n v_and_b32 v34, 1, v20\n v_lshl_add_u32 v34, v34, 1, v30")
        for a_ in range(4):
            E(f"v_cmp_eq_u32 vcc, {a_}, v34\n s_nop 1\n v_cndmask_b32 v{48+a_}, 0, v33, vcc")
        E.ds(f"ds_write_b128 v{L16}, v[48:51] offset:{L_SEL}")
        E(f"v_lshlrev_b32 v33, 9, v21\n s_lshl_b32 s{S_T0}, s{S_W}, 11\n v_add_u32 v33, s{S_T0}, v33")
        E(f"v_lshl_add_u32 v{VD}, v22, 4, v33")
        E(f"v_lshl_add_u32 v33, v30, 8, v33\n v_add_u32 v{KD}, v33, v32")
        E(f"s_mov_b32 s{S_ONE}, 0x3f803f80\n s_mov_b32 s{S_ONE+1}, 0x3f803f80")
        E(f"s_mov_b32 s{S_HI}, 0\n s_mov_b32 s{S_HI+1}, -1")
        E(f"s_mov_b32 s{S_SCALE}, {hex(fbits(math.log2(math.e) / math.sqrt(128.0)))}")
        lo, hi = fbits(2.0 ** -32), fbits(2.0 ** 48)
        E(f"s_mov_b32 s{S_LO}, {hex(lo)}\n s_mov_b32 s{S_RNG}, {hex(hi - lo)}")
        E(f"s_lshl_b32 s{S_T0}, s{S_W}, 10")
        E(f"s_add_u32 s{S_MK0}, s{S_T0}, {L_KX}\n s_add_u32 s{S_MK1}, s{S_T0}, {L_KX + 4096 - 128}")
        E(f"s_add_u32 s{S_MV0}, s{S_T0}, {L_VX}\n s_add_u32 s{S_MV1}, s{S_T0}, {L_VX + 4096 - 256}")
        E(f"s_lshl_b32 s{S_T0}, s{S_H}, 19\n s_add_u32 s{S_KD}, s{S_T0}, {KB}\n s_add_u32 s{S_VD}, s{S_T0}, {VB}")
        E(f"s_mul_i32 s{S_T0}, s{S_H}, {KMB}\n s_add_u32 s{S_KE}, s{S_T0}, {KM}")
        E(f"s_lshl_b32 s{S_T0}, s{S_H}, 13\n s_add_u32 s{S_IN0}, s{S_T0}, {INBOX}\n s_add_u32 s{S_IN1}, s{S_T0}, {INBOX + 4096}")
        E(f"s_mov_b32 s{S_PST0}, {INBOX}\n s_mov_b32 s{S_PST1}, {INBOX + 4096}")
        for n in range(32):
            consume(n)
            if n + 8 < 32:
                issue(n + 8)
            if n == 12:
                self.spin_counter(0, 32, fail)
                E(f"s_mov_b32 s{S_T0}, 0\n s_atomic_or s{S_T0}, s[{S_DBG}:{S_DBG+1}], 4 glc\n s_waitcnt lgkmcnt(0)")
                E(f"s_bcnt1_i32_b32 s{S_T0}, s{S_T0}\n s_cmp_eq_u32 s{S_T0}, 1\n s_cselect_b32 s{S_MODE}, 0, 1")
                for i in range(4):
                    E(f"v_mov_b32 v{40+i}, -1")
                E.need("v[44:47]")
                E("v_lshl_or_b32 v44, v45, 16, v44\n v_lshl_or_b32 v46, v47, 16, v46\n v_min_u32 v44, -2, v44\n v_min_u32 v46, -2, v46")
                E(f"s_cmp_eq_u32 s{S_W}, 0\n s_cselect_b32 s{S_T0}, 0, -1\n v_or_b32 v44, s{S_T0}, v44\n v_or_b32 v46, s{S_T0}, v46")
                E(f"s_lshl_b32 s{S_T0}, s{S_W}, 13\n s_add_u32 s{S_T0}, s{S_T0}, {MEMS}\n s_add_u32 s{S_T1}, s{S_T0}, 4096")
                lg, ld = E.label("T_initg"), E.label("T_initd")
                E(f"s_cmp_lg_u32 s{S_MODE}, 0\n s_cbranch_scc1 {lg}")
                for mode in (0, 1):
                    sc = " sc1" if mode else ""
                    if mode:
                        E(lg + ":")
                    for ins in (f"buffer_store_dwordx4 v[40:43], v{WL16}, {ws()}, s{S_IN0} offen{sc}",
                                f"buffer_store_dwordx4 v[40:43], v{WL16}, {ws()}, s{S_IN1} offen{sc}",
                                f"buffer_store_dword v44, v{MP}, {ws()}, s{S_T0} offen{sc}",
                                f"buffer_store_dword v46, v{MP}, {ws()}, s{S_T1} offen{sc}"):
                        E.vmem(ins, tag="init") if mode else E(ins)
                    if not mode:
                        E(f"s_branch {ld}")
                E(ld + ":")
            if n == 21:
                E.need(tags=["init"])
                E("s_barrier")
                skip = E.label("T_arm")
                E(f"s_cmp_lg_u32 s{S_W}, 0\n s_cbranch_scc1 {skip}")
                E(f"s_mov_b32 s{S_T0}, 1\n s_atomic_add s{S_T0}, s[{S_DBG}:{S_DBG+1}], 8 glc\n s_waitcnt lgkmcnt(0)")
                E(skip + ":")
            if n == 23:
                if self.merged:
                    self.spin_counter(self.merged["init_off"], 256, fail)
                    E(f"s_mov_b32 s{S_STEP}, -1")
                    self.wait_kv(fail)
                for x in self.dma_list():
                    E(x[0]); E("s_nop 0"); E.vmem(x[1], tag="dma")
                self.dma_adv()
            if n == 29:
                self.spin_counter(8, 32, fail)
        E.drain(vm=True, lg=True)
        E("s_barrier")
        self.prefetch_p(); self.prefetch_vx(); self.prefetch_kx()
        E(f"s_and_b32 s{S_T0}, s{S_W}, 1\n s_lshl_b32 s{S_T0}, s{S_T0}, 12\n s_add_u32 s{S_IN0}, s{S_IN0}, s{S_T0}\n s_add_u32 s{S_MB}, s{S_T0}, {MEMS}")
        E(f"s_mov_b32 s{S_STEP}, -1")
        self.step_scalars()
        E.drain(lg=True)

    def spin_counter(self, off, target, fail):
        E = self.E
        lp = E.label("T_spin")
        E(f"s_mov_b32 s{S_CNT}, 0")
        E(lp + ":")
        E(f"s_add_u32 s{S_CNT}, s{S_CNT}, 1\n s_cmp_gt_u32 s{S_CNT}, {POLL_MAX}\n s_cbranch_scc1 {fail}")
        E(f"s_mov_b32 s{S_T0}, 0\n s_atomic_or s{S_T0}, s[{S_DBG}:{S_DBG+1}], {off} glc\n s_waitcnt lgkmcnt(0)")
        E(f"s_cmp_lt_u32 s{S_T0}, {target}\n s_cbranch_scc1 {lp}")
        E.lg = []

    def wait_kv(self, fail):
        E = self.E; M = self.merged
        lp, ok = E.label("T_kv"), E.label("T_kvok")
        E(f"s_mov_b32 s{S_CNT}, 0")
        E(lp + ":")
        E(f"s_add_u32 s{S_CNT}, s{S_CNT}, 1\n s_cmp_gt_u32 s{S_CNT}, {POLL_MAX}\n s_cbranch_scc1 {fail}")
        E(f"s_mul_i32 s{S_T2}, s{S_H}, {7*128}\n s_add_u32 s{S_T3}, s{S_T2}, {FLAGS + M['r2']*128}\n s_add_u32 s{S_T2}, s{S_T2}, {FLAGS + M['r1']*128}")
        E(f"s_mov_b32 s{S_RDY}, 0\n s_mov_b32 s{S_T1}, 0")
        E(f"s_atomic_or s{S_RDY}, s[{S_WSP}:{S_WSP+1}], s{S_T2} glc\n s_atomic_or s{S_T1}, s[{S_WSP}:{S_WSP+1}], s{S_T3} glc\n s_waitcnt lgkmcnt(0)")
        E(f"s_add_u32 s{S_T1}, s{S_T1}, {M['n1']}\n s_cmp_ge_u32 s{S_RDY}, {M['n1']}\n s_cselect_b32 s{S_RDY}, s{S_T1}, s{S_RDY}")
        E(f"s_cmp_ge_u32 s{S_RDY}, 64\n s_cselect_b32 s{S_RDY}, 100, s{S_RDY}")
        E(f"s_sub_u32 s{S_RDY}, s{S_RDY}, 1\n s_cmp_ge_i32 s{S_STEP}, s{S_RDY}\n s_cbranch_scc1 {lp}")

    def dma_list(self):
        return [(f"s_mov_b32 m0, s{S_MK0}", f"buffer_load_dwordx4 v{KD}, {ws()}, s{S_KD} offen sc1 lds"),
                (f"s_mov_b32 m0, s{S_MK1}", f"buffer_load_dwordx4 v{KD}, {ws()}, s{S_KD} offen offset:128 sc1 lds"),
                (f"s_mov_b32 m0, s{S_MV0}", f"buffer_load_dwordx4 v{VD}, {ws()}, s{S_VD} offen sc1 lds"),
                (f"s_mov_b32 m0, s{S_MV1}", f"buffer_load_dwordx4 v{VD}, {ws()}, s{S_VD} offen offset:256 sc1 lds")]

    def dma_adv(self):
        self.E(f"s_add_u32 s{S_KD}, s{S_KD}, 8192\n s_add_u32 s{S_VD}, s{S_VD}, 8192")

    def rd_op(self, o, half, reg):
        return f"ds_read_b128 {v(reg + 4*half, 4)}, v{WOP} offset:{LDS_SLOT[o]*2048 + half*1024}"

    def prefetch_p(self):
        for n, o in enumerate(P_OPS):
            for hf in range(2):
                self.E.ds(self.rd_op(o, hf, Q(2 * n)))

    def prefetch_vx(self):
        for j in range(2):
            self.E.ds(f"ds_read_b128 {v(VX + 4*j, 4)}, v{WL16} offset:{L_VX + 4096*j}")

    def prefetch_kx(self):
        for f in range(8):
            self.E.ds(f"ds_read_b128 {v(KX(f), 4)}, v{L16} offset:{L_KX + 1024*f}")

    def zero_acc(self):
        for i in range(6):
            self.E(f"v_mov_b64 {v(AQ + 2*i, 2)}, 0")

    def scalar_list(self):
        return [f"s_and_b32 s{S_PH}, s{S_STEP}, 1", f"s_and_b32 s{S_T0}, s{S_STEP}, 3", f"s_lshl_b32 s{S_T0}, s{S_T0}, 13",
                f"s_add_u32 s{S_MRE}, s{S_T0}, s{S_MB}", f"s_add_u32 s{S_T0}, s{S_T0}, 8192", f"s_and_b32 s{S_T0}, s{S_T0}, 0x7fff",
                f"s_add_u32 s{S_MEM0}, s{S_T0}, {MEMS}", f"s_add_u32 s{S_MEM1}, s{S_T0}, {MEMS + 4096}",
                f"s_add_u32 s{S_PUB}, s{S_T0}, s{S_MB}"]

    def step_scalars(self):
        for x in self.scalar_list(): self.E(x)

    def run(self, prog, first_need=True):
        E = self.E
        if first_need:
            E.need(*prog[0][1])
        for n, (ins, _, fill) in enumerate(prog):
            E(ins)
            toks = list(prog[n + 1][1]) if n + 1 < len(prog) else []
            tags = []
            for f in fill:
                if isinstance(f, tuple) and f[0] == "need":
                    toks += list(f[1]); tags += list(f[2])
            E.need(*toks, tags=tags)
            for f in fill:
                self.put(f)

    def put(self, f):
        E = self.E
        if callable(f):
            f()
        elif isinstance(f, tuple):
            if f[0] == "need":
                return
            (E.ds if f[0].startswith("ds_") else E.vmem)(f[0], tag=f[1])
        elif f.startswith("ds_"):
            E.ds(f)
        elif f.startswith("buffer_"):
            E.vmem(f)
        else:
            E(f)

    def loop(self, mode, done, fail, xsc=""):
        E = self.E
        O = self.opt
        sc = " sc1" if mode else ""
        self.nst = 0; self.names = []
        cvt = lambda d, a0: f"v_cvt_pk_bf16_f32 v{d}, v{a0}, v{a0+1}"
        zero = lambda d: f"v_mov_b64 {v(d,2)}, 0"
        st = lambda name: (lambda: self.stamp(name))
        def smf(d, a_, b_, first): return f"v_mfma_f32_16x16x32_bf16 {v(d,4)}, {v(a_,4)}, {v(b_,4)}, {'0' if first else v(d,4)}"
        cntchk = f"s_add_u32 s{S_CNT}, s{S_CNT}, 1\n s_cmp_gt_u32 s{S_CNT}, {POLL_MAX}\n s_cbranch_scc1 {fail}"
        NS = O["h2sets"]
        H0, CK, H1 = Q(14), Q(13) + 2, ONES
        ld0 = f"buffer_load_dwordx4 {v(H0,4)}, v{WL16}, {ws()}, s{S_MEM0} offen sc1"
        ld1 = f"buffer_load_dwordx4 {v(H1,4)}, v{WL16}, {ws()}, s{S_MEM1} offen sc1"
        chk = lambda x, t: [f"v_max3_u32 v{t}, v{x}, v{x+1}, v{x+2}", f"v_max_u32 v{t}, v{t}, v{x+3}", f"v_cmp_eq_u32 vcc, -1, v{t}"]
        top, retry = E.label("T_loop"), E.label("T_retry")
        E(f"s_mov_b32 s{S_CNT}, 0")
        self.zero_acc()
        for k in range(NS): E(ld0)
        E(f"s_branch {top}")
        E(".p2align 6")
        E(retry + ":")
        if O["h2mask"]: E("s_mov_b64 exec, vcc")
        E(ld0)
        if O["h2mask"]: E("s_mov_b64 exec, -1")
        E(cntchk)
        E(top + ":")
        E(f"s_waitcnt vmcnt({NS - 1})")
        body0 = len(E.lines)
        for x in chk(H0, CK): E(x)
        E(f"s_cbranch_vccnz {retry}")
        E(f"ds_write_b128 v{WL16}, {v(H0,4)} offset:{L_MEM}")
        E.vm = [{"poll"}]
        E.vmem(ld1)
        if self.stamps: E(f"s_mov_b32 s95, s{S_CNT}")
        self.stamp("hop2")
        E(f"s_add_u32 s{S_STEP}, s{S_STEP}, 1")
        E.drain(lg=True)
        E("s_barrier")
        FR = {0: 12, 1: 13, 2: 14, 3: 4, 4: 5, 5: 12, 6: 6, 7: 7, 8: 8, 9: 9, 10: 10, 11: 11, 12: 13, 13: 14, 14: 4, 15: 5}
        def F(i): return f"ds_read_b128 {v(Q(FR[i]),4)}, v{MRD} offset:{L_MEM + 512*i}"
        for i in range(2):
            E.ds(F(i))
        self.stamp("B1")
        opreg = dict(RES_REG)
        for n, o in enumerate(P_OPS): opreg[o] = Q(2 * n)
        for n, o in enumerate(J_OPS): opreg[o] = Q(2 * (n & 1))
        acc = dict(q=AQ, k=AK, v=AV)
        def sm(m, i):
            return (f"v_smfmac_f32_16x16x64_bf16 {v(acc[m],4)}, {v(Q(FR[i]),4)}, {r(opreg[(m,i)],8)}, v{IDX}",
                    (v(Q(FR[i]), 4), r(opreg[(m, i)], 8)))
        seq = [(m, i) for i in range(6) for m in "qkv"] + [(m, i) for m in "qkv" for i in range(6, 16)]
        J = lambda n, hf: self.rd_op(J_OPS[n], hf, Q(2 * (n & 1)))
        PQ, PK = Q(12), Q(12) + 2
        PV_ = PQ
        mul = lambda i: f"v_mul_f32 v{AQ+i}, s{S_SCALE}, v{AQ+i}"
        c1 = chk(H1, Q(6))
        dma = self.dma_list()
        sal = self.scalar_list()
        late, lateok = E.label("T_late"), E.label("T_lateok")
        trq = [f"ds_read_b64_tr_b16 {v(Q(kk) + 2*hi, 2)}, v{TR} offset:{L_QM + (32*kk + 8*hi)*8}" for kk in range(4) for hi in range(2)]
        trk = [f"ds_read_b64_tr_b16 {v(Q(6+kk) + 2*hi, 2)}, v{TR} offset:{L_KM + (32*kk + 8*hi)*8}" for kk in range(4) for hi in range(2)]
        tr = trq + trk
        WA = [Q(10), Q(11), KX(0), KX(1)]
        fill = {n: [] for n in range(48)}
        for n, x in {0: J(0,0), 1: F(2), 2: F(3), 3: J(0,1), 4: F(4), 5: F(5), 9: J(1,0), 10: J(1,1), 11: F(6), 12: F(7),
                     22: J(2,0), 23: J(2,1), 24: J(3,0), 26: J(3,1), 28: J(4,0), 30: J(4,1), 31: J(5,0), 32: J(5,1)}.items():
            fill[n].append(x)
        for i in range(8, 16): fill[6 + i].append(F(i))
        fill[1] = [("need", [], ["poll"])] + fill[1]
        fill[3] = [("need", [v(H1, 4)], [])] + fill[3] + [c1[0]]
        fill[4].append(c1[1]); fill[5].append(c1[2])
        if O["h1w64"]:
            fill[6] = [f"s_cbranch_vccnz {late}", lateok + ":", f"ds_write_b64 v{WL16}, {v(H1,2)} offset:{L_MEM + 4096}"]
            fill[8] = [(f"ds_write_b64 v{WL16}, {v(H1+2,2)} offset:{L_MEM + 4096 + 8}", "h1w")]
        else:
            fill[6] = [f"s_cbranch_vccnz {late}", lateok + ":", (f"ds_write_b128 v{WL16}, {v(H1,4)} offset:{L_MEM + 4096}", "h1w")]
        fill[13] = [("need", [], ["h1w"]), "s_barrier"]
        fill[14].append(f"v_mov_b64 {v(ONES,2)}, s[{S_ONE}:{S_ONE+1}]"); fill[15].append(f"v_mov_b64 {v(ONES+2,2)}, s[{S_ONE}:{S_ONE+1}]")
        for k, n in enumerate(O["dma_at"]):
            fill[O["m0_at"][k]].append(dma[k][0]); fill[n].append((dma[k][1], "dma"))
        fill[7] += sal[0:3]; fill[8] += sal[3:4]; fill[9] = sal[4:5] + fill[9] + sal[5:6]; fill[16] += sal[6:7]; fill[17] += sal[7:8]; fill[18] += sal[8:9]
        if self.merged:
            kvw, kvb = E.label("T_kvw"), E.label("T_kvb")
            fill[11].append(f"s_cmp_ge_i32 s{S_STEP}, s{S_RDY}")
            fill[12] = [f"s_cbranch_scc1 {kvw}", kvb + ":"] + fill[12]
            fill[20].append(f"v_mov_b32 v{PK}, s{S_STEP}")
            fill[22].append(f"v_min_u32 v{PK+1}, 1, v{WL16}"); fill[23].append(f"v_lshlrev_b32 v{PK+1}, 30, v{PK+1}")
            fill[27].insert(0, f"buffer_store_dword v{PK}, v{PK+1}, {ws()}, s{S_FLG} offen sc1")
        for k in range(4): fill[30 + k].append(mul(k))
        fill[34].append(cvt(PQ, AQ)); fill[35].append(cvt(PQ + 1, AQ + 2))
        fill[36] += [(f"ds_write_b64 v{QW}, {v(PQ,2)} offset:{L_QM}", "qw")]
        adv = 0 if O.get("noadv") else 8192
        fill[37] += [f"s_add_u32 s{S_KD}, s{S_KD}, {adv}", f"s_add_u32 s{S_VD}, s{S_VD}, {adv}", st("qk")]
        if self.stamps: fill[37] += [self.dump_stamps, st("dump")]
        fill[39] += ["s_nop 1", cvt(PK, AK), cvt(PK + 1, AK + 2)]
        fill[40] += [(f"ds_write_b64 v{QW}, {v(PK,2)} offset:{L_KM}", "kw"), f"buffer_store_dwordx2 {v(PK,2)}, v{QW}, {ws()}, s{S_KE} offen{xsc}"]
        zl = [zero(WA[0]), zero(WA[0] + 2), zero(WA[1]), zero(WA[1] + 2)]
        fill[41] += [("need", [], ["qw"]), "s_barrier", tr[0]]
        fill[42] += ["s_nop 0"] + tr[1:3]; fill[43] += ["s_nop 0"] + tr[3:5]; fill[44] += ["s_nop 0"] + tr[5:7]
        fill[45] += [("need", [], ["kw"]), tr[7], "s_barrier"]
        fill[46] += ["s_nop 0"] + tr[8:10]
        fill[47] += tr[10:12] + [st("B2")]
        t0 = 12
        for n in O.get("pst", ()): fill[n].insert(0, st(f"n{n}"))
        prog = [sm(m, i) + (fill[n],) for n, (m, i) in enumerate(seq)]
        E.need(*prog[0][1])
        SX0, SX1, SM_ = AQ, AK, Q(13)
        TMP, PX, PM, PMM, LA, O0, O1 = Q(14), KX(2), Q(4), KX(3), Q(5), AV, Q(6)
        sq = [(SX0, KX(kk), Q(kk), kk == 0) for kk in range(4)] + [(SM_, Q(6+kk), Q(kk), kk == 0) for kk in range(4)] \
            + [(SX1, KX(4+kk), Q(kk), kk == 0) for kk in range(4)]
        ex = lambda i, src: f"v_exp_f32 v{TMP+i}, v{src+i}"
        cnds = [f"v_cndmask_b32 v{PMM}, v{PM}, 0, s[{S_HI}:{S_HI+1}]", f"v_cndmask_b32 v{PMM+1}, v{PM+1}, 0, s[{S_HI}:{S_HI+1}]",
                f"v_cndmask_b32 v{PMM+2}, 0, v{PM}, s[{S_HI}:{S_HI+1}]", f"v_cndmask_b32 v{PMM+3}, 0, v{PM+1}, s[{S_HI}:{S_HI+1}]"]
        sf = {n: [] for n in range(12)}
        sf[0] += tr[12:14]; sf[1] += tr[14:16]
        sf[2] += [cvt(PV_, AV), cvt(PV_ + 1, AV + 2)]
        sf[3] += [f"buffer_store_dwordx2 {v(PV_,2)}, v{QW}, {ws()}, s{S_KE} offen offset:{2*MHS}{xsc}", zl[0]]
        sf[4] += zl[1:3]
        sf[5] += [zl[3], zero(WA[2])]
        sf[6] += [ex(0, SX0)]
        sf[7] += [f"s_add_u32 s{S_KE}, s{S_KE}, {0 if O.get('noexp') else 32*KMB}", ex(1, SX0)]
        sf[8] += [f"s_cmp_eq_u32 s{S_STEP}, 63", ex(2, SX0)]
        sf[9] += [f"s_cbranch_scc1 {done}", ex(3, SX0)]
        sf[10] += [cvt(PX, TMP), cvt(PX + 1, TMP + 2)]
        sf[11] += [ex(0, SM_), ex(1, SM_), ex(2, SM_), ex(3, SM_), cvt(PM, TMP), cvt(PM + 1, TMP + 2)] + cnds + [st("S"), ex(0, SX1)]
        prog += [(smf(*x), (v(x[1], 4), v(x[2], 4)), sf[n]) for n, x in enumerate(sq)]
        m16 = lambda d, a_, b_: f"v_mfma_f32_16x16x16_bf16 {v(d,4)}, {v(a_,2)}, {v(b_,2)}, 0"
        pvm = [m16(LA, ONES, PMM), m16(O0, PV_, PMM), m16(O1, PV_, PMM + 2)]
        pvx = [smf(LA, ONES, PX, False), smf(O0, VX, PX, False), smf(O1, VX + 4, PX, False)]
        XA = [PM + 2, PM + 3, Q(1)]
        slow, back = E.label("T_slow"), E.label("T_back")
        prog += [(pvm[0], (), [ex(1, SX1)]), (pvm[1], (), [ex(2, SX1)]),
                 (pvm[2], (), [ex(3, SX1), cvt(PX + 2, TMP), cvt(PX + 3, TMP + 2), zero(WA[2] + 2), zero(WA[3])]),
                 (pvx[0], (), [f"v_xor_b32 v{XA[0]}, 512, v{OW}", f"v_xor_b32 v{XA[1]}, 1024, v{OW}"]),
                 (pvx[1], (), [f"v_xor_b32 v{XA[2]}, 1536, v{OW}", zero(WA[3] + 2)]),
                 (pvx[2], (), ["s_nop 1", f"v_rcp_f32 v{LA+1}, v{LA}", f"v_subrev_u32 v{TMP}, s{S_LO}, v{LA}",
                               f"v_cmp_le_u32 vcc, s{S_RNG}, v{TMP}", f"s_cbranch_vccnz {slow}", back + ":"])]
        self.run(prog, first_need=False)
        OWN = Q(7)
        for i in range(4): E(f"v_mul_f32 v{O0+i}, v{LA+1}, v{O0+i}")
        E(cvt(OWN, O0)); E(cvt(OWN+1, O0+2))
        for i in range(2): E(f"v_pk_mul_f32 {v(O1+2*i,2)}, {v(O1+2*i,2)}, {v(LA,2)} op_sel:[0,1] op_sel_hi:[1,1]")
        E(cvt(OWN+2, O1)); E(cvt(OWN+3, O1+2))
        E.ds(f"ds_write_b128 v{OW}, {v(OWN,4)} offset:{L_OM}", tag="ow")
        self.stamp("PV")
        E("s_nop 0")
        OF = [OWN, Q(8), Q(9), Q(0)]
        SEL, RD, TG = Q(12), Q(13), KX(3)
        U0, U1 = AQ, AK
        OREG = [KX(4), KX(6), Q(2), VX]
        for n, o in enumerate(O_OPS): opreg[o] = OREG[n]
        rdo = [self.rd_op(o, hf, OREG[n]) for n, o in enumerate(O_OPS) for hf in range(2)]
        so = lambda p, t: (f"v_smfmac_f32_16x16x64_bf16 {v(WA[t],4)}, {v(OF[p],4)}, {r(opreg[('o',p,t)],8)}, v{IDX}",
                           (v(OF[p], 4), r(opreg[('o', p, t)], 8)))
        tag = lambda x: f"v_bfi_b32 v{x}, 1, s{S_PH}, v{x}"
        oq = [(0, t) for t in range(4)] + [(p, t) for p in (1, 2, 3) for t in (0, 1)] + [(p, t) for p in (1, 2, 3) for t in (2, 3)]
        of = {n: [] for n in range(16)}
        nb3 = O["b3at"]
        of[nb3] = [("need", [], ["ow"]), "s_barrier"] + [f"ds_read_b128 {v(OF[p],4)}, v{XA[p-1]} offset:{L_OM}" for p in (1, 2, 3)] + [st("B3")]
        of[3] += [lambda: E.need(v(OF[1], 4))]
        of[0] += rdo[0:1]; of[1] += rdo[1:2]
        for k in range(6): of[4 + k] += rdo[2 + k:3 + k]
        of[10] += [f"ds_read_b128 {v(SEL,4)}, v{L16} offset:{L_SEL}"]
        u0v = [cvt(U0, WA[0]), cvt(U0+1, WA[0]+2), tag(U0), cvt(U0+2, WA[1]), cvt(U0+3, WA[1]+2)]
        u0s = [f"buffer_store_dwordx4 {v(U0,4)}, v{PS}, {ws()}, s{S_PST0} offen{sc}", st("u0")]
        if O["u0at"] == 0:
            of[11] += u0v; of[12] += u0s
        else:
            of[10] += ["s_nop 1"] + u0v[:1]; of[11] += u0v[1:2]; of[12] += u0v[2:4]; of[13] += u0v[4:]; of[14] += u0s
        of[15] += ["s_nop 4", cvt(U1, WA[2]), cvt(U1+1, WA[2]+2), tag(U1), cvt(U1+2, WA[3]), cvt(U1+3, WA[3]+2),
                   f"buffer_store_dwordx4 {v(U1,4)}, v{PS}, {ws()}, s{S_PST1} offen{sc}", st("Wo")]
        self.run([so(p, t) + (of[n],) for n, (p, t) in enumerate(oq)])
        if O.get("acku"):
            E("s_waitcnt vmcnt(0)"); self.stamp("acku1")
        pre = ["s_waitcnt vmcnt(0)"] + E.lines[body0:]
        def gather(base):
            return [f"buffer_load_dwordx4 {v(KX(base + i),4)}, v{L16}, {ws()}, s{S_IN0} offen offset:{i*1024} sc1" for i in range(4)]
        def reduce_(base, after):
            for i in range(4):
                E(f"s_waitcnt vmcnt({3 - i + after})")
                E(smf(RD, SEL, KX(base + i), i == 0))
                if i == 0: E(f"v_xor_b32 v{TG}, s{S_PH}, v{KX(base)}")
                else: E(f"v_bitop3_b32 v{TG}, v{TG}, v{KX(base + i)}, s{S_PH} bitop3:0xf6")
            E(f"v_and_b32 v{TG}, 1, v{TG}\n v_cmp_ne_u32 vcc, 0, v{TG}")
        def finish():
            E("s_nop 3")
            for i in range(2):
                E(f"v_add_f32_dpp v{RD+i}, v{RD+i}, v{RD+i} row_ror:8 row_mask:0xf bank_mask:0xf")
            E(cvt(TG, RD))
            E(f"v_min_u32 v{TG}, -2, v{TG}")
        def publish():
            E(f"buffer_store_dword v{TG}, v{MP}, {ws()}, s{S_PUB} offen{sc}")
            E(f"buffer_store_dword v{TG+1}, v{MP}, {ws()}, s{S_MRE} offen{sc}")
            if self.stamps: E(f"s_mov_b32 s94, s{S_CNT}")
        def nops(n):
            for k in range(0, n, 16): E(f"s_nop {min(16, n - k) - 1}")
        w23, join = E.label("T_w23"), E.label("T_join")
        errs = []
        pl = [self.rd_op(o, hf, Q(2 * n)) for n, o in enumerate(P_OPS) for hf in range(2)]
        rds = [f"ds_read_b128 {v(VX + 4*j, 4)}, v{WL16} offset:{L_VX + 4096*j}" for j in range(2)] \
            + [f"ds_read_b128 {v(KX(f), 4)}, v{L16} offset:{L_KX + 1024*f}" for f in range(8)]
        l0 = len(E.lines)
        for x in pl[:O["h1pre"]]: E(x)
        self.zero_acc()
        E(f"s_mov_b32 s{S_CNT}, 0\n v_mov_b32 v{TG+1}, -1")
        E(f"s_cmp_gt_u32 s{S_W}, 1\n s_cbranch_scc1 {w23}")
        l1 = len(E.lines)
        if O["h1ack"] is not None: E(f"s_waitcnt vmcnt({O['h1ack']})")
        for x in pl[O["h1pre"]:O["h1mid"]]: E(x)
        nops(O["h1nop"])
        if O["w1nop"]:
            sk = E.label("T_sk")
            E(f"s_cmp_eq_u32 s{S_W}, 0\n s_cbranch_scc1 {sk}")
            nops(O["w1nop"])
            E(sk + ":")
        for x in gather(4): E(x)
        self.stamp("g1")
        p1, p1re = E.label("T_p1"), E.label("T_p1re")
        for x in pl[O["h1mid"]:]: E(x)
        E(f"s_waitcnt lgkmcnt({min(15, len(pl))})")
        lp1 = len(E.lines)
        E(p1 + ":")
        reduce_(4, 0)
        E(f"s_cbranch_vccnz {p1re}")
        l2 = len(E.lines)
        finish(); publish()
        E(join + ":")
        l4 = len(E.lines)
        self.stamp("hop1")
        E("s_barrier")
        cuts = list(O["h2cut"]) + [10]
        for x in rds[:cuts[0]]: E(x)
        for k in range(NS):
            E(ld0)
            for x in rds[cuts[k]:(cuts[k + 1] if k + 1 < NS else 10)]: E(x)
        E(f"s_mov_b32 s{S_CNT}, 0")
        self.stamp("top")
        E(f"s_branch {top}")
        l5 = len(E.lines)
        E(p1re + ":")
        if O["h1mask"]: E("s_mov_b64 exec, vcc")
        for x in gather(4): E(x)
        if O["h1mask"]: E("s_mov_b64 exec, -1")
        E(cntchk)
        E(f"s_branch {p1}")
        l6 = len(E.lines)
        E(w23 + ":")
        for x in pl[O["h1pre"]:]: E(x)
        E(f"s_waitcnt vmcnt({2 if self.merged else 4})\n s_branch {join}")
        Ls = E.lines
        errs += hazard.check(pre + Ls[l0:l5] + pre, "team w01")
        errs += hazard.check(pre + Ls[l0:l2] + Ls[l5:l6] + Ls[lp1:l5] + pre, "team w01 retry")
        errs += hazard.check(pre + Ls[l0:l1] + Ls[l6:] + Ls[l4:l5] + pre, "team w23")
        E.lg = []; E.vm = []
        if self.merged:
            E(kvw + ":")
            self.wait_kv(fail)
            E(f"s_branch {kvb}")
        E(late + ":")
        E(ld1); E(cntchk); E("s_waitcnt vmcnt(0)")
        for x in c1: E(x)
        if self.stamps: E(f"s_add_u32 s95, s95, 0x100")
        E(f"s_cbranch_vccnz {late}\n s_branch {lateok}")
        s0 = len(E.lines)
        E(slow + ":")
        M0, M1 = TMP, TMP + 1
        E("s_nop 7")
        E(f"v_max3_f32 v{M0}, v{SX0}, v{SX0+1}, v{SX0+2}\n v_max3_f32 v{M0}, v{M0}, v{SX0+3}, v{SX1}")
        E(f"v_max3_f32 v{M0}, v{M0}, v{SX1+1}, v{SX1+2}\n v_max3_f32 v{M0}, v{M0}, v{SX1+3}, v{SM_}")
        E(f"v_max3_f32 v{M0}, v{M0}, v{SM_+1}, v{SM_+2}\n v_max_f32 v{M0}, v{M0}, v{SM_+3}")
        for sw in ("32", "16"):
            E(f"v_mov_b32 v{M1}, v{M0}\n s_nop 1\n v_permlane{sw}_swap_b32 v{M0}, v{M1}\n s_nop 1\n v_max_f32 v{M0}, v{M0}, v{M1}")
        for base in (SX0, SX1, SM_):
            for i in range(4): E(f"v_sub_f32 v{base+i}, v{base+i}, v{M0}")
            for i in range(4): E(f"v_exp_f32 v{base+i}, v{base+i}")
        E("s_nop 0")
        E(cvt(PX, SX0)); E(cvt(PX+1, SX0+2)); E(cvt(PX+2, SX1)); E(cvt(PX+3, SX1+2)); E(cvt(PM, SM_)); E(cvt(PM+1, SM_+2))
        for x in cnds: E(x)
        E("s_nop 1")
        for x in pvm + pvx: E(x)
        E("s_nop 7\n s_nop 1")
        E(f"v_rcp_f32 v{LA+1}, v{LA}\n s_nop 0\n s_branch {back}")
        errs += hazard.check(E.lines[s0:], "team slow")
        return errs

    def dump_stamps(self):
        E = self.E
        E("s_memrealtime s[88:89]\n s_memtime s[90:91]\n s_waitcnt lgkmcnt(0)")
        E.lg = []
        E(f"s_lshl_b32 s{S_T0}, s{S_H}, 2\n s_add_u32 s{S_T0}, s{S_T0}, s{S_W}\n s_lshl_b32 s{S_T0}, s{S_T0}, 6\n s_add_u32 s{S_T0}, s{S_T0}, s{S_STEP}")
        E(f"s_lshl_b32 s{S_T0}, s{S_T0}, 7\n s_add_u32 s{S_T0}, s{S_T0}, {STAMP}")
        t = Q(12) + 2
        E(f"v_mov_b32 v{t}, 0")
        for i in range(16):
            E(f"v_writelane_b32 v{t}, s{S_ST + 2*i}, {i}")
        E(f"v_writelane_b32 v{t}, s94, 16\n v_writelane_b32 v{t}, s95, 17")
        E(f"v_lshrrev_b32 v{t+1}, 2, v{L16}\n s_mov_b64 exec, 0xffffffff")
        E(f"buffer_store_dword v{t}, v{t+1}, {ws()}, s{S_T0} offen\n s_mov_b64 exec, -1\n s_nop 3")


def standalone(stamps=False, force_mode=None, **opt):
    E = Em()
    E("; @launch grid=(256,1,1) block=(256,1,1) lds=163840")
    E('.amdgcn_target "amdgcn-amd-amdhsa--gfx950"')
    E(kernel_header("team_kernel"))
    T = Team(E, stamps, **opt)
    E("s_cmp_ge_u32 s2, 256\n s_cbranch_scc1 T_exit\n s_and_b32 s3, s2, 7\n s_cbranch_scc1 T_exit")
    E(f"s_lshr_b32 s{S_H}, s2, 3")
    E("s_memrealtime s[100:101]\n s_waitcnt lgkmcnt(0)\n s_mov_b32 s92, s100\n s_mov_b32 s94, 0")
    l0 = len(E.lines)
    T.startup("T_fail")
    errs = hazard.check(E.lines[l0:], "team startup")
    E("s_memrealtime s[100:101]\n s_waitcnt lgkmcnt(0)\n s_mov_b32 s96, s100\n s_memtime s[100:101]\n s_waitcnt lgkmcnt(0)\n s_mov_b32 s98, s100")
    if force_mode is not None:
        E(f"s_mov_b32 s{S_MODE}, {force_mode}")
    E(f"s_cmp_lg_u32 s{S_MODE}, 0\n s_cbranch_scc1 T_global")
    errs += T.loop(0, "T_done", "T_fail")
    E("T_global:")
    errs += T.loop(1, "T_done", "T_fail")
    E("T_fail:")
    E(f"s_mov_b32 s{S_T0}, 1\n s_atomic_add s{S_T0}, s[{S_DBG}:{S_DBG+1}], 12 glc\n s_waitcnt lgkmcnt(0)")
    E("T_done:")
    E("s_memrealtime s[100:101]\n s_waitcnt lgkmcnt(0)\n s_mov_b32 s97, s100\n s_memtime s[100:101]\n s_waitcnt lgkmcnt(0)")
    E(f"s_sub_u32 s98, s100, s98\n v_mov_b32 v40, s92\n v_mov_b32 v41, s96\n v_mov_b32 v42, s97\n v_mov_b32 v43, s98")
    E(f"s_lshl_b32 s{S_T0}, s{S_H}, 4\n s_add_u32 s{S_T0}, s{S_T0}, {STAMP + MB}\n v_mov_b32 v44, 0")
    E(f"buffer_store_dwordx4 v[40:43], v44, {ws()}, s{S_T0} offen")
    E("T_exit:\n s_endpgm")
    E(kernel_desc("team_kernel"))
    txt = E.text()
    if opt.get("norty") or opt.get("nomem"):
        import re
        txt = re.sub(r"s_cbranch_vccnz T_(retry|late|p1re|slow)_\d+", "s_nop 0", txt)
    if opt.get("nomem"):
        i = txt.index("T_retry_")
        pat = {1: r"buffer_(load|store)_dword(x4)? v\S+, v\d+, s\[4:7\], s(20|21|22|24|25|26|35) offen.*",
               2: r"buffer_(load|store)_dword(x4)? v\S+, v\d+, s\[4:7\], s(24|25|26|35) offen.*",
               3: r"buffer_(load|store)_dword(x4)? v\S+, v\d+, s\[4:7\], s(20|21|22) offen.*"}[opt["nomem"]]
        txt = txt[:i] + re.sub(pat, "s_mov_b32 s93, 0x12345", txt[i:])
    return txt, errs, T.names

if __name__ == "__main__":
    for st in (False, True):
        txt, errs, names = standalone(st)
        print(len(errs), "hazards", names)
    open("team.s", "w").write(txt)
```

```python
import sys
from emit import *
from layout import *
import gemm, attn, outp, team
from gemm import G_WS, G_W, G_N, G_DONE, G_FLAG, G_T0, G_T1, G_T2, G_T3, V_LANE
NAME = "gated_mix__compressed_kv_cla__memory_aug_recurrent_mem_tr__prompt"
KN = NAME + "_kernel"
INIT_OFF = 128
WAIT_MAX = 1 << 18
R_KIND, R_T0, R_DT, R_N, R_NATT, R_QB0, R_QT0, R_QB1, R_QT1 = range(48, 57)
R_H, R_ROLE, R_C, R_GB, R_LVL, R_QB, R_QT, R_CNT = range(64, 72)
R_WSP, R_DBG = 72, 74
R_A, R_B, R_D, R_E = 76, 77, 78, 79

SCHED = [(1, 63, -1, 18, [7]), (1, 45, -1, 22, [6]), (2, 0, 1, 28, [5]), (0, 63, -1, 25, [4, 0]),
         (1, 23, -1, 24, [3, 1]), (0, 38, -1, 39, [2]), (2, 28, 1, 36, [])]

def build(diag=False, team_opt=None, sched=None):
    S = sched or SCHED
    E = Em()
    E.lines.append("; @launch grid=(256,1,1) block=(256,1,1) lds=163840")
    E('.amdgcn_target "amdgcn-amd-amdhsa--gfx950"')
    E(kernel_header(KN))
    errs = []
    wsd = s(G_WS, 4)
    kv_roles = [r_ for r_, x in enumerate(S) if x[0] == 1]
    q_roles = [r_ for r_, x in enumerate(S) if x[0] == 0]
    b_roles = [r_ for r_, x in enumerate(S) if x[0] == 2]
    E("s_cmp_ge_u32 s2, 256\n s_cbranch_scc1 M_exit")
    if diag: tmark(E, 0); E("s_mov_b32 s97, s2")
    E(f"s_load_dwordx4 s[{R_WSP}:{R_WSP+3}], s[0:1], {ARG['dbg']}")
    gemm.lane_setup(E)
    E(f"s_and_b32 s{R_A}, s2, 7\n s_lshr_b32 s{R_B}, s2, 3\n s_sub_u32 s{R_C}, s{R_A}, 1\n s_and_b32 s{R_C}, s{R_C}, 7\n s_lshl_b32 s{R_C}, s{R_C}, 5\n s_add_u32 s{R_C}, s{R_C}, s{R_B}")
    E(f"s_lshl_b32 s{G_FLAG}, s{R_C}, 7\n s_add_u32 s{G_FLAG}, s{G_FLAG}, {FLAGS}\n s_waitcnt lgkmcnt(0)")
    E(f"s_mov_b64 s[{G_WS}:{G_WS+1}], s[{R_WSP+2}:{R_WSP+3}]\n s_mov_b64 s[{R_DBG}:{R_DBG+1}], s[{R_WSP}:{R_WSP+1}]\n s_mov_b64 s[{R_WSP}:{R_WSP+1}], s[{G_WS}:{G_WS+1}]")
    E(f"s_and_b32 s{G_WS+1}, s{G_WS+1}, 0xffff\n s_mov_b32 s{G_WS+2}, {WS_BYTES}\n s_mov_b32 s{G_WS+3}, 0x20000")
    E(f"s_cmp_lg_u32 s{G_W}, 3\n s_cbranch_scc1 M_noinit")
    E(f"s_mov_b32 s{G_T0}, 0\n s_atomic_swap s{G_T0}, s[{R_WSP}:{R_WSP+1}], s{G_FLAG} glc\n s_waitcnt lgkmcnt(0)")
    E(f"s_mov_b32 s{R_E}, 1\n s_atomic_add s{R_E}, s[{R_DBG}:{R_DBG+1}], {INIT_OFF}")
    E("M_noinit:")
    E(f"s_cmp_eq_u32 s{R_A}, 0\n s_cbranch_scc1 M_team")
    E(f"s_mul_i32 s{R_H}, s{R_C}, 9363\n s_lshr_b32 s{R_H}, s{R_H}, 16\n s_mul_i32 s{R_GB}, s{R_H}, 7\n s_sub_u32 s{R_ROLE}, s{R_C}, s{R_GB}")
    E(f"s_lshl_b32 s{R_GB}, s{R_GB}, 7\n s_add_u32 s{R_GB}, s{R_GB}, {FLAGS}")
    E(f"s_getpc_b64 s[{R_A}:{R_A+1}]\nM_pc:\n s_add_u32 s{R_A}, s{R_A}, M_table-M_pc\n s_addc_u32 s{R_B}, s{R_B}, 0\n s_lshl_b32 s{G_T0}, s{R_ROLE}, 6")
    E(f"s_load_dwordx16 s[48:63], s[{R_A}:{R_A+1}], s{G_T0}\n s_waitcnt lgkmcnt(0)\n s_mov_b32 s{G_N}, s{R_N}")
    errs += gemm.proj_task(E, R_KIND, R_H, R_T0, R_DT, " sc1", True, 6 if diag == 2 else False)
    if diag: tmark(E, 1)

    def bound():
        return f"s_add_u32 s{R_CNT}, s{R_CNT}, 1\n s_cmp_gt_u32 s{R_CNT}, {WAIT_MAX}\n s_cbranch_scc1 M_exit"
    def swait(base, off, thr):
        lp = E.label("M_sw")
        E(f"s_mov_b32 s{R_CNT}, 0")
        E(lp + ":")
        E(bound())
        E(f"s_mov_b32 s{R_E}, 0\n s_atomic_or s{R_E}, s[{base}:{base+1}], {off} glc\n s_waitcnt lgkmcnt(0)\n s_cmp_lt_u32 s{R_E}, {thr}\n s_cbranch_scc1 {lp}")
    def vwait(va, vt, vx):
        lp, go = E.label("M_vw"), E.label("M_vg")
        E(f"s_mov_b32 s{R_CNT}, 0\n s_branch {go}")
        E(lp + ":")
        E("s_sleep 2")
        E(bound())
        E(go + ":")
        E(f"buffer_load_dword v{vx}, v{va}, {wsd}, 0 offen sc1\n s_waitcnt vmcnt(0)\n v_cmp_lt_u32 vcc, v{vx}, v{vt}\n s_cbranch_vccnz {lp}")
        E.vm = []
    def publish(val):
        E(f"s_waitcnt vmcnt(0)\n s_barrier\n s_mov_b32 s{G_DONE}, {val}")
        gemm.publish(E)
    swait(R_DBG, INIT_OFF, 256)
    E(f"s_cmp_eq_u32 s{R_ROLE}, 6\n s_cbranch_scc1 M_follow")
    def wait_q():
        for i, r_ in enumerate(q_roles):
            E(f"s_bfe_u32 s{R_D}, s{R_QT}, {hex(0x80000 + 8*i)}\n s_add_u32 s{R_A}, s{R_GB}, {128*r_}")
            swait(R_WSP, f"s{R_A}", f"s{R_D}")
    def wait_kv():
        lp, ok = E.label("M_kv"), E.label("M_kvok")
        E(lp + ":")
        E(f"s_cmp_ge_u32 s{attn.A_KOFF}, s{attn.A_RDY}\n s_cbranch_scc1 {ok}")
        for i, r_ in enumerate(kv_roles):
            first = i == 0
            op = "s_mov_b32" if first else "s_cmov_b32"
            if not first: E(f"s_cmp_eq_u32 s{R_LVL}, {i}")
            E(f"{op} s{R_A}, {128*r_}\n {op} s{R_D}, {S[r_][3]}\n {op} s{R_B}, {(S[r_][1] - S[r_][3] + 1) * 8192}")
        E(f"s_add_u32 s{R_A}, s{R_A}, s{R_GB}")
        swait(R_WSP, f"s{R_A}", f"s{R_D}")
        E(f"s_add_u32 s{attn.A_RDY}, s{R_B}, s{attn.A_KMIN}\n s_add_u32 s{R_LVL}, s{R_LVL}, 1\n s_branch {lp}")
        E(ok + ":")
    E(f"s_mov_b32 s{R_LVL}, 0\n s_mov_b32 s{attn.A_RDY}, -1\n s_mov_b32 s{R_QB}, s{R_QB0}\n s_mov_b32 s{R_QT}, s{R_QT0}")
    E("M_att:")
    errs += attn.attn_task(E, R_H, R_QB, " sc1", " sc1", False, wait_q, wait_kv)
    E(f"s_mov_b32 s{R_QB}, s{R_QB1}\n s_mov_b32 s{R_QT}, s{R_QT1}\n s_sub_u32 s{R_NATT}, s{R_NATT}, 1\n s_cmp_lg_u32 s{R_NATT}, 0\n s_cbranch_scc1 M_att")
    publish(0x200)
    if diag: tmark(E, 2)
    HG, HALF, TJ, DT = 48, 49, 50, 51
    E(f"s_lshr_b32 s{HG}, s{R_H}, 2\n s_bfe_u32 s{HALF}, s{R_H}, 0x10001\n s_and_b32 s{TJ}, s{R_H}, 1\n s_mul_i32 s{TJ}, s{TJ}, 6\n s_add_u32 s{TJ}, s{TJ}, s{R_ROLE}")
    E(f"s_mov_b32 s{DT}, 12\n s_cmp_lt_u32 s{TJ}, 4\n s_cselect_b32 s{G_N}, 6, 5")
    def wait_ctx():
        E(f"v_min_u32 v4, 27, v{V_LANE}\n v_mul_u32_u24 v5, 37, v4\n v_lshrrev_b32 v5, 8, v5\n v_mul_u32_u24 v5, 7, v5\n v_sub_u32 v5, v4, v5")
        E(f"v_mov_b32 v6, 0x200\n v_cmp_ne_u32 vcc, 6, v5\n s_mul_i32 s{R_A}, s{HG}, {28*128}\n s_add_u32 s{R_A}, s{R_A}, {FLAGS}\n v_cndmask_b32 v5, 0, v6, vcc")
        E(f"v_lshl_add_u32 v4, v4, 7, s{R_A}")
        vwait(4, 5, 6)
        if diag: tmark(E, 3)
    errs += outp.oproj_task(E, HG, HALF, TJ, DT, " sc1", " sc1", False, wait_ctx)
    publish(0x300)
    if diag: tmark(E, 4)
    ZT, ZQ, ZI = 48, 49, 50
    E(f"s_mul_i32 s{ZI}, s{R_H}, 6\n s_add_u32 s{ZI}, s{ZI}, s{R_ROLE}")
    E(f"s_mul_i32 s{R_A}, s{ZI}, 21846\n s_lshr_b32 s{R_A}, s{R_A}, 16\n s_mul_i32 s{R_B}, s{R_A}, 3\n s_add_u32 s51, s{ZI}, 64")
    E(f"s_cmp_eq_u32 s{R_B}, s{ZI}\n s_cselect_b32 s{ZI}, s{R_A}, s51")
    E("M_fin:")
    E(f"s_lshr_b32 s{ZT}, s{ZI}, 2\n s_and_b32 s{ZQ}, s{ZI}, 3")
    def wait_part(b):
        def f():
            if b == 0:
                E(f"s_mul_i32 s{R_A}, s{ZT}, 43\n s_lshr_b32 s{R_A}, s{R_A}, 9\n s_mul_i32 s{R_A}, s{R_A}, 12\n s_sub_u32 s{R_A}, s{ZT}, s{R_A}")
                E(f"s_cmp_ge_u32 s{R_A}, 6\n s_addc_u32 s{R_A}, s{R_A}, 0\n s_and_b32 s{R_B}, s{ZQ}, 2\n s_mul_i32 s{R_B}, s{R_B}, 7\n s_add_u32 s{R_A}, s{R_A}, s{R_B}")
                E("v_mov_b32 v193, 0x300")
            else:
                E(f"s_and_b32 s{R_A}, s{ZT}, 1\n s_lshl_b32 s{R_A}, s{R_A}, 1\n s_lshr_b32 s{R_B}, s{ZQ}, 1\n s_add_u32 s{R_A}, s{R_A}, s{R_B}\n s_mul_i32 s{R_A}, s{R_A}, 7\n s_add_u32 s{R_A}, s{R_A}, 6")
                E(f"s_lshr_b32 s{R_B}, s{ZT}, 1\n s_add_u32 s{R_B}, s{R_B}, 0x201\n v_mov_b32 v193, s{R_B}")
            E(f"s_lshl_b32 s{R_A}, s{R_A}, 7\n s_add_u32 s{R_A}, s{R_A}, {FLAGS}\n v_and_b32 v192, 7, v{V_LANE}\n v_mul_u32_u24 v192, {28*128}, v192\n v_add_u32 v192, s{R_A}, v192")
            vwait(192, 193, 194)
            if diag == 1: tmark(E, 5 + b)
        return f
    errs += outp.final_task(E, ZT, ZQ, " sc1", wait_part(0), wait_part(1))
    E(f"s_cmp_lt_u32 s{ZI}, 64\n s_mov_b32 s{ZI}, s51\n s_cbranch_scc1 M_fin")
    E("s_branch M_done")
    E("M_follow:")
    E(f"s_lshr_b32 s{HG}, s{R_H}, 2\n s_and_b32 s{HALF}, s{R_H}, 1\n s_bfe_u32 s{TJ}, s{R_H}, 0x10001\n s_mov_b32 s{DT}, 2\n s_mov_b32 s{G_N}, 32")
    FS, FR = 52, 53
    def wait_x():
        E(f"s_lshl_b32 s{R_B}, s{HG}, 2\n s_add_u32 s{R_B}, s{R_B}, s{G_W}\n s_mul_i32 s{R_D}, s{R_B}, {7*128}")
        for r_ in q_roles + b_roles:
            E(f"s_add_u32 s{R_A}, s{R_D}, {FLAGS + 128*r_}")
            swait(R_WSP, f"s{R_A}", S[r_][3])
        E(f"s_lshl_b32 s{R_B}, s{R_B}, 7\n s_add_u32 s54, s{R_B}, {FLAGS + 224*128}\n s_add_u32 s{FS}, s{TJ}, 1\n s_mov_b32 s{FR}, 0\n s_mov_b32 s{G_DONE}, 0x200")
        if diag: tmark(E, 2)
    def wait_m():
        ok = E.label("M_mok")
        E(f"s_cmp_ge_u32 s{FR}, s{FS}\n s_cbranch_scc1 {ok}")
        vm = list(E.vm)
        E(f"v_mov_b32 v16, s54\n v_mov_b32 v17, s{FS}")
        vwait(16, 17, 18)
        E.vm = vm
        E(f"v_readfirstlane_b32 s{FR}, v18")
        E(ok + ":")
        E(f"s_add_u32 s{FS}, s{FS}, 2")
    def mid():
        gemm.publish(E, 16)
        E(f"s_add_u32 s{G_DONE}, s{G_DONE}, 1")
    errs += outp.follower_task(E, HG, HALF, TJ, DT, " sc1", " sc1", wait_x, wait_m, mid)
    gemm.publish(E)
    E("s_branch M_done")
    E("M_team:")
    T = team.Team(E, **(team_opt or {}))
    T.merged = dict(init_off=INIT_OFF, r1=b_roles[0], r2=b_roles[1], n1=S[b_roles[0]][3])
    E(f"s_mov_b32 s{team.S_H}, s{R_B}")
    l0 = len(E.lines)
    T.startup("M_exit")
    errs += hazard.check(E.lines[l0:], "team startup")
    if diag: tmark(E, 1)
    E(f"s_cmp_lg_u32 s{team.S_MODE}, 0\n s_cbranch_scc1 M_global")
    errs += T.loop(0, "M_tdone", "M_exit", " sc1")
    E("M_global:")
    errs += T.loop(1, "M_tdone", "M_exit", " sc1")
    E("M_tdone:")
    E(f"v_mov_b32 v16, 64\n v_min_u32 v17, 1, v{team.WL16}\n v_lshlrev_b32 v17, 30, v17\n s_waitcnt vmcnt(0)\n s_barrier")
    E(f"buffer_store_dword v16, v17, {wsd}, s{team.S_FLG} offen sc1")
    E("M_done:")
    if diag: tmark(E, 7); tdump(E, G_WS, STAMP, 97)
    E("M_exit:\n s_endpgm")
    E(".p2align 6\n.type M_table,@object\nM_table:")
    for kind, t0, dt, n, att in S:
        def qthr(qb):
            w = 0
            for i, r_ in enumerate(q_roles):
                top, cnt = S[r_][1], S[r_][3]
                need = min(max(top - 8*qb + 1, 0), cnt) if top - cnt + 1 <= 8*qb + 7 else 0
                w |= need << (8*i)
            return w
        a_ = (att + [0, 0])[:2]
        row = [kind, t0, dt & 0xffffffff, n, len(att), a_[0], qthr(a_[0]), a_[1], qthr(a_[1])] + [0]*7
        E(".long " + ", ".join(hex(x) for x in row))
    E(".size M_table, 448")
    E(kernel_desc(KN))
    return E.text(), errs

if __name__ == "__main__":
    diag = 1 if "diag" in sys.argv else 2 if "diag2" in sys.argv else 0
    txt, errs = build(diag)
    print(len(errs), "hazards", len(txt), "bytes")
    open("mega_diag.s" if diag else f"cdna_kernels/{NAME}.s", "w").write(txt)
```

```python
from asmlib import *
import hazard

class Em(Asm):
    def __init__(self):
        super().__init__()
        self.lg = []
        self.vm = []

    @staticmethod
    def _regs(tok):
        return set(hazard.regs_of(tok))

    def ds(self, ins, tag=None):
        d = hazard.parse(ins)
        self.lg.append(set(d["w"]) | ({tag} if tag else set()))
        self(ins)

    def vmem(self, ins, tag=None):
        d = hazard.parse(ins)
        self.vm.append(set(d["w"]) | ({tag} if tag else set()))
        self(ins)

    def _need(self, q, keys):
        last = -1
        for i, e in enumerate(q):
            if e & keys:
                last = i
        if last < 0:
            return None
        n = len(q) - 1 - last
        del q[: last + 1]
        return n

    def need(self, *toks, tags=()):
        keys = set(tags)
        for t in toks:
            keys |= self._regs(t)
        nl = self._need(self.lg, keys)
        nv = self._need(self.vm, keys)
        parts = []
        if nv is not None:
            assert nv <= 63
            parts.append(f"vmcnt({nv})")
        if nl is not None:
            parts.append(f"lgkmcnt({min(nl, 15)})")
        if parts:
            self("s_waitcnt " + " ".join(parts))
            return True
        return False

    def drain(self, lg=False, vm=False):
        parts = []
        if vm:
            parts.append("vmcnt(0)"); self.vm = []
        if lg:
            parts.append("lgkmcnt(0)"); self.lg = []
        self("s_waitcnt " + " ".join(parts))

    def srd(self, base, ptr, nbytes):
        self(f"s_mov_b32 s{base}, s{ptr}")
        self(f"s_and_b32 s{base+1}, s{ptr+1}, 0xffff")
        self(f"s_mov_b32 s{base+2}, {hex(nbytes)}")
        self(f"s_mov_b32 s{base+3}, 0x20000")


def tmark(E, i):
    E(f"s_memrealtime s[100:101]\n s_waitcnt lgkmcnt(0)\n s_mov_b32 s{80+2*i}, s100\n s_memtime s[100:101]\n s_waitcnt lgkmcnt(0)\n s_mov_b32 s{81+2*i}, s100")

def tdump(E, srd, off, s_id):
    for i in range(16):
        E(f"v_mov_b32 v{200+i}, s{80+i}")
    E(f"s_lshl_b32 s100, s{s_id}, 6\n s_add_u32 s100, s100, {off}\n v_mov_b32 v216, 0")
    for i in range(4):
        E(f"buffer_store_dwordx4 v[{200+4*i}:{203+4*i}], v216, s[{srd}:{srd+3}], s100 offen offset:{16*i}")


def tacc(E, i):
    E(f"s_memtime s[100:101]\n s_waitcnt lgkmcnt(0)\n s_sub_u32 s98, s100, s96\n s_mov_b32 s96, s100")
    if i is not None: E(f"s_add_u32 s{86+i}, s{86+i}, s98")
```

```python
import struct, math
from emit import *
from layout import *
from gemm import *

def fbits(x): return struct.unpack("<I", struct.pack("<f", x))[0]
def wsd(): return s(G_WS, 4)

def wo_setup(E, arg, s_hg, s_half, s_t0, s_dt, pbase):
    T0, T1 = G_T0, G_T1
    E(f"s_load_dwordx2 s[{G_WSRD}:{G_WSRD+1}], s[0:1], {ARG[arg]}")
    E(f"s_lshl_b32 s{G_WOFF}, s{s_hg}, 19\n s_lshl_b32 s{T0}, s{s_half}, 2\n s_add_u32 s{T0}, s{T0}, s{G_W}\n s_lshl_b32 s{T1}, s{T0}, 7")
    E(f"s_add_u32 s{G_WOFF}, s{G_WOFF}, s{T1}\n s_mov_b32 s{G_WSTR}, 1024")
    E(f"s_lshl_b32 s{G_OOFF}, s{s_hg}, 6\n s_add_u32 s{G_OOFF}, s{G_OOFF}, s{s_t0}\n s_lshl_b32 s{G_OOFF}, s{G_OOFF}, 3\n s_add_u32 s{G_OOFF}, s{G_OOFF}, s{T0}")
    E(f"s_lshl_b32 s{G_OOFF}, s{G_OOFF}, 12\n s_add_u32 s{G_OOFF}, s{G_OOFF}, {PART + pbase*2*MB}\n s_lshl_b32 s{G_OSTR}, s{s_dt}, 15")
    E(f"s_mov_b32 s{G_SCALE}, 1.0\n s_waitcnt lgkmcnt(0)")
    E(f"s_and_b32 s{G_WSRD+1}, s{G_WSRD+1}, 0xffff\n s_mov_b32 s{G_WSRD+2}, {4*MB}\n s_mov_b32 s{G_WSRD+3}, 0x20000")


def oproj_task(E, s_hg, s_half, s_t0, s_dt, sc, osc, flags, wait=None):
    l0 = len(E.lines)
    wo_setup(E, "wo", s_hg, s_half, s_t0, s_dt, 0)
    E(f"s_mov_b32 s{G_ASRD}, s{G_WS}\n s_mov_b32 s{G_ASRD+1}, s{G_WS+1}\n s_mov_b32 s{G_ASRD+2}, {WS_BYTES}\n s_mov_b32 s{G_ASRD+3}, 0x20000")
    E(f"s_lshl_b32 s{G_AOFF}, s{s_hg}, 8\n s_add_u32 s{G_AOFF}, s{G_AOFF}, s{s_t0}\n s_lshl_b32 s{G_AOFF}, s{G_AOFF}, 13\n s_add_u32 s{G_AOFF}, s{G_AOFF}, {CTXA}")
    E(f"s_lshl_b32 s{G_ASTR}, s{s_dt}, 13")
    addr_frag(E, 64 * 8192)
    load_w(E, True)
    if wait: wait()
    E("s_barrier")
    fetch_now(E, sc, "a", 0); fetch_now(E, sc, "a", 1)
    E.drain(vm=True)
    E("s_barrier")
    errs = hazard.check(E.lines[l0:], "oproj prologue")
    errs += stream(E, False, sc, osc, flags)
    return errs


FQ, FK, FV, FC = 144, 176, 208, 240
FSX, FSM, FVM, FO, FP = 24, 40, 56, 64, 128
F_WR, F_TR, F_VMA, F_M, F_T, F_XL, F_ST = 3, 4, 5, 6, 16, 21, 22
F_PRE = 24
F_QOFF, F_KMOFF, F_KML = 19, 20, 25
L_KMF = 65536

def follower_task(E, s_hg, s_half, s_t0, s_dt, sc, osc, wait_x=None, wait_m=None, mid=None, diag=False):
    errs = []
    l0 = len(E.lines)
    wo_setup(E, "bwo", s_hg, s_half, s_t0, s_dt, 8)
    addr_frag(E, 0)
    load_w(E, True)
    T0, T1, T2, T3 = G_T0, G_T1, G_T2, G_T3
    E(f"s_lshl_b32 s{T0}, s{s_hg}, 2\n s_add_u32 s{T0}, s{T0}, s{G_W}")
    E(f"s_lshl_b32 s{T1}, s{T0}, 6\n s_add_u32 s{T1}, s{T1}, s{s_t0}\n s_lshl_b32 s{F_QOFF}, s{T1}, 13")
    E(f"s_lshl_b32 s{T1}, s{s_t0}, 5\n s_add_u32 s{T1}, s{T1}, s{T0}\n s_mul_i32 s{T1}, s{T1}, {KMB}\n s_add_u32 s{F_KMOFF}, s{T1}, {KM}")
    E(f"s_lshl_b32 s{F_KML}, s{G_W}, 12\n s_add_u32 s{F_KML}, s{F_KML}, {L_KMF}")
    E(f"s_lshl_b32 s{T0}, s{G_W}, 13\n v_add_u32 v{F_WR}, s{T0}, v{V_L16}")
    t = F_T
    E(f"v_lshrrev_b32 v{t}, 5, v{V_LANE}\n v_and_b32 v{t+1}, 31, v{V_LANE}")
    E(f"v_mul_u32_u24 v{t+2}, {MHS}, v{t}\n v_lshl_add_u32 v{F_VMA}, v{t+1}, 3, v{t+2}")
    E(f"v_bfe_u32 v{t+2}, v{V_LANE}, 2, 2\n v_lshl_add_u32 v{t+2}, v{t}, 2, v{t+2}\n v_and_b32 v{t+3}, 1, v{V_LANE}\n v_mul_u32_u24 v{t+3}, {MHS}, v{t+3}")
    E(f"v_lshl_add_u32 v{t+2}, v{t+2}, 3, v{t+3}\n v_add_u32 v{F_TR}, s{F_KML}, v{t+2}")
    E(f"v_lshlrev_b32 v{t}, 2, v{t}\n v_sub_u32 v{t+1}, v{t+1}, v{t}\n v_mov_b32 v{t+2}, {hex(fbits(-1e30))}")
    for i in range(16):
        E(f"v_cmp_le_i32 vcc, {8*(i>>2) + (i&3)}, v{t+1}\n s_nop 1\n v_cndmask_b32 v{FC+i}, v{t+2}, 0, vcc")
    def xloads():
        out = []
        for reg, base in ((FQ, QB), (FK, KB), (FV, VB)):
            for hf in range(2):
                out.append(f"s_add_u32 s{T2 + hf}, s{F_QOFF}, {base + 4096*hf}")
                out += [f"buffer_load_dwordx4 {v(reg + 16*hf + 4*i, 4)}, v{F_XL}, {wsd()}, s{T2 + hf} offen offset:{1024*i}{sc}" for i in range(4)]
        return out
    E(f"v_mov_b32 v{F_XL}, v{V_L16}\n s_barrier")
    if wait_x: wait_x(True)
    def mloads():
        E(f"s_mov_b32 m0, s{F_KML}\n s_nop 0")
        for mh in range(2):
            E(f"buffer_load_dwordx4 v{V_L16}, {wsd()}, s{F_KMOFF} offen offset:{MHS*mh}{sc} lds")
        for dt in range(4):
            E(f"buffer_load_dwordx2 {v(FVM + 2*dt, 2)}, v{F_VMA}, {wsd()}, s{F_KMOFF} offen offset:{2*MHS + 256*dt}{sc}")
    for x in xloads(): (E.vmem if x.startswith("buffer") else E)(x)
    E(f"s_mov_b32 s{F_PRE}, 0\n v_mov_b32 v{F_ST}, 0x40000000\n s_sub_u32 s{G_OOFF}, s{G_OOFF}, s{G_OSTR}")
    errs += hazard.check(E.lines[l0:], "follower prologue")
    E.vm = E.vm[8:]
    vm0 = [set(x) for x in E.vm]
    top, have = E.label("F_top"), E.label("F_have")
    if diag:
        for i in range(8): E(f"s_mov_b32 s{86+i}, 0")
        tacc(E, None)
    E(top + ":")
    l1 = len(E.lines)
    m32 = lambda d, a_, b_, c_: f"v_mfma_f32_32x32x16_bf16 {v(d,16)}, {v(a_,4)}, {v(b_,4)}, {c_}"
    cv = lambda d, x: f"v_cvt_pk_bf16_f32 v{d}, v{x}, v{x+1}"
    stp = lambda b: f"buffer_store_dwordx4 {v(V_PK+4*b,4)}, v{F_ST}, {wsd()}, s{G_OOFF} offen offset:{1024*b}{osc}"
    E.need(v(FQ, 64))
    if diag: tacc(E, 0)
    for st in range(8):
        E(m32(FSX, FK + 4*st, FQ + 4*st, v(FC if st == 0 else FSX, 16)))
        if st & 1: E.vmem(stp(st >> 1), tag="st")
        else:
            if st == 0: E("s_nop 1")
            for j in range(4): E(cv(V_PK + 2*st + j, V_ACC + 4*st + 2*j))
    E(f"s_add_u32 s{G_OOFF}, s{G_OOFF}, s{G_OSTR}\n v_mov_b32 v{F_ST}, v{V_L16}")
    E(f"s_cmp_lg_u32 s{F_PRE}, 0\n s_cbranch_scc1 {have}")
    l2 = len(E.lines)
    if wait_m: wait_m()
    mloads()
    E("s_waitcnt vmcnt(0)")
    l3 = len(E.lines)
    E(have + ":")
    if diag: tacc(E, 1)
    trs = [f"ds_read_b64_tr_b16 {v(FK + 4*st + 2*hi, 2)}, v{F_TR} offset:{(16*st + 8*hi)*8}" for st in range(8) for hi in range(2)]
    for x in trs[:12]: E.ds(x)
    E(f"s_sub_u32 s{G_N}, s{G_N}, 1\n s_cmp_gt_u32 s{G_N}, 0\n s_cselect_b32 s{T0}, s{s_dt}, 0")
    E(f"s_cselect_b32 s{T1}, 0, 0x40000000\n v_or_b32 v{F_XL}, s{T1}, v{F_XL}")
    E(f"s_lshl_b32 s{T1}, s{T0}, 13\n s_add_u32 s{F_QOFF}, s{F_QOFF}, s{T1}\n s_mul_i32 s{T1}, s{T0}, {32*KMB}\n s_add_u32 s{F_KMOFF}, s{F_KMOFF}, s{T1}")
    if wait_x: wait_x(False)
    mxs = [f"v_max_f32 v{F_M}, v{FSX}, v{FSX+1}"] + [f"v_max3_f32 v{F_M}, v{F_M}, v{FSX+e}, v{FSX+e+1}" for e in range(2, 16, 2)]
    for st in range(8):
        E.need(v(FK + 4*st, 4))
        E(m32(FSM, FK + 4*st, FQ + 4*st, "0" if st == 0 else v(FSM, 16)))
        if st < 2:
            for x in trs[12 + 2*st:14 + 2*st]: E.ds(x)
        E(mxs[st])
    xl = xloads()
    def xput(n=1):
        for _ in range(n):
            if xl[0].startswith("s_"): E(xl.pop(0))
            E.vmem(xl.pop(0))
    xput(2)
    E("s_nop 7")
    E(f"v_max3_f32 v{F_M}, v{F_M}, v{FSM}, v{FSM+1}\n v_max3_f32 v{F_M}, v{F_M}, v{FSM+2}, v{FSM+3}")
    E(f"v_mov_b32 v{t}, v{F_M}\n s_nop 1\n v_permlane32_swap_b32 v{F_M}, v{t}\n s_nop 1\n v_max_f32 v{F_M}, v{F_M}, v{t}")
    if diag: tacc(E, 2)
    vals = [FSX + i for i in range(20)]
    assert FSM == FSX + 16
    for x in vals[::2]: E(f"v_pk_add_f32 {v(x,2)}, {v(x,2)}, {v(F_M,2)} op_sel_hi:[1,0] neg_lo:[0,1] neg_hi:[0,1]")
    for k, x in enumerate(vals):
        E(f"v_exp_f32 v{x}, v{x}")
        if k == 9: xput()
    E(f"v_pk_add_f32 {v(t,2)}, {v(vals[0],2)}, {v(vals[2],2)}")
    for x in vals[4::2]: E(f"v_pk_add_f32 {v(t,2)}, {v(t,2)}, {v(x,2)}")
    E(f"v_add_f32 v{t}, v{t}, v{t+1}\n v_mov_b32 v{t+1}, v{t}")
    xput()
    E(f"s_nop 0\n v_permlane32_swap_b32 v{t}, v{t+1}\n s_nop 1\n v_add_f32 v{t}, v{t}, v{t+1}\n v_rcp_f32 v{F_M}, v{t}\n s_nop 0")
    for x in vals[::2]: E(f"v_pk_mul_f32 {v(x,2)}, {v(x,2)}, {v(F_M,2)} op_sel_hi:[1,0]")
    for p in range(10): E(cv(FP + p, FSX + 2*p))
    E.need(v(FV, 32))
    if diag: tacc(E, 3)
    wr = lambda b: f"ds_write_b128 v{F_WR}, {v(FSX+4*b,4)} offset:{1024*b}"
    post = lambda b: [cv(FSX + 4*b + j, FO + 8*b + 2*j) for j in range(4)]
    for dt in range(4):
        E(m32(FO + 16*dt, FV + 8*dt, FP, "0"))
        if dt >= 2: E.ds(wr(2*dt - 3))
        xput()
        E(m32(FO + 16*dt, FV + 8*dt + 4, FP + 4, v(FO + 16*dt, 16)))
        if dt >= 1:
            for x in post(2*dt - 2): E(x)
        E(f"v_mfma_f32_32x32x8_bf16 {v(FO+16*dt,16)}, {v(FVM+2*dt,2)}, {v(FP+8,2)}, {v(FO+16*dt,16)}")
        if dt >= 1:
            E.ds(wr(2*dt - 2))
            for x in post(2*dt - 1): E(x)
    E.ds(wr(5))
    E("s_nop 5")
    for b in (6, 7):
        for x in post(b): E(x)
        E.ds(wr(b))
    if diag: tacc(E, 4)
    E.need(tags=["st"])
    E.drain(lg=True)
    E("s_barrier")
    if diag: tacc(E, 5)
    for ks in range(LEAD): E.ds(rd_frag(ks, 0))
    if mid:
        mid()
        nopre = E.label("F_nopre")
        E(f"s_cmp_eq_u32 s{F_PRE}, 0\n s_cbranch_scc1 {nopre}")
        mloads()
        E(nopre + ":")
    for n in range(64):
        ks, ct = n >> 1, n & 1
        if n == 0: E.need(v(V_AF, 4))
        E(mfma(False, 0, ks, ct))
        if ct == 1 and ks < 31: E.need(v(V_AF + 4*((ks + 1) % NF), 4))
        if ct == 0:
            if xl and xl[0].startswith("s_"): E(xl.pop(0))
            if ks + LEAD < 32: E.ds(rd_frag(ks + LEAD, 0))
        elif n % 4 == 3: xput()
        if n >= 54 and n < 62: E(f"v_xor_b32 v{V_RD + n - 54}, 0x8000, v{V_RD + n - 54}")
        if n == 62: E(f"v_xor_b32 v{F_WR}, 0x8000, v{F_WR}")
    assert not xl
    if diag: tacc(E, 6)
    E.vm = E.vm[8:]
    assert E.vm == vm0
    E(f"s_cmp_gt_u32 s{G_N}, 0\n s_cbranch_scc1 {top}")
    body = E.lines[l1:]
    errs += hazard.check(body + body, "follower loop")
    errs += hazard.check(body + body[:l2 - l1] + body[l3 - l1:], "follower loop (prefetched)")
    l4 = len(E.lines)
    E("s_nop 2")
    for b in range(4):
        for j in range(4): E(cv(V_PK + 4*b + j, V_ACC + 8*b + 2*j))
        E(stp(b))
    errs += hazard.check(body + E.lines[l4:], "follower tail")
    E.drain(vm=True, lg=True)
    E("s_barrier")
    return errs


def final_task(E, s_t, s_cq, sc, wait_a=None, wait_b=None):
    l0 = len(E.lines)
    T0, T1, T2, T3 = G_T0, G_T1, G_T2, G_T3
    X, GW, D, LD, SA, SB, t = 16, 48, 80, 96, 160, 176, 4
    E(f"s_load_dwordx2 s[8:9], s[0:1], {ARG['x']}\n s_load_dwordx2 s[12:13], s[0:1], {ARG['gate']}\n s_load_dwordx2 s[32:33], s[0:1], {ARG['out']}")
    E(f"v_and_b32 v{t}, 31, v{V_LANE}\n v_lshrrev_b32 v{t+1}, 5, v{V_LANE}\n v_lshlrev_b32 v{t+1}, 4, v{t+1}\n v_lshl_add_u32 v{t+2}, v{t}, 10, v{t+1}")
    E(f"s_lshl_b32 s{T0}, s{G_W}, 8\n s_lshl_b32 s{T1}, s{s_t}, 15\n s_add_u32 s{T1}, s{T1}, s{T0}\n s_waitcnt lgkmcnt(0)")
    for b, n in ((8, 2*MB), (12, 1024), (32, 2*MB)):
        E(f"s_and_b32 s{b+1}, s{b+1}, 0xffff\n s_mov_b32 s{b+2}, {n}\n s_mov_b32 s{b+3}, 0x20000")
    for k in range(8):
        E.vmem(f"buffer_load_dwordx4 {v(X+4*k,4)}, v{t+2}, s[8:11], s{T1} offen offset:{32*k}")
        E.vmem(f"buffer_load_dwordx4 {v(GW+4*k,4)}, v{t+1}, s[12:15], s{T0} offen offset:{32*k}")
    E(f"s_lshl_b32 s{T2}, s{s_t}, 2\n s_add_u32 s{T2}, s{T2}, s{s_cq}\n s_lshl_b32 s{T2}, s{T2}, 2\n s_add_u32 s{T2}, s{T2}, s{G_W}\n s_lshl_b32 s{T2}, s{T2}, 11")
    def loads(p0):
        for p in range(8):
            E(f"s_add_u32 s{T3}, s{T2}, {PART + (p0 + p)*2*MB}")
            for b in range(2):
                E.vmem(f"buffer_load_dwordx4 {v(LD + 8*p + 4*b, 4)}, v{V_L16}, {wsd()}, s{T3} offen offset:{1024*b}{sc}")
    def accum(S):
        for p in range(8):
            E.need(v(LD + 8*p, 8))
            for j in range(8):
                x = LD + 8*p + j
                if p == 0:
                    E(f"v_lshlrev_b32 v{S+2*j}, 16, v{x}\n v_and_b32 v{S+2*j+1}, 0xffff0000, v{x}")
                else:
                    u = t + 4 + 2*(j & 3)
                    E(f"v_lshlrev_b32 v{u}, 16, v{x}\n v_and_b32 v{u+1}, 0xffff0000, v{x}\n v_pk_add_f32 {v(S+2*j,2)}, {v(S+2*j,2)}, {v(u,2)}")
    for k in range(8):
        E.need(v(X+4*k, 4), v(GW+4*k, 4))
        E(f"v_mfma_f32_32x32x16_bf16 {v(D,16)}, {v(GW+4*k,4)}, {v(X+4*k,4)}, {'0' if k == 0 else v(D,16)}")
    if wait_a: wait_a()
    loads(0)
    E(f"v_lshlrev_b32 v{t+3}, 4, v{t}\n s_lshl_b32 s{T0}, s{G_W}, 2\n v_add_u32 v{t}, s{T0}, v{t+3}")
    E(f"s_barrier\n ds_write_b32 v{t}, v{D}\n s_waitcnt lgkmcnt(0)\n s_barrier\n ds_read_b128 {v(D+4,4)}, v{t+3}\n s_waitcnt lgkmcnt(0)")
    E(f"v_add_f32 v{D}, v{D+4}, v{D+5}\n v_add_f32 v{D+1}, v{D+6}, v{D+7}\n v_add_f32 v{D}, v{D}, v{D+1}")
    E(f"v_mul_f32 v{D}, {hex(fbits(-math.log2(math.e)))}, v{D}\n v_exp_f32 v{D}, v{D}\n s_nop 0\n v_add_f32 v{D}, 1.0, v{D}\n v_rcp_f32 v{D}, v{D}\n s_nop 0\n v_sub_f32 v{D+2}, 1.0, v{D}")
    accum(SA)
    if wait_b: wait_b()
    loads(8)
    for j in range(8): E(f"v_pk_mul_f32 {v(SA+2*j,2)}, {v(SA+2*j,2)}, {v(D,2)} op_sel_hi:[1,0]")
    accum(SB)
    for j in range(8):
        E(f"v_pk_fma_f32 {v(SA+2*j,2)}, {v(SB+2*j,2)}, {v(D+2,2)}, {v(SA+2*j,2)} op_sel_hi:[1,0,1]")
        E(f"v_cvt_pk_bf16_f32 v{X+j}, v{SA+2*j}, v{SA+2*j+1}")
    E(f"s_lshl_b32 s{T0}, s{s_cq}, 2\n s_add_u32 s{T0}, s{T0}, s{G_W}\n s_lshl_b32 s{T0}, s{T0}, 6\n s_lshl_b32 s{T1}, s{s_t}, 15\n s_add_u32 s{T0}, s{T0}, s{T1}")
    for b in range(2):
        E(f"buffer_store_dwordx4 {v(X+4*b,4)}, v{t+2}, s[32:35], s{T0} offen offset:{32*b}")
    return hazard.check(E.lines[l0:], "final")


def simple_kernel(E, name, nwg, body):
    E(kernel_header(name))
    end = E.label("K_exit")
    E(f"s_cmp_ge_u32 s2, {nwg}\n s_cbranch_scc1 {end}")
    lane_setup(E); ws_srd(E)
    errs = body()
    E(end + ":\n s_endpgm")
    return errs

def oproj_kernel(E, name):
    def body():
        E(f"s_and_b32 s40, s2, 7\n s_bfe_u32 s41, s2, 0x10003\n s_lshr_b32 s42, s2, 4\n s_mov_b32 s43, 16\n s_mov_b32 s{G_N}, 4")
        return oproj_task(E, 40, 41, 42, 43, "", "", False)
    return simple_kernel(E, name, 256, body)

def follower_kernel(E, name):
    def body():
        E(f"s_and_b32 s40, s2, 7\n s_bfe_u32 s41, s2, 0x10003\n s_lshr_b32 s42, s2, 4\n s_mov_b32 s43, 16\n s_mov_b32 s{G_N}, 4")
        return follower_task(E, 40, 41, 42, 43, "", "")
    return simple_kernel(E, name, 256, body)

def final_kernel(E, name):
    def body():
        E("s_lshr_b32 s40, s2, 2\n s_and_b32 s41, s2, 3")
        return final_task(E, 40, 41, "")
    return simple_kernel(E, name, 256, body)
```

```python
import math, struct
from emit import *
from layout import *

def fbits(x):
    return struct.unpack("<I", struct.pack("<f", x))[0]

L_MEM, L_KX, L_VX, L_QM, L_KM, L_OM, L_SEL, L_FLG, L_W = 0, 8192, 16384, 24576, 26880, 29184, 31232, 32256, 32768
IDX, MRD, L16, WL16, WOP, QW, TR, PS, MP, KD, VD, OW = range(12)
ONES = 12
AQ, AK, AV = 16, 20, 24
VX = 28
def KX(i): return 36 + 4 * i
def Q(i): return 68 + 4 * i
S_WS = 4
S_WQ, S_WK, S_WV, S_WO = 8, 40, 44, 48
S_H, S_W, S_STEP = 12, 13, 14
S_HI = 16
S_SCALE, S_CNT = 18, 19
S_PST0, S_PST1, S_IN0, S_IN1, S_MEM0, S_MEM1, S_MRE = 20, 21, 22, 23, 24, 25, 26
S_KD, S_VD, S_KE = 27, 28, 29
S_MK0, S_MK1, S_MV0, S_MV1 = 31, 32, 33, 34
S_PUB = 35
S_MB = 23
S_T0, S_T1, S_T2, S_T3 = 36, 37, 38, 39
S_DBG = 52
S_LO, S_RNG = 54, 55
S_MODE = 56
S_RDY, S_FLG, S_WSP = 30, 15, 58
S_KVF = 99
S_PH = 57
S_ONE = 2
S_ST = 60
POLL_MAX = 1 << 15

def ws(): return s(S_WS, 4)

P_OPS = [("q", 0), ("k", 0), ("v", 0), ("q", 1), ("k", 1), ("v", 1)]
J_OPS = [("v", 3), ("v", 5), ("k", 6), ("k", 9), ("k", 13), ("v", 6)]
O_OPS = [("o", 2, 2), ("o", 2, 3), ("o", 3, 2), ("o", 3, 3)]
LDS_OPS = P_OPS + J_OPS + O_OPS
ALL_QKV = [(m, i) for i in range(16) for m in "qkv"]
ALL_O = [("o", p, t) for p in range(4) for t in range(4)]
RES_OPS = [o for o in ALL_QKV + ALL_O if o not in LDS_OPS]
assert len(RES_OPS) == 48 and len(LDS_OPS) == 16
RES_REG = {o: 128 + 8 * n for n, o in enumerate(RES_OPS)}
LDS_SLOT = {o: n for n, o in enumerate(LDS_OPS)}


class Team:
    def __init__(self, E, stamps=False, **opt):
        self.opt = dict(swz=0, h1ack=None, h1pre=12, h1mid=12, h1nop=0, w1nop=0, h1mask=1, h2sets=4, h2cut=(0, 3, 6, 9), h2mask=1,
                        u0at=0, b3at=3, dma_at=(19, 25, 29, 33), m0_at=(10, 21, 27, 29), h1w64=1)
        self.opt.update(opt)
        self.E = E
        self.stamps = stamps
        self.diag = False
        self.merged = None
        self.nst = 0

    def stamp(self, name):
        if self.stamps and (self.stamps is True or name in self.stamps):
            self.E(f"s_memtime s[{S_ST + 2*self.nst}:{S_ST + 2*self.nst + 1}]")
            self.names.append(name)
            self.nst += 1
            assert self.nst <= 14

    def startup(self, fail):
        E = self.E
        E(f"s_load_dwordx4 s[60:63], s[0:1], {ARG['bwq']}")
        E(f"s_load_dwordx4 s[64:67], s[0:1], {ARG['bwv']}")
        E(f"s_load_dwordx4 s[68:71], s[0:1], {ARG['dbg']}")
        E(f"s_load_dwordx2 s[72:73], s[0:1], {ARG['mem0']}")
        E(f"v_lshrrev_b32 v1, 6, v0")
        E(f"v_and_b32 v20, 63, v0")
        E(f"v_readfirstlane_b32 s{S_W}, v1")
        E("s_waitcnt lgkmcnt(0)")
        E.srd(S_WQ, 60, 4 * MB); E.srd(S_WK, 62, 4 * MB); E.srd(S_WV, 64, 4 * MB); E.srd(S_WO, 66, 4 * MB)
        E.srd(S_WS, 70, WS_BYTES)
        E.srd(76, 72, 8192)
        E.srd(72, 68, 256)
        E(f"s_mov_b64 s[{S_DBG}:{S_DBG+1}], s[68:69]")
        if self.merged:
            E(f"s_mov_b64 s[{S_WSP}:{S_WSP+1}], s[70:71]")
            E(f"s_mul_i32 s{S_KVF}, s{S_H}, {7*128}\n s_add_u32 s{S_KVF}, s{S_KVF}, {FLAGS + self.merged['r1']*128}")
            E(f"s_lshl_b32 s{S_FLG}, s{S_H}, 7\n s_add_u32 s{S_FLG}, s{S_FLG}, {FLAGS + 224*128}")
        E("v_lshrrev_b32 v21, 4, v20\n v_and_b32 v22, 15, v20\n v_and_b32 v23, 1, v21\n v_lshrrev_b32 v24, 1, v21")
        E(f"v_lshlrev_b32 v{L16}, 4, v20")
        E(f"s_lshl_b32 s{S_T0}, s{S_W}, 10\n v_add_u32 v{WL16}, s{S_T0}, v{L16}")
        E(f"s_lshl_b32 s{S_T1}, s{S_W}, 15\n s_add_u32 s{S_T1}, s{S_T1}, {L_W}\n v_add_u32 v{WOP}, s{S_T1}, v{L16}")
        E(f"v_lshrrev_b32 v25, 2, v20\n v_lshlrev_b32 v25, 13, v25\n v_and_b32 v1, 3, v20\n v_lshl_add_u32 v25, v1, 4, v25")
        E(f"s_lshl_b32 s{S_T0}, s{S_W}, 6\n s_lshl_b32 s{S_T2}, s{S_H}, 8\n s_add_u32 s{S_T0}, s{S_T0}, s{S_T2}\n v_add_u32 v25, s{S_T0}, v25")
        E(f"v_lshrrev_b32 v26, 3, v20\n v_lshlrev_b32 v26, 10, v26\n v_and_b32 v1, 7, v20\n v_lshl_add_u32 v26, v1, 4, v26")
        E(f"s_lshl_b32 s{S_T0}, s{S_W}, 7\n s_lshl_b32 s{S_T2}, s{S_H}, 17\n s_add_u32 s{S_T0}, s{S_T0}, s{S_T2}\n v_add_u32 v26, s{S_T0}, v26")
        E("v_bfe_u32 v29, v20, 2, 1\n v_bfe_u32 v30, v20, 3, 1\n v_and_b32 v31, 3, v20")
        E("v_lshl_add_u32 v27, v24, 1, v29\n v_lshl_add_u32 v27, v27, 1, v23\n v_lshlrev_b32 v27, 7, v27\n v_lshl_add_u32 v27, v30, 5, v27\n v_lshl_add_u32 v27, v31, 3, v27")
        E(f"v_add_u32 v27, s{S_T1}, v27")
        E("v_lshl_add_u32 v28, v23, 2, v24\n v_lshl_add_u32 v28, v28, 2, v29\n v_lshlrev_b32 v28, 7, v28\n v_lshl_add_u32 v28, v30, 6, v28\n v_lshl_add_u32 v28, v31, 4, v28")
        E(f"v_add_u32 v28, s{S_T1}, v28")
        E(f"s_mov_b32 s{S_T3}, s{S_T1}")
        qkv_res = [o for o in RES_OPS if o[0] != "o"]; o_res = [o for o in RES_OPS if o[0] == "o"]
        order = qkv_res + o_res + LDS_OPS
        units = [order[i:i + 2] for i in range(0, 64, 2)]
        srd = dict(q=S_WQ, k=S_WK, v=S_WV)
        def issue(n):
            u = units[n]; base = (n % 8) * 4096
            if u[0][0] == "o":
                (_, p, t), (_, p2, t2) = u
                assert p == p2 and t2 == t + 1 and t % 2 == 0
                E(f"s_xor_b32 s{S_T0}, s{S_W}, {p}\n s_lshl_b32 s{S_T0}, s{S_T0}, 15")
                for j in range(4):
                    E(f"s_add_u32 m0, s{S_T3}, {base + j*1024}")
                    E(f"s_add_u32 s{S_T1}, s{S_T0}, {j*8192 + (t//2)*512}")
                    E.vmem(f"buffer_load_dwordx4 v26, {s(S_WO,4)}, s{S_T1} offen lds", tag=("u", n))
            else:
                for k, (m, i) in enumerate(u):
                    for j in range(2):
                        E(f"s_add_u32 m0, s{S_T3}, {base + k*2048 + j*1024}")
                        E(f"s_mov_b32 s{S_T1}, {(32*i + 16*j) * 8192}")
                        E.vmem(f"buffer_load_dwordx4 v25, {s(srd[m],4)}, s{S_T1} offen lds", tag=("u", n))
        def consume(n):
            u = units[n]; base = (n % 8) * 4096
            E.need(tags=[("u", n)])
            for k, o in enumerate(u):
                dst = RES_REG[o] if o in RES_REG else 64 + 8 * k
                for hi in range(2):
                    for lo in range(2):
                        if o[0] == "o":
                            E.ds(f"ds_read_b64_tr_b16 {r(dst + 4*hi + 2*lo, 2)}, v28 offset:{base + (8*hi + 2*lo)*128 + k*8}")
                        else:
                            E.ds(f"ds_read_b64_tr_b16 {r(dst + 4*hi + 2*lo, 2)}, v27 offset:{base + k*2048 + hi*1024 + lo*64}")
            E.drain(lg=True)
            if u[0] not in RES_REG:
                for k, o in enumerate(u):
                    assert LDS_SLOT[o] * 2048 == base + k * 2048
                    for hf in range(2):
                        E.ds(f"ds_write_b128 v{WOP}, {v(64 + 8*k + 4*hf, 4)} offset:{base + k*2048 + hf*1024}")
                E.drain(lg=True)
        for n in range(2):
            issue(n)
        E(f"v_mov_b32 v{IDX}, 0x4444\n v_mov_b32 v1, 0xeeee\n v_cmp_lt_u32 vcc, 7, v22\n s_nop 1\n v_cndmask_b32 v32, v{IDX}, v1, vcc")
        E(f"v_mov_b32 v{IDX}, v32")
        E(f"v_and_b32 v32, 7, v20\n v_lshlrev_b32 v32, 4, v32\n v_lshl_add_u32 v{MRD}, v21, 7, v32")
        E(f"s_lshl_b32 s{S_T0}, s{S_W}, 9\n v_add_u32 v{OW}, s{S_T0}, v{MRD}")
        E(f"v_lshl_add_u32 v33, v24, 4, v22\n s_lshl_b32 s{S_T0}, s{S_W}, 5\n v_add_u32 v33, s{S_T0}, v33\n v_lshlrev_b32 v33, 3, v33")
        E(f"v_mul_u32_u24 v34, {MHS}, v23\n v_add_u32 v{QW}, v33, v34")
        E(f"v_bfe_u32 v33, v20, 2, 2\n v_lshl_add_u32 v33, v23, 2, v33\n v_lshl_add_u32 v33, v24, 4, v33\n v_lshlrev_b32 v33, 3, v33")
        E(f"v_and_b32 v34, 1, v20\n v_mul_u32_u24 v34, {MHS}, v34\n v_add_u32 v{TR}, v33, v34")
        E(f"s_lshl_b32 s{S_T0}, s{S_W}, 3\n v_lshrrev_b32 v33, 3, v20\n v_add_u32 v33, s{S_T0}, v33")
        E(f"v_mul_u32_u24 v34, {self.opt['swz']}, v33\n v_add_u32 v34, s{S_H}, v34\n v_and_b32 v34, 31, v34")
        E(f"v_lshl_add_u32 v33, v33, 13, v32\n v_lshl_add_u32 v{PS}, v34, 7, v33")
        E(f"s_lshr_b32 s{S_T0}, s{S_H}, 2\n s_lshl_b32 s{S_T0}, s{S_T0}, 9\n s_and_b32 s{S_T1}, s{S_H}, 1\n s_lshl_b32 s{S_T1}, s{S_T1}, 8\n s_add_u32 s{S_T0}, s{S_T0}, s{S_T1}")
        E(f"s_and_b32 s{S_T1}, s{S_H}, 2\n s_lshl_b32 s{S_T1}, s{S_T1}, 5\n s_add_u32 s{S_T0}, s{S_T0}, s{S_T1}")
        E(f"v_lshlrev_b32 v33, 4, v21\n v_lshl_add_u32 v33, v31, 2, v33\n v_lshl_add_u32 v33, v29, 7, v33\n v_lshl_add_u32 v33, v30, 30, v33\n v_add_u32 v{MP}, s{S_T0}, v33")
        E(f"s_lshr_b32 s{S_T0}, s{S_H}, 2\n s_lshl_b32 s{S_T0}, s{S_T0}, 6\n s_and_b32 s{S_T1}, s{S_H}, 1\n s_lshl_b32 s{S_T1}, s{S_T1}, 5\n s_add_u32 s{S_T0}, s{S_T0}, s{S_T1}")
        E(f"s_and_b32 s{S_T1}, s{S_H}, 2\n s_lshl_b32 s{S_T1}, s{S_T1}, 11\n s_add_u32 s{S_T0}, s{S_T0}, s{S_T1}")
        E(f"v_lshlrev_b32 v35, 10, v21\n v_lshl_add_u32 v35, v31, 1, v35\n v_lshl_add_u32 v35, v29, 4, v35\n v_add_u32 v35, s{S_T0}, v35")
        for k in range(4):
            E.vmem(f"buffer_load_ushort v{44+k}, v35, s[76:79], 0 offen offset:{(k >> 1)*512 + (k & 1)*8}")
        E("v_lshlrev_b32 v33, 4, v29\n v_mov_b32 v34, 0x3f80\n v_lshlrev_b32 v33, v33, v34\n v_and_b32 v34, 1, v20\n v_lshl_add_u32 v34, v34, 1, v30")
        for a_ in range(4):
            E(f"v_cmp_eq_u32 vcc, {a_}, v34\n s_nop 1\n v_cndmask_b32 v{48+a_}, 0, v33, vcc")
        E.ds(f"ds_write_b128 v{L16}, v[48:51] offset:{L_SEL}")
        E(f"v_lshlrev_b32 v33, 9, v21\n s_lshl_b32 s{S_T0}, s{S_W}, 11\n v_add_u32 v33, s{S_T0}, v33")
        E(f"v_lshl_add_u32 v{VD}, v22, 4, v33")
        E(f"v_lshl_add_u32 v33, v30, 8, v33\n v_add_u32 v{KD}, v33, v32")
        E(f"s_mov_b32 s{S_ONE}, 0x3f803f80\n s_mov_b32 s{S_ONE+1}, 0x3f803f80")
        E(f"s_mov_b32 s{S_HI}, 0\n s_mov_b32 s{S_HI+1}, -1")
        E(f"s_mov_b32 s{S_SCALE}, {hex(fbits(math.log2(math.e) / math.sqrt(128.0)))}")
        lo, hi = fbits(2.0 ** -32), fbits(2.0 ** 48)
        E(f"s_mov_b32 s{S_LO}, {hex(lo)}\n s_mov_b32 s{S_RNG}, {hex(hi - lo)}")
        E(f"s_lshl_b32 s{S_T0}, s{S_W}, 10")
        E(f"s_add_u32 s{S_MK0}, s{S_T0}, {L_KX}\n s_add_u32 s{S_MK1}, s{S_T0}, {L_KX + 4096 - 128}")
        E(f"s_add_u32 s{S_MV0}, s{S_T0}, {L_VX}\n s_add_u32 s{S_MV1}, s{S_T0}, {L_VX + 4096 - 256}")
        E(f"s_lshl_b32 s{S_T0}, s{S_H}, 19\n s_add_u32 s{S_KD}, s{S_T0}, {KB}\n s_add_u32 s{S_VD}, s{S_T0}, {VB}")
        E(f"s_mul_i32 s{S_T0}, s{S_H}, {KMB}\n s_add_u32 s{S_KE}, s{S_T0}, {KM}")
        E(f"s_lshl_b32 s{S_T0}, s{S_H}, 13\n s_add_u32 s{S_IN0}, s{S_T0}, {INBOX}\n s_add_u32 s{S_IN1}, s{S_T0}, {INBOX + 4096}")
        E(f"s_mov_b32 s{S_PST0}, {INBOX}\n s_mov_b32 s{S_PST1}, {INBOX + 4096}")
        for i in range(4): E(f"v_mov_b32 v{40+i}, -1")
        E(f"s_lshl_b32 s{S_T0}, s{S_W}, 13\n s_add_u32 s{S_T0}, s{S_T0}, {MEMS}\n s_add_u32 s{S_T1}, s{S_T0}, 4096")
        for ins in (f"buffer_store_dwordx4 v[40:43], v{WL16}, {ws()}, s{S_IN0} offen sc1", f"buffer_store_dwordx4 v[40:43], v{WL16}, {ws()}, s{S_IN1} offen sc1",
                    f"buffer_store_dword v40, v{MP}, {ws()}, s{S_T0} offen sc1", f"buffer_store_dword v40, v{MP}, {ws()}, s{S_T1} offen sc1"):
            E.vmem(ins, tag="init")
        if self.merged:
            E(f"v_mov_b32 v52, 0\n v_min_u32 v53, 1, v{WL16}\n v_lshlrev_b32 v53, 30, v53")
            E.vmem(f"buffer_store_dword v52, v53, {ws()}, s{S_FLG} offen sc1", tag="init")
        for n in range(2, 8):
            issue(n)
        for n in range(32):
            consume(n)
            if n + 8 < 32:
                issue(n + 8)
            if self.diag and n in (0, 12, 23): tmark(E, {0: 2, 12: 3, 23: 4}[n])
            if n == 2:
                assert not E.need("v[44:47]", tags=["init"])
                E("s_barrier")
                skip = E.label("T_arm")
                E(f"s_cmp_lg_u32 s{S_W}, 0\n s_cbranch_scc1 {skip}")
                E(f"s_getreg_b32 s{S_T0}, hwreg(HW_REG_XCC_ID, 0, 3)\n s_lshl_b32 s{S_T0}, s{S_T0}, 3\n s_lshl_b64 s[60:61], 1, s{S_T0}\n s_mov_b32 s62, 1")
                E(f"s_atomic_add_x2 s[60:61], s[{S_DBG}:{S_DBG+1}], 0")
                if self.merged: E(f"s_atomic_add s62, s[{S_DBG}:{S_DBG+1}], {self.merged['init_off']}")
                E("v_lshl_or_b32 v44, v45, 16, v44\n v_lshl_or_b32 v46, v47, 16, v46\n v_min_u32 v44, -2, v44\n v_min_u32 v46, -2, v46")
                E(f"s_mov_b32 s{S_T0}, {MEMS}\n s_mov_b32 s{S_T1}, {MEMS + 4096}")
                E(f"buffer_store_dword v44, v{MP}, {ws()}, s{S_T0} offen sc1\n buffer_store_dword v46, v{MP}, {ws()}, s{S_T1} offen sc1")
                E(skip + ":")
            ldc = ["buffer_load_dwordx2 v[54:55], off, s[72:75], 0 sc1"]
            if self.merged: ldc.append(f"buffer_load_dword v56, off, s[72:75], 0 offset:{self.merged['init_off']} sc1")
            if n == 14:
                for x in ldc: E.vmem(x)
            if n == 23:
                assert not E.need("v[54:56]")
                lp, go = E.label("T_arr"), E.label("T_arrgo")
                E(f"s_mov_b32 s{S_CNT}, 0\n s_branch {go}")
                E(lp + ":")
                E(f"s_add_u32 s{S_CNT}, s{S_CNT}, 1\n s_cmp_gt_u32 s{S_CNT}, {POLL_MAX}\n s_cbranch_scc1 {fail}")
                for x in ldc: E(x)
                E("s_waitcnt vmcnt(0)")
                E(go + ":")
                E(f"v_sad_u8 v57, v54, 0, 0\n v_sad_u8 v57, v55, 0, v57\n v_or_b32 v58, v54, v55\n v_cmp_gt_u32 vcc, 32, v57\n s_cbranch_vccnz {lp}")
                if self.merged: E(f"v_cmp_gt_u32 vcc, 0x100, v56\n s_cbranch_vccnz {lp}")
                E(f"v_readfirstlane_b32 s{S_T0}, v58\n s_nop 0\n s_and_b32 s{S_T0}, s{S_T0}, 0x20202020\n s_cselect_b32 s{S_MODE}, 0, 1")
                if self.merged:
                    E(f"s_mov_b32 s{S_STEP}, -1")
                    self.wait_kv(fail)
                for x in self.dma_list():
                    E(x[0]); E("s_nop 0"); E.vmem(x[1], tag="dma")
                self.dma_adv()
                E(f"s_lshl_b32 s{S_T0}, s{S_H}, 10\n s_add_u32 s{S_T0}, s{S_T0}, {MEMS}")
                E.vmem(f"buffer_load_dwordx4 v[40:43], v{L16}, {ws()}, s{S_T0} offen sc1")
        if self.diag: tmark(E, 5)
        E.drain(vm=True, lg=True)
        E("s_barrier")
        self.prefetch_p(); self.prefetch_vx(); self.prefetch_kx()
        E(f"s_and_b32 s{S_T0}, s{S_W}, 1\n s_lshl_b32 s{S_T0}, s{S_T0}, 12\n s_add_u32 s{S_IN0}, s{S_IN0}, s{S_T0}\n s_add_u32 s{S_MB}, s{S_T0}, {MEMS}")
        E(f"s_mov_b32 s{S_STEP}, -1")
        self.step_scalars()
        E.drain(lg=True)

    def wait_kv(self, fail):
        E = self.E; M = self.merged
        lp, ok = E.label("T_kv"), E.label("T_kvok")
        E(f"s_mov_b32 s{S_CNT}, 0")
        E(f"s_branch {ok}")
        E(lp + ":")
        E("s_sleep 4")
        E(f"s_add_u32 s{S_CNT}, s{S_CNT}, 1\n s_cmp_gt_u32 s{S_CNT}, {POLL_MAX}\n s_cbranch_scc1 {fail}")
        E(ok + ":")
        E(f"s_add_u32 s{S_T3}, s{S_KVF}, {(M['r2'] - M['r1'])*128}\n s_mov_b32 s{S_T2}, 0\n s_mov_b32 s{S_T1}, 0")
        E(f"s_atomic_or s{S_T2}, s[{S_WSP}:{S_WSP+1}], s{S_KVF} glc\n s_atomic_or s{S_T1}, s[{S_WSP}:{S_WSP+1}], s{S_T3} glc\n s_waitcnt lgkmcnt(0)")
        self.kv_ready()
        E(f"s_cmp_ge_i32 s{S_STEP}, s{S_RDY}\n s_cbranch_scc1 {lp}")

    def kv_ready(self):
        E = self.E; M = self.merged
        E(f"s_add_u32 s{S_T1}, s{S_T1}, {M['n1']}\n s_cmp_ge_u32 s{S_T2}, {M['n1']}\n s_cselect_b32 s{S_RDY}, s{S_T1}, s{S_T2}")
        E(f"s_cmp_ge_u32 s{S_RDY}, 64\n s_cselect_b32 s{S_RDY}, 100, s{S_RDY}\n s_sub_u32 s{S_RDY}, s{S_RDY}, 1")

    def kv_refresh(self):
        E = self.E
        E(f"ds_read_b64 {v(KX(2),2)}, v{L16} offset:{L_FLG}\n s_waitcnt lgkmcnt(0)")
        E(f"v_readfirstlane_b32 s{S_T2}, v{KX(2)}\n v_readfirstlane_b32 s{S_T1}, v{KX(2)+1}\n s_nop 0")
        self.kv_ready()

    def dma_list(self):
        return [(f"s_mov_b32 m0, s{S_MK0}", f"buffer_load_dwordx4 v{KD}, {ws()}, s{S_KD} offen sc1 lds"),
                (f"s_mov_b32 m0, s{S_MK1}", f"buffer_load_dwordx4 v{KD}, {ws()}, s{S_KD} offen offset:128 sc1 lds"),
                (f"s_mov_b32 m0, s{S_MV0}", f"buffer_load_dwordx4 v{VD}, {ws()}, s{S_VD} offen sc1 lds"),
                (f"s_mov_b32 m0, s{S_MV1}", f"buffer_load_dwordx4 v{VD}, {ws()}, s{S_VD} offen offset:256 sc1 lds")]

    def dma_adv(self):
        self.E(f"s_add_u32 s{S_KD}, s{S_KD}, 8192\n s_add_u32 s{S_VD}, s{S_VD}, 8192")

    def rd_op(self, o, half, reg):
        return f"ds_read_b128 {v(reg + 4*half, 4)}, v{WOP} offset:{LDS_SLOT[o]*2048 + half*1024}"

    def prefetch_p(self):
        for n, o in enumerate(P_OPS):
            for hf in range(2):
                self.E.ds(self.rd_op(o, hf, Q(2 * n)))

    def prefetch_vx(self):
        for j in range(2):
            self.E.ds(f"ds_read_b128 {v(VX + 4*j, 4)}, v{WL16} offset:{L_VX + 4096*j}")

    def prefetch_kx(self):
        for f in range(8):
            self.E.ds(f"ds_read_b128 {v(KX(f), 4)}, v{L16} offset:{L_KX + 1024*f}")

    def zero_acc(self):
        for i in range(6):
            self.E(f"v_mov_b64 {v(AQ + 2*i, 2)}, 0")

    def scalar_list(self):
        return [f"s_and_b32 s{S_PH}, s{S_STEP}, 1", f"s_and_b32 s{S_T0}, s{S_STEP}, 3", f"s_lshl_b32 s{S_T0}, s{S_T0}, 13",
                f"s_add_u32 s{S_MRE}, s{S_T0}, s{S_MB}", f"s_add_u32 s{S_T0}, s{S_T0}, 8192", f"s_and_b32 s{S_T0}, s{S_T0}, 0x7fff",
                f"s_add_u32 s{S_MEM0}, s{S_T0}, {MEMS}", f"s_add_u32 s{S_MEM1}, s{S_T0}, {MEMS + 4096}",
                f"s_add_u32 s{S_PUB}, s{S_T0}, s{S_MB}"]

    def step_scalars(self):
        for x in self.scalar_list(): self.E(x)

    def run(self, prog, first_need=True):
        E = self.E
        if first_need:
            E.need(*prog[0][1])
        for n, (ins, _, fill) in enumerate(prog):
            E(ins)
            toks = list(prog[n + 1][1]) if n + 1 < len(prog) else []
            tags = []
            for f in fill:
                if isinstance(f, tuple) and f[0] == "need":
                    toks += list(f[1]); tags += list(f[2])
            E.need(*toks, tags=tags)
            for f in fill:
                self.put(f)

    def put(self, f):
        E = self.E
        if callable(f):
            f()
        elif isinstance(f, tuple):
            if f[0] == "need":
                return
            (E.ds if f[0].startswith("ds_") else E.vmem)(f[0], tag=f[1])
        elif f.startswith("ds_"):
            E.ds(f)
        elif f.startswith("buffer_"):
            E.vmem(f)
        else:
            E(f)

    def loop(self, mode, done, fail, xsc=""):
        E = self.E
        O = self.opt
        sc = " sc1" if mode else ""
        self.nst = 0; self.names = []
        cvt = lambda d, a0: f"v_cvt_pk_bf16_f32 v{d}, v{a0}, v{a0+1}"
        zero = lambda d: f"v_mov_b64 {v(d,2)}, 0"
        st = lambda name: (lambda: self.stamp(name))
        def smf(d, a_, b_, first): return f"v_mfma_f32_16x16x32_bf16 {v(d,4)}, {v(a_,4)}, {v(b_,4)}, {'0' if first else v(d,4)}"
        cntchk = f"s_add_u32 s{S_CNT}, s{S_CNT}, 1\n s_cmp_gt_u32 s{S_CNT}, {POLL_MAX}\n s_cbranch_scc1 {fail}"
        NS = O["h2sets"]
        H0, CK, H1 = Q(14), Q(13) + 2, ONES
        ld0 = f"buffer_load_dwordx4 {v(H0,4)}, v{WL16}, {ws()}, s{S_MEM0} offen sc1"
        ld1 = f"buffer_load_dwordx4 {v(H1,4)}, v{WL16}, {ws()}, s{S_MEM1} offen sc1"
        chk = lambda x, t: [f"v_max3_u32 v{t}, v{x}, v{x+1}, v{x+2}", f"v_max_u32 v{t}, v{t}, v{x+3}", f"v_cmp_eq_u32 vcc, -1, v{t}"]
        top, retry = E.label("T_loop"), E.label("T_retry")
        E(f"s_mov_b32 s{S_CNT}, 0")
        self.zero_acc()
        for k in range(NS): E(ld0)
        E(f"s_branch {top}")
        E(".p2align 6")
        E(retry + ":")
        if O["h2mask"]: E("s_mov_b64 exec, vcc")
        E(ld0)
        if O["h2mask"]: E("s_mov_b64 exec, -1")
        E(cntchk)
        E(top + ":")
        E(f"s_waitcnt vmcnt({NS - 1})")
        body0 = len(E.lines)
        for x in chk(H0, CK): E(x)
        E(f"s_cbranch_vccnz {retry}")
        E(f"ds_write_b128 v{WL16}, {v(H0,4)} offset:{L_MEM}")
        E.vm = [{"poll"}]
        E.vmem(ld1)
        if self.stamps: E(f"s_mov_b32 s95, s{S_CNT}")
        self.stamp("hop2")
        E(f"s_add_u32 s{S_STEP}, s{S_STEP}, 1")
        E.drain(lg=True)
        E("s_barrier")
        FR = {0: 12, 1: 13, 2: 14, 3: 4, 4: 5, 5: 12, 6: 6, 7: 7, 8: 8, 9: 9, 10: 10, 11: 11, 12: 13, 13: 14, 14: 4, 15: 5}
        def F(i): return f"ds_read_b128 {v(Q(FR[i]),4)}, v{MRD} offset:{L_MEM + 512*i}"
        for i in range(2):
            E.ds(F(i))
        self.stamp("B1")
        opreg = dict(RES_REG)
        for n, o in enumerate(P_OPS): opreg[o] = Q(2 * n)
        for n, o in enumerate(J_OPS): opreg[o] = Q(2 * (n & 1))
        acc = dict(q=AQ, k=AK, v=AV)
        def sm(m, i):
            return (f"v_smfmac_f32_16x16x64_bf16 {v(acc[m],4)}, {v(Q(FR[i]),4)}, {r(opreg[(m,i)],8)}, v{IDX}",
                    (v(Q(FR[i]), 4), r(opreg[(m, i)], 8)))
        seq = [(m, i) for i in range(6) for m in "qkv"] + [(m, i) for m in "qkv" for i in range(6, 16)]
        J = lambda n, hf: self.rd_op(J_OPS[n], hf, Q(2 * (n & 1)))
        PQ, PK = Q(12), Q(12) + 2
        PV_ = PQ
        mul = lambda i: f"v_mul_f32 v{AQ+i}, s{S_SCALE}, v{AQ+i}"
        c1 = chk(H1, Q(6))
        dma = self.dma_list()
        sal = self.scalar_list()
        late, lateok = E.label("T_late"), E.label("T_lateok")
        trq = [f"ds_read_b64_tr_b16 {v(Q(kk) + 2*hi, 2)}, v{TR} offset:{L_QM + (32*kk + 8*hi)*8}" for kk in range(4) for hi in range(2)]
        trk = [f"ds_read_b64_tr_b16 {v(Q(6+kk) + 2*hi, 2)}, v{TR} offset:{L_KM + (32*kk + 8*hi)*8}" for kk in range(4) for hi in range(2)]
        tr = trq + trk
        WA = [Q(10), Q(11), KX(0), KX(1)]
        fill = {n: [] for n in range(48)}
        for n, x in {0: J(0,0), 1: F(2), 2: F(3), 3: J(0,1), 4: F(4), 5: F(5), 9: J(1,0), 10: J(1,1), 11: F(6), 12: F(7),
                     22: J(2,0), 23: J(2,1), 24: J(3,0), 26: J(3,1), 28: J(4,0), 30: J(4,1), 31: J(5,0), 32: J(5,1)}.items():
            fill[n].append(x)
        for i in range(8, 16): fill[6 + i].append(F(i))
        fill[1] = [("need", [], ["poll"])] + fill[1]
        fill[3] = [("need", [v(H1, 4)], [])] + fill[3] + [c1[0]]
        fill[4].append(c1[1]); fill[5].append(c1[2])
        if O["h1w64"]:
            fill[6] = [f"s_cbranch_vccnz {late}", lateok + ":", f"ds_write_b64 v{WL16}, {v(H1,2)} offset:{L_MEM + 4096}"]
            fill[8] = [(f"ds_write_b64 v{WL16}, {v(H1+2,2)} offset:{L_MEM + 4096 + 8}", "h1w")]
        else:
            fill[6] = [f"s_cbranch_vccnz {late}", lateok + ":", (f"ds_write_b128 v{WL16}, {v(H1,4)} offset:{L_MEM + 4096}", "h1w")]
        fill[13] = [("need", [], ["h1w"]), "s_barrier"]
        fill[14].append(f"v_mov_b64 {v(ONES,2)}, s[{S_ONE}:{S_ONE+1}]"); fill[15].append(f"v_mov_b64 {v(ONES+2,2)}, s[{S_ONE}:{S_ONE+1}]")
        for k, n in enumerate(O["dma_at"]):
            fill[O["m0_at"][k]].append(dma[k][0]); fill[n].append((dma[k][1], "dma"))
        fill[7] += sal[0:3]; fill[8] += sal[3:4]; fill[9] = sal[4:5] + fill[9] + sal[5:6]; fill[16] += sal[6:7]; fill[17] += sal[7:8]; fill[18] += sal[8:9]
        if self.merged:
            kvw, kvb = E.label("T_kvw"), E.label("T_kvb")
            fill[11].append(f"s_cmp_ge_i32 s{S_STEP}, s{S_RDY}")
            fill[12] = [f"s_cbranch_scc1 {kvw}", kvb + ":"] + fill[12]
            fill[20].append(f"v_mov_b32 v{PK}, s{S_STEP}")
            fill[22].append(f"v_min_u32 v{PK+1}, 1, v{WL16}"); fill[23].append(f"v_lshlrev_b32 v{PK+1}, 30, v{PK+1}")
            fill[27].insert(0, f"buffer_store_dword v{PK}, v{PK+1}, {ws()}, s{S_FLG} offen sc1")
            fill[28].append(f"v_and_b32 v{PK}, 16, v{L16}"); fill[29].append(f"v_mul_u32_u24 v{PK}, {(self.merged['r2'] - self.merged['r1'])*8}, v{PK}")
            fill[34].append(f"s_mov_b32 m0, {L_FLG}"); fill[35].append(f"buffer_load_dword v{PK}, {ws()}, s{S_KVF} offen sc1 lds")
        for k in range(4): fill[30 + k].append(mul(k))
        fill[34].append(cvt(PQ, AQ)); fill[35].append(cvt(PQ + 1, AQ + 2))
        fill[36] += [(f"ds_write_b64 v{QW}, {v(PQ,2)} offset:{L_QM}", "qw")]
        adv = 0 if O.get("noadv") else 8192
        fill[37] += [f"s_add_u32 s{S_KD}, s{S_KD}, {adv}", f"s_add_u32 s{S_VD}, s{S_VD}, {adv}", st("qk")]
        if self.stamps: fill[37] += [self.dump_stamps, st("dump")]
        fill[39] += ["s_nop 1", cvt(PK, AK), cvt(PK + 1, AK + 2)]
        fill[40] += [(f"ds_write_b64 v{QW}, {v(PK,2)} offset:{L_KM}", "kw"), f"buffer_store_dwordx2 {v(PK,2)}, v{QW}, {ws()}, s{S_KE} offen{xsc}"]
        zl = [zero(WA[0]), zero(WA[0] + 2), zero(WA[1]), zero(WA[1] + 2)]
        fill[41] += [("need", [], ["qw"]), "s_barrier", tr[0]]
        fill[42] += ["s_nop 0"] + tr[1:3]; fill[43] += ["s_nop 0"] + tr[3:5]; fill[44] += ["s_nop 0"] + tr[5:7]
        fill[45] += [("need", [], ["kw"]), tr[7], "s_barrier"]
        fill[46] += ["s_nop 0"] + tr[8:10]
        fill[47] += tr[10:12] + [st("B2")]
        t0 = 12
        for n in O.get("pst", ()): fill[n].insert(0, st(f"n{n}"))
        prog = [sm(m, i) + (fill[n],) for n, (m, i) in enumerate(seq)]
        E.need(*prog[0][1])
        SX0, SX1, SM_ = AQ, AK, Q(13)
        TMP, PX, PM, PMM, LA, O0, O1 = Q(14), KX(2), Q(4), KX(3), Q(5), AV, Q(6)
        sq = [(SX0, KX(kk), Q(kk), kk == 0) for kk in range(4)] + [(SM_, Q(6+kk), Q(kk), kk == 0) for kk in range(4)] \
            + [(SX1, KX(4+kk), Q(kk), kk == 0) for kk in range(4)]
        ex = lambda i, src: f"v_exp_f32 v{TMP+i}, v{src+i}"
        cnds = [f"v_cndmask_b32 v{PMM}, v{PM}, 0, s[{S_HI}:{S_HI+1}]", f"v_cndmask_b32 v{PMM+1}, v{PM+1}, 0, s[{S_HI}:{S_HI+1}]",
                f"v_cndmask_b32 v{PMM+2}, 0, v{PM}, s[{S_HI}:{S_HI+1}]", f"v_cndmask_b32 v{PMM+3}, 0, v{PM+1}, s[{S_HI}:{S_HI+1}]"]
        sf = {n: [] for n in range(12)}
        sf[0] += tr[12:14]; sf[1] += tr[14:16]
        sf[2] += [cvt(PV_, AV), cvt(PV_ + 1, AV + 2)]
        sf[3] += [f"buffer_store_dwordx2 {v(PV_,2)}, v{QW}, {ws()}, s{S_KE} offen offset:{2*MHS}{xsc}", zl[0]]
        sf[4] += zl[1:3]
        sf[5] += [zl[3], zero(WA[2])]
        sf[6] += [ex(0, SX0)]
        sf[7] += [f"s_add_u32 s{S_KE}, s{S_KE}, {0 if O.get('noexp') else 32*KMB}", ex(1, SX0)]
        sf[8] += [f"s_cmp_eq_u32 s{S_STEP}, 63", ex(2, SX0)]
        sf[9] += [f"s_cbranch_scc1 {done}", ex(3, SX0)]
        sf[10] += [cvt(PX, TMP), cvt(PX + 1, TMP + 2)]
        sf[11] += [ex(0, SM_), ex(1, SM_), ex(2, SM_), ex(3, SM_), cvt(PM, TMP), cvt(PM + 1, TMP + 2)] + cnds + [st("S"), ex(0, SX1)]
        prog += [(smf(*x), (v(x[1], 4), v(x[2], 4)), sf[n]) for n, x in enumerate(sq)]
        m16 = lambda d, a_, b_: f"v_mfma_f32_16x16x16_bf16 {v(d,4)}, {v(a_,2)}, {v(b_,2)}, 0"
        pvm = [m16(LA, ONES, PMM), m16(O0, PV_, PMM), m16(O1, PV_, PMM + 2)]
        pvx = [smf(LA, ONES, PX, False), smf(O0, VX, PX, False), smf(O1, VX + 4, PX, False)]
        XA = [PM + 2, PM + 3, Q(1)]
        slow, back = E.label("T_slow"), E.label("T_back")
        prog += [(pvm[0], (), [ex(1, SX1)]), (pvm[1], (), [ex(2, SX1)]),
                 (pvm[2], (), [ex(3, SX1), cvt(PX + 2, TMP), cvt(PX + 3, TMP + 2), zero(WA[2] + 2), zero(WA[3])]),
                 (pvx[0], (), [f"v_xor_b32 v{XA[0]}, 512, v{OW}", f"v_xor_b32 v{XA[1]}, 1024, v{OW}"]),
                 (pvx[1], (), [f"v_xor_b32 v{XA[2]}, 1536, v{OW}", zero(WA[3] + 2)]),
                 (pvx[2], (), ["s_nop 1", f"v_rcp_f32 v{LA+1}, v{LA}", f"v_subrev_u32 v{TMP}, s{S_LO}, v{LA}",
                               f"v_cmp_le_u32 vcc, s{S_RNG}, v{TMP}", f"s_cbranch_vccnz {slow}", back + ":"])]
        self.run(prog, first_need=False)
        OWN = Q(7)
        for i in range(4): E(f"v_mul_f32 v{O0+i}, v{LA+1}, v{O0+i}")
        E(cvt(OWN, O0)); E(cvt(OWN+1, O0+2))
        for i in range(2): E(f"v_pk_mul_f32 {v(O1+2*i,2)}, {v(O1+2*i,2)}, {v(LA,2)} op_sel:[0,1] op_sel_hi:[1,1]")
        E(cvt(OWN+2, O1)); E(cvt(OWN+3, O1+2))
        E.ds(f"ds_write_b128 v{OW}, {v(OWN,4)} offset:{L_OM}", tag="ow")
        self.stamp("PV")
        E("s_nop 0")
        OF = [OWN, Q(8), Q(9), Q(0)]
        SEL, RD, TG = Q(12), Q(13), KX(3)
        U0, U1 = AQ, AK
        OREG = [KX(4), KX(6), Q(2), VX]
        for n, o in enumerate(O_OPS): opreg[o] = OREG[n]
        rdo = [self.rd_op(o, hf, OREG[n]) for n, o in enumerate(O_OPS) for hf in range(2)]
        so = lambda p, t: (f"v_smfmac_f32_16x16x64_bf16 {v(WA[t],4)}, {v(OF[p],4)}, {r(opreg[('o',p,t)],8)}, v{IDX}",
                           (v(OF[p], 4), r(opreg[('o', p, t)], 8)))
        tag = lambda x: f"v_bfi_b32 v{x}, 1, s{S_PH}, v{x}"
        oq = [(0, t) for t in range(4)] + [(p, t) for p in (1, 2, 3) for t in (0, 1)] + [(p, t) for p in (1, 2, 3) for t in (2, 3)]
        of = {n: [] for n in range(16)}
        nb3 = O["b3at"]
        of[nb3] = [("need", [], ["ow"]), "s_barrier"] + [f"ds_read_b128 {v(OF[p],4)}, v{XA[p-1]} offset:{L_OM}" for p in (1, 2, 3)] + [st("B3")]
        of[3] += [lambda: E.need(v(OF[1], 4))]
        of[0] += rdo[0:1]; of[1] += rdo[1:2]
        for k in range(6): of[4 + k] += rdo[2 + k:3 + k]
        of[10] += [f"ds_read_b128 {v(SEL,4)}, v{L16} offset:{L_SEL}"]
        u0v = [cvt(U0, WA[0]), cvt(U0+1, WA[0]+2), tag(U0), cvt(U0+2, WA[1]), cvt(U0+3, WA[1]+2)]
        u0s = [f"buffer_store_dwordx4 {v(U0,4)}, v{PS}, {ws()}, s{S_PST0} offen{sc}", st("u0")]
        if O["u0at"] == 0:
            of[11] += u0v; of[12] += u0s
        else:
            of[10] += ["s_nop 1"] + u0v[:1]; of[11] += u0v[1:2]; of[12] += u0v[2:4]; of[13] += u0v[4:]; of[14] += u0s
        of[15] += ["s_nop 4", cvt(U1, WA[2]), cvt(U1+1, WA[2]+2), tag(U1), cvt(U1+2, WA[3]), cvt(U1+3, WA[3]+2),
                   f"buffer_store_dwordx4 {v(U1,4)}, v{PS}, {ws()}, s{S_PST1} offen{sc}", st("Wo")]
        self.run([so(p, t) + (of[n],) for n, (p, t) in enumerate(oq)])
        if O.get("acku"):
            E("s_waitcnt vmcnt(0)"); self.stamp("acku1")
        pre = ["s_waitcnt vmcnt(0)"] + E.lines[body0:]
        def gather(base):
            return [f"buffer_load_dwordx4 {v(KX(base + i),4)}, v{L16}, {ws()}, s{S_IN0} offen offset:{i*1024} sc1" for i in range(4)]
        def reduce_(base, after):
            for i in range(4):
                E(f"s_waitcnt vmcnt({3 - i + after})")
                E(smf(RD, SEL, KX(base + i), i == 0))
                if i == 0: E(f"v_xor_b32 v{TG}, s{S_PH}, v{KX(base)}")
                else: E(f"v_bitop3_b32 v{TG}, v{TG}, v{KX(base + i)}, s{S_PH} bitop3:0xf6")
            E(f"v_and_b32 v{TG}, 1, v{TG}\n v_cmp_ne_u32 vcc, 0, v{TG}")
        def finish():
            E("s_nop 3")
            for i in range(2):
                E(f"v_add_f32_dpp v{RD+i}, v{RD+i}, v{RD+i} row_ror:8 row_mask:0xf bank_mask:0xf")
            E(cvt(TG, RD))
            E(f"v_min_u32 v{TG}, -2, v{TG}")
        def publish():
            E(f"buffer_store_dword v{TG}, v{MP}, {ws()}, s{S_PUB} offen{sc}")
            E(f"buffer_store_dword v{TG+1}, v{MP}, {ws()}, s{S_MRE} offen{sc}")
            if self.stamps: E(f"s_mov_b32 s94, s{S_CNT}")
        def nops(n):
            for k in range(0, n, 16): E(f"s_nop {min(16, n - k) - 1}")
        w23, join = E.label("T_w23"), E.label("T_join")
        errs = []
        pl = [self.rd_op(o, hf, Q(2 * n)) for n, o in enumerate(P_OPS) for hf in range(2)]
        rds = [f"ds_read_b128 {v(VX + 4*j, 4)}, v{WL16} offset:{L_VX + 4096*j}" for j in range(2)] \
            + [f"ds_read_b128 {v(KX(f), 4)}, v{L16} offset:{L_KX + 1024*f}" for f in range(8)]
        l0 = len(E.lines)
        for x in pl[:O["h1pre"]]: E(x)
        self.zero_acc()
        E(f"s_mov_b32 s{S_CNT}, 0\n v_mov_b32 v{TG+1}, -1")
        E(f"s_cmp_gt_u32 s{S_W}, 1\n s_cbranch_scc1 {w23}")
        l1 = len(E.lines)
        if O["h1ack"] is not None: E(f"s_waitcnt vmcnt({O['h1ack']})")
        for x in pl[O["h1pre"]:O["h1mid"]]: E(x)
        if self.merged:
            if O["h1ack"] is None: E("s_waitcnt vmcnt(4)")
            self.kv_refresh()
        nops(O["h1nop"])
        if O["w1nop"]:
            sk = E.label("T_sk")
            E(f"s_cmp_eq_u32 s{S_W}, 0\n s_cbranch_scc1 {sk}")
            nops(O["w1nop"])
            E(sk + ":")
        for x in gather(4): E(x)
        self.stamp("g1")
        p1, p1re = E.label("T_p1"), E.label("T_p1re")
        for x in pl[O["h1mid"]:]: E(x)
        E(f"s_waitcnt lgkmcnt({min(15, len(pl))})")
        lp1 = len(E.lines)
        E(p1 + ":")
        reduce_(4, 0)
        E(f"s_cbranch_vccnz {p1re}")
        l2 = len(E.lines)
        finish(); publish()
        E(join + ":")
        l4 = len(E.lines)
        self.stamp("hop1")
        E("s_barrier")
        cuts = list(O["h2cut"]) + [10]
        for x in rds[:cuts[0]]: E(x)
        for k in range(NS):
            E(ld0)
            for x in rds[cuts[k]:(cuts[k + 1] if k + 1 < NS else 10)]: E(x)
        E(f"s_mov_b32 s{S_CNT}, 0")
        self.stamp("top")
        E(f"s_branch {top}")
        l5 = len(E.lines)
        E(p1re + ":")
        if O["h1mask"]: E("s_mov_b64 exec, vcc")
        for x in gather(4): E(x)
        if O["h1mask"]: E("s_mov_b64 exec, -1")
        E(cntchk)
        E(f"s_branch {p1}")
        l6 = len(E.lines)
        E(w23 + ":")
        for x in pl[O["h1pre"]:]: E(x)
        E(f"s_waitcnt vmcnt({2 if self.merged else 4})")
        if self.merged: self.kv_refresh()
        E(f"s_branch {join}")
        Ls = E.lines
        errs += hazard.check(pre + Ls[l0:l5] + pre, "team w01")
        errs += hazard.check(pre + Ls[l0:l2] + Ls[l5:l6] + Ls[lp1:l5] + pre, "team w01 retry")
        errs += hazard.check(pre + Ls[l0:l1] + Ls[l6:] + Ls[l4:l5] + pre, "team w23")
        E.lg = []; E.vm = []
        if self.merged:
            E(kvw + ":")
            self.wait_kv(fail)
            E(f"s_branch {kvb}")
        E(late + ":")
        E(ld1); E(cntchk); E("s_waitcnt vmcnt(0)")
        for x in c1: E(x)
        if self.stamps: E(f"s_add_u32 s95, s95, 0x100")
        E(f"s_cbranch_vccnz {late}\n s_branch {lateok}")
        s0 = len(E.lines)
        E(slow + ":")
        M0, M1 = TMP, TMP + 1
        E("s_nop 7")
        E(f"v_max3_f32 v{M0}, v{SX0}, v{SX0+1}, v{SX0+2}\n v_max3_f32 v{M0}, v{M0}, v{SX0+3}, v{SX1}")
        E(f"v_max3_f32 v{M0}, v{M0}, v{SX1+1}, v{SX1+2}\n v_max3_f32 v{M0}, v{M0}, v{SX1+3}, v{SM_}")
        E(f"v_max3_f32 v{M0}, v{M0}, v{SM_+1}, v{SM_+2}\n v_max_f32 v{M0}, v{M0}, v{SM_+3}")
        for sw in ("32", "16"):
            E(f"v_mov_b32 v{M1}, v{M0}\n s_nop 1\n v_permlane{sw}_swap_b32 v{M0}, v{M1}\n s_nop 1\n v_max_f32 v{M0}, v{M0}, v{M1}")
        for base in (SX0, SX1, SM_):
            for i in range(4): E(f"v_sub_f32 v{base+i}, v{base+i}, v{M0}")
            for i in range(4): E(f"v_exp_f32 v{base+i}, v{base+i}")
        E("s_nop 0")
        E(cvt(PX, SX0)); E(cvt(PX+1, SX0+2)); E(cvt(PX+2, SX1)); E(cvt(PX+3, SX1+2)); E(cvt(PM, SM_)); E(cvt(PM+1, SM_+2))
        for x in cnds: E(x)
        E("s_nop 1")
        for x in pvm + pvx: E(x)
        E("s_nop 7\n s_nop 1")
        E(f"v_rcp_f32 v{LA+1}, v{LA}\n s_nop 0\n s_branch {back}")
        errs += hazard.check(E.lines[s0:], "team slow")
        return errs

    def dump_stamps(self):
        E = self.E
        E("s_memrealtime s[88:89]\n s_memtime s[90:91]\n s_waitcnt lgkmcnt(0)")
        E.lg = []
        E(f"s_lshl_b32 s{S_T0}, s{S_H}, 2\n s_add_u32 s{S_T0}, s{S_T0}, s{S_W}\n s_lshl_b32 s{S_T0}, s{S_T0}, 6\n s_add_u32 s{S_T0}, s{S_T0}, s{S_STEP}")
        E(f"s_lshl_b32 s{S_T0}, s{S_T0}, 7\n s_add_u32 s{S_T0}, s{S_T0}, {STAMP}")
        t = Q(12) + 2
        E(f"v_mov_b32 v{t}, 0")
        for i in range(16):
            E(f"v_writelane_b32 v{t}, s{S_ST + 2*i}, {i}")
        E(f"v_writelane_b32 v{t}, s94, 16\n v_writelane_b32 v{t}, s95, 17")
        E(f"v_lshrrev_b32 v{t+1}, 2, v{L16}\n s_mov_b64 exec, 0xffffffff")
        E(f"buffer_store_dword v{t}, v{t+1}, {ws()}, s{S_T0} offen\n s_mov_b64 exec, -1\n s_nop 3")


def standalone(stamps=False, force_mode=None, **opt):
    E = Em()
    E("; @launch grid=(256,1,1) block=(256,1,1) lds=163840")
    E('.amdgcn_target "amdgcn-amd-amdhsa--gfx950"')
    E(kernel_header("team_kernel"))
    T = Team(E, stamps, **opt)
    E("s_cmp_ge_u32 s2, 256\n s_cbranch_scc1 T_exit\n s_and_b32 s3, s2, 7\n s_cbranch_scc1 T_exit")
    E(f"s_lshr_b32 s{S_H}, s2, 3")
    E("s_memrealtime s[100:101]\n s_waitcnt lgkmcnt(0)\n s_mov_b32 s92, s100\n s_mov_b32 s94, 0")
    l0 = len(E.lines)
    T.startup("T_fail")
    errs = hazard.check(E.lines[l0:], "team startup")
    E("s_memrealtime s[100:101]\n s_waitcnt lgkmcnt(0)\n s_mov_b32 s96, s100\n s_memtime s[100:101]\n s_waitcnt lgkmcnt(0)\n s_mov_b32 s98, s100")
    if force_mode is not None:
        E(f"s_mov_b32 s{S_MODE}, {force_mode}")
    E(f"s_cmp_lg_u32 s{S_MODE}, 0\n s_cbranch_scc1 T_global")
    errs += T.loop(0, "T_done", "T_fail")
    E("T_global:")
    errs += T.loop(1, "T_done", "T_fail")
    E("T_fail:")
    E(f"s_mov_b32 s{S_T0}, 1\n s_atomic_add s{S_T0}, s[{S_DBG}:{S_DBG+1}], 12 glc\n s_waitcnt lgkmcnt(0)")
    E("T_done:")
    E("s_memrealtime s[100:101]\n s_waitcnt lgkmcnt(0)\n s_mov_b32 s97, s100\n s_memtime s[100:101]\n s_waitcnt lgkmcnt(0)")
    E(f"s_sub_u32 s98, s100, s98\n v_mov_b32 v40, s92\n v_mov_b32 v41, s96\n v_mov_b32 v42, s97\n v_mov_b32 v43, s98")
    E(f"s_lshl_b32 s{S_T0}, s{S_H}, 4\n s_add_u32 s{S_T0}, s{S_T0}, {STAMP + MB}\n v_mov_b32 v44, 0")
    E(f"buffer_store_dwordx4 v[40:43], v44, {ws()}, s{S_T0} offen")
    E("T_exit:\n s_endpgm")
    E(kernel_desc("team_kernel"))
    txt = E.text()
    if opt.get("norty") or opt.get("nomem"):
        import re
        txt = re.sub(r"s_cbranch_vccnz T_(retry|late|p1re|slow)_\d+", "s_nop 0", txt)
    if opt.get("nomem"):
        i = txt.index("T_retry_")
        pat = {1: r"buffer_(load|store)_dword(x4)? v\S+, v\d+, s\[4:7\], s(20|21|22|24|25|26|35) offen.*",
               2: r"buffer_(load|store)_dword(x4)? v\S+, v\d+, s\[4:7\], s(24|25|26|35) offen.*",
               3: r"buffer_(load|store)_dword(x4)? v\S+, v\d+, s\[4:7\], s(20|21|22) offen.*"}[opt["nomem"]]
        txt = txt[:i] + re.sub(pat, "s_mov_b32 s93, 0x12345", txt[i:])
    return txt, errs, T.names

if __name__ == "__main__":
    for st in (False, True):
        txt, errs, names = standalone(st)
        print(len(errs), "hazards", names)
    open("team.s", "w").write(txt)
```

```python
import sys
from emit import *
from layout import *
import gemm, attn, outp, team
from gemm import G_WS, G_W, G_N, G_DONE, G_FLAG, G_T0, G_T1, G_T2, G_T3, V_LANE
NAME = "gated_mix__compressed_kv_cla__memory_aug_recurrent_mem_tr__prompt"
KN = NAME + "_kernel"
INIT_OFF = 128
WAIT_MAX = 1 << 18
R_KIND, R_T0, R_DT, R_N, R_NATT, R_QB0, R_QT0, R_QB1, R_QT1 = range(48, 57)
R_H, R_ROLE, R_C, R_GB, R_LVL, R_QB, R_QT, R_CNT = range(64, 72)
R_WSP, R_DBG = 72, 74
R_A, R_B, R_D, R_E = 76, 77, 78, 79

SCHED = [(1, 63, -1, 18, [7]), (1, 45, -1, 22, [6]), (2, 0, 1, 28, [5]), (0, 63, -1, 25, [4, 0]),
         (1, 23, -1, 24, [3, 1]), (0, 38, -1, 39, [2]), (2, 28, 1, 36, [])]

def build(diag=False, team_opt=None, sched=None, stamps=False):
    S = sched or SCHED
    E = Em()
    E.lines.append("; @launch grid=(256,1,1) block=(256,1,1) lds=163840")
    E('.amdgcn_target "amdgcn-amd-amdhsa--gfx950"')
    E(kernel_header(KN))
    errs = []
    wsd = s(G_WS, 4)
    kv_roles = [r_ for r_, x in enumerate(S) if x[0] == 1]
    q_roles = [r_ for r_, x in enumerate(S) if x[0] == 0]
    b_roles = [r_ for r_, x in enumerate(S) if x[0] == 2]
    E("s_cmp_ge_u32 s2, 256\n s_cbranch_scc1 M_exit")
    if diag: tmark(E, 0); E("s_mov_b32 s97, s2")
    E(f"s_load_dwordx4 s[{R_WSP}:{R_WSP+3}], s[0:1], {ARG['dbg']}")
    gemm.lane_setup(E)
    E(f"s_and_b32 s{R_A}, s2, 7\n s_lshr_b32 s{R_B}, s2, 3\n s_sub_u32 s{R_C}, s{R_A}, 1\n s_and_b32 s{R_C}, s{R_C}, 7\n s_lshl_b32 s{R_C}, s{R_C}, 5\n s_add_u32 s{R_C}, s{R_C}, s{R_B}")
    E(f"s_lshl_b32 s{G_FLAG}, s{R_C}, 7\n s_add_u32 s{G_FLAG}, s{G_FLAG}, {FLAGS}\n s_waitcnt lgkmcnt(0)")
    E(f"s_mov_b64 s[{G_WS}:{G_WS+1}], s[{R_WSP+2}:{R_WSP+3}]\n s_mov_b64 s[{R_DBG}:{R_DBG+1}], s[{R_WSP}:{R_WSP+1}]\n s_mov_b64 s[{R_WSP}:{R_WSP+1}], s[{G_WS}:{G_WS+1}]")
    E(f"s_and_b32 s{G_WS+1}, s{G_WS+1}, 0xffff\n s_mov_b32 s{G_WS+2}, {WS_BYTES}\n s_mov_b32 s{G_WS+3}, 0x20000")
    E(f"s_cmp_eq_u32 s{R_A}, 0\n s_cbranch_scc1 M_team")
    E(f"s_mul_i32 s{R_H}, s{R_C}, 9363\n s_lshr_b32 s{R_H}, s{R_H}, 16\n s_mul_i32 s{R_GB}, s{R_H}, 7\n s_sub_u32 s{R_ROLE}, s{R_C}, s{R_GB}")
    E(f"s_lshl_b32 s{R_GB}, s{R_GB}, 7\n s_add_u32 s{R_GB}, s{R_GB}, {FLAGS}")
    E(f"s_getpc_b64 s[{R_A}:{R_A+1}]\nM_pc:\n s_add_u32 s{R_A}, s{R_A}, M_table-M_pc\n s_addc_u32 s{R_B}, s{R_B}, 0\n s_lshl_b32 s{G_T0}, s{R_ROLE}, 6")
    E(f"s_load_dwordx16 s[48:63], s[{R_A}:{R_A+1}], s{G_T0}\n s_waitcnt lgkmcnt(0)\n s_mov_b32 s{G_N}, s{R_N}")
    def init():
        E(f"s_cmp_lg_u32 s{G_W}, 3\n s_cbranch_scc1 M_noinit")
        E(f"s_mov_b32 s{R_E}, 0\n s_atomic_swap s{R_E}, s[{R_WSP}:{R_WSP+1}], s{G_FLAG} glc\n s_waitcnt lgkmcnt(0)")
        E(f"s_mov_b32 s{R_E}, 1\n s_atomic_add s{R_E}, s[{R_DBG}:{R_DBG+1}], {INIT_OFF}")
        E("M_noinit:")
    errs += gemm.proj_task(E, R_KIND, R_H, R_T0, R_DT, " sc1", True, 6 if diag == 2 else False, init)
    if diag: tmark(E, 1)

    def bound():
        return f"s_add_u32 s{R_CNT}, s{R_CNT}, 1\n s_cmp_gt_u32 s{R_CNT}, {WAIT_MAX}\n s_cbranch_scc1 M_exit"
    def swait(base, off, thr):
        lp, go = E.label("M_sw"), E.label("M_sg")
        E(f"s_mov_b32 s{R_CNT}, 0\n s_branch {go}")
        E(lp + ":")
        E("s_sleep 8")
        E(bound())
        E(go + ":")
        E(f"s_mov_b32 s{R_E}, 0\n s_atomic_or s{R_E}, s[{base}:{base+1}], {off} glc\n s_waitcnt lgkmcnt(0)\n s_cmp_lt_u32 s{R_E}, {thr}\n s_cbranch_scc1 {lp}")
    def vwait(va, vt, vx):
        lp, go = E.label("M_vw"), E.label("M_vg")
        E(f"s_mov_b32 s{R_CNT}, 0\n s_branch {go}")
        E(lp + ":")
        E("s_sleep 2")
        E(bound())
        E(go + ":")
        E(f"buffer_load_dword v{vx}, v{va}, {wsd}, 0 offen sc1\n s_waitcnt vmcnt(0)\n v_cmp_lt_u32 vcc, v{vx}, v{vt}\n s_cbranch_vccnz {lp}")
        E.vm = []
    def publish(val):
        E(f"s_waitcnt vmcnt(0)\n s_barrier\n s_mov_b32 s{G_DONE}, {val}")
        gemm.publish(E)
    swait(R_DBG, INIT_OFF, 256)
    E(f"s_cmp_eq_u32 s{R_ROLE}, 6\n s_cbranch_scc1 M_follow")
    def wait_q():
        for i, r_ in enumerate(q_roles):
            E(f"s_bfe_u32 s{R_D}, s{R_QT}, {hex(0x80000 + 8*i)}\n s_add_u32 s{R_A}, s{R_GB}, {128*r_}")
            swait(R_WSP, f"s{R_A}", f"s{R_D}")
    def wait_kv():
        lp, ok = E.label("M_kv"), E.label("M_kvok")
        E(lp + ":")
        E(f"s_cmp_ge_u32 s{attn.A_KOFF}, s{attn.A_RDY}\n s_cbranch_scc1 {ok}")
        for i, r_ in enumerate(kv_roles):
            first = i == 0
            op = "s_mov_b32" if first else "s_cmov_b32"
            if not first: E(f"s_cmp_eq_u32 s{R_LVL}, {i}")
            E(f"{op} s{R_A}, {128*r_}\n {op} s{R_D}, {S[r_][3]}\n {op} s{R_B}, {(S[r_][1] - S[r_][3] + 1) * 8192}")
        E(f"s_add_u32 s{R_A}, s{R_A}, s{R_GB}")
        swait(R_WSP, f"s{R_A}", f"s{R_D}")
        E(f"s_add_u32 s{attn.A_RDY}, s{R_B}, s{attn.A_KMIN}\n s_add_u32 s{R_LVL}, s{R_LVL}, 1\n s_branch {lp}")
        E(ok + ":")
    E(f"s_mov_b32 s{R_LVL}, 0\n s_mov_b32 s{attn.A_RDY}, -1\n s_mov_b32 s{R_QB}, s{R_QB0}\n s_mov_b32 s{R_QT}, s{R_QT0}")
    E("M_att:")
    errs += attn.attn_task(E, R_H, R_QB, " sc1", " sc1", False, wait_q, wait_kv)
    E(f"s_mov_b32 s{R_QB}, s{R_QB1}\n s_mov_b32 s{R_QT}, s{R_QT1}\n s_sub_u32 s{R_NATT}, s{R_NATT}, 1\n s_cmp_lg_u32 s{R_NATT}, 0\n s_cbranch_scc1 M_att")
    publish(0x200)
    if diag: tmark(E, 2)
    HG, HALF, TJ, DT = 48, 49, 50, 51
    E(f"s_lshr_b32 s{HG}, s{R_H}, 2\n s_bfe_u32 s{HALF}, s{R_H}, 0x10001\n s_and_b32 s{TJ}, s{R_H}, 1\n s_mul_i32 s{TJ}, s{TJ}, 6\n s_add_u32 s{TJ}, s{TJ}, s{R_ROLE}")
    E(f"s_mov_b32 s{DT}, 12\n s_cmp_lt_u32 s{TJ}, 4\n s_cselect_b32 s{G_N}, 6, 5")
    def wait_ctx():
        E(f"v_min_u32 v4, 27, v{V_LANE}\n v_mul_u32_u24 v5, 37, v4\n v_lshrrev_b32 v5, 8, v5\n v_mul_u32_u24 v5, 7, v5\n v_sub_u32 v5, v4, v5")
        E(f"v_mov_b32 v6, 0x200\n v_cmp_ne_u32 vcc, 6, v5\n s_mul_i32 s{R_A}, s{HG}, {28*128}\n s_add_u32 s{R_A}, s{R_A}, {FLAGS}\n v_cndmask_b32 v5, 0, v6, vcc")
        E(f"v_lshl_add_u32 v4, v4, 7, s{R_A}")
        vwait(4, 5, 6)
        if diag: tmark(E, 3)
    errs += outp.oproj_task(E, HG, HALF, TJ, DT, " sc1", " sc1", False, wait_ctx)
    publish(0x300)
    if diag: tmark(E, 4)
    ZT, ZQ, ZI = 48, 49, 50
    E(f"s_mul_i32 s{ZI}, s{R_H}, 6\n s_add_u32 s{ZI}, s{ZI}, s{R_ROLE}")
    E(f"s_mul_i32 s{R_A}, s{ZI}, 21846\n s_lshr_b32 s{R_A}, s{R_A}, 16\n s_mul_i32 s{R_B}, s{R_A}, 3\n s_add_u32 s51, s{ZI}, 64")
    E(f"s_cmp_eq_u32 s{R_B}, s{ZI}\n s_cselect_b32 s{ZI}, s{R_A}, s51")
    E("M_fin:")
    E(f"s_lshr_b32 s{ZT}, s{ZI}, 2\n s_and_b32 s{ZQ}, s{ZI}, 3")
    def wait_part(b):
        def f():
            if b == 0:
                E(f"s_mul_i32 s{R_A}, s{ZT}, 43\n s_lshr_b32 s{R_A}, s{R_A}, 9\n s_mul_i32 s{R_A}, s{R_A}, 12\n s_sub_u32 s{R_A}, s{ZT}, s{R_A}")
                E(f"s_cmp_ge_u32 s{R_A}, 6\n s_addc_u32 s{R_A}, s{R_A}, 0\n s_and_b32 s{R_B}, s{ZQ}, 2\n s_mul_i32 s{R_B}, s{R_B}, 7\n s_add_u32 s{R_A}, s{R_A}, s{R_B}")
                E("v_mov_b32 v193, 0x300")
            else:
                E(f"s_and_b32 s{R_A}, s{ZT}, 1\n s_lshl_b32 s{R_A}, s{R_A}, 1\n s_lshr_b32 s{R_B}, s{ZQ}, 1\n s_add_u32 s{R_A}, s{R_A}, s{R_B}\n s_mul_i32 s{R_A}, s{R_A}, 7\n s_add_u32 s{R_A}, s{R_A}, 6")
                E(f"s_lshr_b32 s{R_B}, s{ZT}, 1\n s_add_u32 s{R_B}, s{R_B}, 0x201\n v_mov_b32 v193, s{R_B}")
            E(f"s_lshl_b32 s{R_A}, s{R_A}, 7\n s_add_u32 s{R_A}, s{R_A}, {FLAGS}\n v_and_b32 v192, 7, v{V_LANE}\n v_mul_u32_u24 v192, {28*128}, v192\n v_add_u32 v192, s{R_A}, v192")
            vwait(192, 193, 194)
            if diag == 1: tmark(E, 5 + b)
        return f
    errs += outp.final_task(E, ZT, ZQ, " sc1", wait_part(0), wait_part(1))
    E(f"s_cmp_lt_u32 s{ZI}, 64\n s_mov_b32 s{ZI}, s51\n s_cbranch_scc1 M_fin")
    E("s_branch M_done")
    E("M_follow:")
    E(f"s_lshr_b32 s{HG}, s{R_H}, 2\n s_and_b32 s{HALF}, s{R_H}, 1\n s_bfe_u32 s{TJ}, s{R_H}, 0x10001\n s_mov_b32 s{DT}, 2\n s_mov_b32 s{G_N}, 32")
    FS, FR = 52, 53
    def wait_x():
        E(f"s_lshl_b32 s{R_B}, s{HG}, 2\n s_add_u32 s{R_B}, s{R_B}, s{G_W}\n s_mul_i32 s{R_D}, s{R_B}, {7*128}")
        for r_ in q_roles + b_roles:
            E(f"s_add_u32 s{R_A}, s{R_D}, {FLAGS + 128*r_}")
            swait(R_WSP, f"s{R_A}", S[r_][3])
        E(f"s_lshl_b32 s{R_B}, s{R_B}, 7\n s_add_u32 s54, s{R_B}, {FLAGS + 224*128}\n s_add_u32 s{FS}, s{TJ}, 1\n s_mov_b32 s{FR}, 0\n s_mov_b32 s{G_DONE}, 0x200")
        if diag: tmark(E, 2)
    def wait_m():
        vm = list(E.vm)
        E(f"v_mov_b32 v16, s54\n v_mov_b32 v17, s{FS}")
        vwait(16, 17, 23)
        E.vm = vm
    def mid():
        E(f"v_readfirstlane_b32 s{FR}, v23")
        gemm.publish(E, 16)
        E(f"s_add_u32 s{G_DONE}, s{G_DONE}, 1\n s_add_u32 s{FS}, s{FS}, 2\n s_cmp_ge_u32 s{FR}, s{FS}\n s_cselect_b32 s{outp.F_PRE}, 1, 0")
        E(f"buffer_load_dword v23, off, {wsd}, s54 sc1")
    errs += outp.follower_task(E, HG, HALF, TJ, DT, " sc1", " sc1", wait_x, wait_m, mid, diag == 2)
    gemm.publish(E)
    E("s_branch M_done")
    E("M_team:")
    T = team.Team(E, stamps, **(team_opt or {}))
    T.diag = diag
    T.merged = dict(init_off=INIT_OFF, r1=b_roles[0], r2=b_roles[1], n1=S[b_roles[0]][3])
    E(f"s_mov_b32 s{team.S_H}, s{R_B}")
    l0 = len(E.lines)
    T.startup("M_exit")
    errs += hazard.check(E.lines[l0:], "team startup")
    if diag: tmark(E, 1)
    E(f"s_cmp_lg_u32 s{team.S_MODE}, 0\n s_cbranch_scc1 M_global")
    errs += T.loop(0, "M_tdone", "M_exit", " sc1")
    E("M_global:")
    errs += T.loop(1, "M_tdone", "M_exit", " sc1")
    E("M_tdone:")
    E(f"v_mov_b32 v16, 64\n v_min_u32 v17, 1, v{team.WL16}\n v_lshlrev_b32 v17, 30, v17\n s_waitcnt vmcnt(0)\n s_barrier")
    E(f"buffer_store_dword v16, v17, {wsd}, s{team.S_FLG} offen sc1")
    E("M_done:")
    if diag: tmark(E, 7); tdump(E, G_WS, STAMP, 97)
    E("M_exit:\n s_endpgm")
    E(".p2align 6\n.type M_table,@object\nM_table:")
    for kind, t0, dt, n, att in S:
        def qthr(qb):
            w = 0
            for i, r_ in enumerate(q_roles):
                top, cnt = S[r_][1], S[r_][3]
                need = min(max(top - 8*qb + 1, 0), cnt) if top - cnt + 1 <= 8*qb + 7 else 0
                w |= need << (8*i)
            return w
        a_ = (att + [0, 0])[:2]
        row = [kind, t0, dt & 0xffffffff, n, len(att), a_[0], qthr(a_[0]), a_[1], qthr(a_[1])] + [0]*7
        E(".long " + ", ".join(hex(x) for x in row))
    E(".size M_table, 448")
    E(kernel_desc(KN))
    build.names = T.names
    return E.text(), errs

if __name__ == "__main__":
    diag = 1 if "diag" in sys.argv else 2 if "diag2" in sys.argv else 0
    txt, errs = build(diag)
    print(len(errs), "hazards", len(txt), "bytes")
    open("mega_diag.s" if diag else f"cdna_kernels/{NAME}.s", "w").write(txt)
```

```python
import math, struct
from emit import *
from layout import *

def fbits(x):
    return struct.unpack("<I", struct.pack("<f", x))[0]

L_MEM, L_KX, L_VX, L_QM, L_KM, L_OM, L_SEL, L_FLG, L_W = 0, 8192, 16384, 24576, 26880, 29184, 31232, 32256, 32768
IDX, YRD, L16, XTR, WOP, QW, TR, PS, MP, KD, VD, OB = range(12)
WL16 = 59
ONES = 12
AQ, AK, AV = 16, 20, 24
VX = 28
def KX(i): return 36 + 4 * i
def Q(i): return 68 + 4 * i
S_WS = 4
S_WQ, S_WK, S_WV, S_WO = 8, 40, 44, 48
S_H, S_W, S_STEP = 12, 13, 14
S_HI = 16
S_SCALE, S_CNT = 18, 19
S_PST0, S_PST1, S_IN0, S_IN1, S_MEM0, S_MEM1, S_MRE = 20, 21, 22, 23, 24, 25, 26
S_KD, S_VD, S_KE = 27, 28, 29
S_MK0, S_MK1, S_MV0, S_MV1 = 31, 32, 33, 34
S_PUB = 35
S_MB = 23
S_T0, S_T1, S_T2, S_T3 = 36, 37, 38, 39
S_DBG = 52
S_LO, S_RNG = 54, 55
S_MODE = 56
S_RDY, S_FLG, S_WSP = 30, 15, 58
S_KVF = 99
S_PH = 57
S_ST = 60
POLL_MAX = 1 << 15

def ws(): return s(S_WS, 4)

P_OPS = [(m, 0, xy) for m in "qkv" for xy in range(2)]
O_OPS = [("o", 2, 2), ("o", 2, 3), ("o", 3, 2), ("o", 3, 3)]
ALL_QKV = [(m, p, xy) for p in range(8) for m in "qkv" for xy in range(2)]
ALL_O = [("o", p, t) for p in range(4) for t in range(4)]
P_REG = {(m, 0, xy): Q(2 * (3 * xy + "qkv".index(m))) for m in "qkv" for xy in range(2)}

def place(one):
    global J_OPS, LDS_OPS, RES_OPS, RES_REG, LDS_SLOT
    J_OPS = [(m, p, xy) for m, p in ((("v", 1), ("k", 3), ("v", 2)) if one else (("v", 2), ("k", 4), ("k", 7))) for xy in range(2)]
    LDS_OPS = P_OPS + J_OPS + O_OPS
    RES_OPS = [o for o in ALL_QKV + ALL_O if o not in LDS_OPS]
    assert len(RES_OPS) == 48 and len(LDS_OPS) == 16
    RES_REG = {o: 128 + 8 * n for n, o in enumerate(RES_OPS)}
    LDS_SLOT = {o: n for n, o in enumerate(LDS_OPS)}


def estimate(lines):
    t, tm, hold, dur, prev, out = 0, -99, 0, 0, "", []
    for ln in lines:
        d = hazard.parse(ln)
        if not d: continue
        k, op = d["kind"], d["op"]
        if k == "mfma":
            t = max(t, tm + dur); tm = t; dur = 4 * d["passes"]; hold = 12 if "smfmac" in op else 8; out.append(t); t += 4
        elif k == "valu":
            t = max(t, tm + (dur + 16 if op.startswith("v_pk_") else hold)); t += 8 if op.startswith(hazard.TRANS) or "permlane" in op else 4
        elif k in ("ds", "vmem"):
            t = max(t + (8 if prev == "valu" else 0), tm + 8) + 4
        elif op == "s_nop": t += 4 * (int(d["ops"][0]) + 1)
        elif op == "s_barrier": t += 8
        else: t += 4
        prev = k
    return out + [t]


class Team:
    def __init__(self, E, stamps=False, **opt):
        self.opt = dict(win=4, ofirst=1, swz=0, h1ack=1, h1pre=12, h1nop=0, w1ack=1, w1pre=12, w1nop=0, h1mask=1, kvpre=1,
                        one=1, wkind=128, w2at=2, b1one=7, dma1=10, split=0, w1cut=(2, 5), w2cut=(3, 6, 8, 10), w2ack=1, rearm=0, fine=1, h2sets=2, h2cut=(6, 10), h2mask=1, u0at=0, b3at=3,
                        b1at=2, ld1at=0, h1chk=14, b1bat=22, dma0=23, dmaw=1, dmas=4, qat=34, ex5=1, xat=4)
        self.opt.update(opt)
        place(self.opt['one'])
        self.E = E
        self.stamps = stamps
        self.diag = False
        self.merged = None
        self.nst = 0

    def stamp(self, name):
        if self.stamps and (self.stamps is True or name in self.stamps):
            self.E(f"s_memtime s[{S_ST + 2*self.nst}:{S_ST + 2*self.nst + 1}]")
            self.names.append(name)
            self.nst += 1
            assert self.nst <= 14

    def startup(self, fail):
        E = self.E
        E(f"s_load_dwordx4 s[60:63], s[0:1], {ARG['bwq']}")
        E(f"s_load_dwordx4 s[64:67], s[0:1], {ARG['bwv']}")
        E(f"s_load_dwordx4 s[68:71], s[0:1], {ARG['dbg']}")
        E(f"s_load_dwordx2 s[72:73], s[0:1], {ARG['mem0']}")
        E(f"v_lshrrev_b32 v1, 6, v0")
        E(f"v_and_b32 v20, 63, v0")
        E(f"v_readfirstlane_b32 s{S_W}, v1")
        E("s_waitcnt lgkmcnt(0)")
        E.srd(S_WQ, 60, 4 * MB); E.srd(S_WK, 62, 4 * MB); E.srd(S_WV, 64, 4 * MB); E.srd(S_WO, 66, 4 * MB)
        E.srd(S_WS, 70, WS_BYTES)
        E.srd(76, 72, 8192)
        E.srd(72, 68, 256)
        E(f"s_mov_b64 s[{S_DBG}:{S_DBG+1}], s[68:69]")
        if self.merged:
            E(f"s_mov_b64 s[{S_WSP}:{S_WSP+1}], s[70:71]")
            E(f"s_mul_i32 s{S_KVF}, s{S_H}, {7*128}\n s_add_u32 s{S_KVF}, s{S_KVF}, {FLAGS + self.merged['r1']*128}")
            E(f"s_lshl_b32 s{S_FLG}, s{S_H}, 7\n s_add_u32 s{S_FLG}, s{S_FLG}, {FLAGS + 224*128}")
        E("v_lshrrev_b32 v21, 4, v20\n v_and_b32 v22, 15, v20\n v_and_b32 v23, 1, v21\n v_lshrrev_b32 v24, 1, v21")
        E(f"v_lshlrev_b32 v{L16}, 4, v20")
        E(f"s_lshl_b32 s{S_T0}, s{S_W}, 10\n v_add_u32 v{WL16}, s{S_T0}, v{L16}")
        E(f"s_lshl_b32 s{S_T1}, s{S_W}, 15\n s_add_u32 s{S_T1}, s{S_T1}, {L_W}\n v_add_u32 v{WOP}, s{S_T1}, v{L16}")
        E(f"v_lshrrev_b32 v25, 2, v20\n v_lshlrev_b32 v25, 13, v25\n v_and_b32 v1, 3, v20\n v_lshl_add_u32 v25, v1, 4, v25")
        E(f"s_lshl_b32 s{S_T0}, s{S_W}, 6\n s_lshl_b32 s{S_T2}, s{S_H}, 8\n s_add_u32 s{S_T0}, s{S_T0}, s{S_T2}\n v_add_u32 v25, s{S_T0}, v25")
        if self.opt.get("seg128"):
            E(f"v_lshrrev_b32 v25, 3, v20\n s_and_b32 s{S_T0}, s{S_W}, 1\n s_lshl_b32 s{S_T0}, s{S_T0}, 3\n v_add_u32 v25, s{S_T0}, v25\n v_lshlrev_b32 v25, 13, v25")
            E(f"v_and_b32 v1, 7, v20\n v_lshl_add_u32 v25, v1, 4, v25\n s_lshr_b32 s{S_T0}, s{S_W}, 1\n s_lshl_b32 s{S_T0}, s{S_T0}, 7\n s_add_u32 s{S_T0}, s{S_T0}, s{S_T2}\n v_add_u32 v25, s{S_T0}, v25")
        E(f"v_lshrrev_b32 v26, 3, v20\n v_lshlrev_b32 v26, 10, v26\n v_and_b32 v1, 7, v20\n v_lshl_add_u32 v26, v1, 4, v26")
        E(f"s_lshl_b32 s{S_T0}, s{S_W}, 7\n s_lshl_b32 s{S_T2}, s{S_H}, 17\n s_add_u32 s{S_T0}, s{S_T0}, s{S_T2}\n v_add_u32 v26, s{S_T0}, v26")
        E("v_bfe_u32 v29, v20, 2, 1\n v_bfe_u32 v30, v20, 3, 1\n v_and_b32 v31, 3, v20")
        fine = self.opt["fine"]
        if fine: E("v_lshl_add_u32 v27, v21, 2, v29\n v_lshlrev_b32 v27, 6, v27")
        else: E("v_lshl_add_u32 v27, v24, 1, v29\n v_lshl_add_u32 v27, v27, 1, v23\n v_lshlrev_b32 v27, 7, v27")
        E("v_lshl_add_u32 v27, v30, 5, v27\n v_lshl_add_u32 v27, v31, 3, v27")
        E(f"v_add_u32 v27, s{S_T1}, v27\n v_xor_b32 v36, 1, v30\n v_lshl_add_u32 v36, v36, 11, v27\n v_lshl_add_u32 v27, v30, 11, v27")
        E("v_lshl_add_u32 v28, v23, 2, v24\n v_lshl_add_u32 v28, v28, 2, v29\n v_lshlrev_b32 v28, 7, v28\n v_lshl_add_u32 v28, v30, 6, v28\n v_lshl_add_u32 v28, v31, 4, v28")
        E(f"v_add_u32 v28, s{S_T1}, v28")
        E(f"s_mov_b32 s{S_T3}, s{S_T1}")
        WIN = self.opt["win"]
        U = lambda m, p: [(m, p, 0), (m, p, 1)]
        lds_u = lambda u: u[0] in LDS_SLOT
        pairs = [sorted([U(m, p), U(m, p + 1)], key=lds_u) for p in (0, 2, 4, 6) for m in "qkv"]
        pairs.sort(key=lambda x: lds_u(x[0]) + lds_u(x[1]))
        ou = [[("o", p, t), ("o", p, t + 1)] for p in range(4) for t in (0, 2)]
        qkv_u = [u for x in pairs for u in x]
        units = [u for u in ou if not lds_u(u)] + qkv_u + [u for u in ou if lds_u(u)]
        slot = {}
        for n, u in enumerate(units):
            if lds_u(u): slot[n] = LDS_SLOT[u[0]] // 2
        for n, u in enumerate(units):
            if n not in slot:
                busy = {slot[k] for k in range(max(0, n - WIN + 1), n)} | {slot[k] for k in slot if k < n + WIN and lds_u(units[k])}
                slot[n] = min(set(range(8)) - busy)
        srd = dict(q=S_WQ, k=S_WK, v=S_WV)
        def issue(n):
            u = units[n]; base = slot[n] * 4096
            if u[0][0] == "o":
                (_, p, t), (_, p2, t2) = u
                assert p == p2 and t2 == t + 1 and t % 2 == 0
                E(f"s_xor_b32 s{S_T0}, s{S_W}, {p}\n s_lshl_b32 s{S_T0}, s{S_T0}, 15")
                for j in range(4):
                    E(f"s_add_u32 m0, s{S_T3}, {base + j*1024}")
                    E(f"s_add_u32 s{S_T1}, s{S_T0}, {j*8192 + (t//2)*512}")
                    E.vmem(f"buffer_load_dwordx4 v26, {s(S_WO,4)}, s{S_T1} offen lds", tag=("u", n))
            else:
                (m, p, xy), o2 = u
                assert xy == 0 and o2 == (m, p, 1)
                E(f"s_xor_b32 s{S_T0}, s{S_W}, {p}\n s_lshl_b32 s{S_T0}, s{S_T0}, 19")
                for j in range(4):
                    E(f"s_add_u32 m0, s{S_T3}, {base + j*1024}")
                    E(f"s_add_u32 s{S_T1}, s{S_T0}, {16*j*8192}")
                    E.vmem(f"buffer_load_dwordx4 v25, {s(srd[m],4)}, s{S_T1} offen lds", tag=("u", n))
        def consume(n):
            u = units[n]; base = slot[n] * 4096
            E.need(tags=[("u", n)])
            for k, o in enumerate(u):
                dst = RES_REG[o] if o in RES_REG else 64 + 8 * k
                for hi in range(2):
                    for lo in range(2):
                        if o[0] == "o":
                            E.ds(f"ds_read_b64_tr_b16 {r(dst + 4*hi + 2*lo, 2)}, v28 offset:{base + (8*hi + 2*lo)*128 + k*8}")
                        else:
                            E.ds(f"ds_read_b64_tr_b16 {r(dst + 4*hi + 2*lo, 2)}, v{36 if k else 27} offset:{base + hi*1024 + lo*(128 if fine else 64)}")
            E.drain(lg=True)
            if u[0] not in RES_REG:
                for k, o in enumerate(u):
                    assert LDS_SLOT[o] * 2048 == base + k * 2048
                    for hf in range(2):
                        E.ds(f"ds_write_b128 v{WOP}, {v(64 + 8*k + 4*hf, 4)} offset:{base + k*2048 + hf*1024}")
                E.drain(lg=True)
        for n in range(2):
            issue(n)
        E(f"v_mov_b32 v{IDX}, 0x4444\n v_mov_b32 v1, 0xeeee\n v_cmp_lt_u32 vcc, 7, v22\n s_nop 1\n v_cndmask_b32 v32, v{IDX}, v1, vcc")
        E(f"v_mov_b32 v{IDX}, v32")
        E(f"v_and_b32 v32, 7, v20\n v_lshlrev_b32 v32, 4, v32\n v_lshl_add_u32 v{OB}, v21, 7, v32\n v_xor_b32 v{YRD}, 128, v{L16}")
        E(f"v_lshl_add_u32 v33, v24, 4, v22\n s_lshl_b32 s{S_T0}, s{S_W}, 5\n v_add_u32 v33, s{S_T0}, v33\n v_lshlrev_b32 v33, 3, v33")
        E(f"v_mul_u32_u24 v34, {MHS}, v23\n v_add_u32 v{QW}, v33, v34")
        E(f"v_bfe_u32 v33, v20, 2, 2\n v_lshl_add_u32 v33, v23, 2, v33\n v_lshl_add_u32 v33, v24, 4, v33\n v_lshlrev_b32 v33, 3, v33")
        E(f"v_and_b32 v34, 1, v20\n v_mul_u32_u24 v34, {MHS}, v34\n v_add_u32 v{TR}, v33, v34")
        E(f"s_lshl_b32 s{S_T0}, s{S_W}, 3\n v_lshrrev_b32 v33, 3, v20\n v_add_u32 v33, s{S_T0}, v33")
        E(f"v_mul_u32_u24 v34, {self.opt['swz']}, v33\n v_add_u32 v34, s{S_H}, v34\n v_and_b32 v34, 31, v34")
        E(f"v_lshrrev_b32 v37, {1 if fine else 0}, v32\n v_lshl_add_u32 v33, v33, 13, v37\n v_lshl_add_u32 v{PS}, v34, 7, v33")
        E("v_and_b32 v37, 1, v20\n v_bfe_u32 v38, v20, 1, 1\n v_lshl_add_u32 v37, v29, 1, v37")
        E(f"s_lshr_b32 s{S_T0}, s{S_H}, 3\n s_lshl_b32 s{S_T0}, s{S_T0}, 10\n s_and_b32 s{S_T1}, s{S_H}, 1\n s_lshl_b32 s{S_T1}, s{S_T1}, 9\n s_add_u32 s{S_T0}, s{S_T0}, s{S_T1}")
        E(f"s_and_b32 s{S_T1}, s{S_H}, 6\n s_lshl_b32 s{S_T1}, s{S_T1}, 5\n s_add_u32 s{S_T0}, s{S_T0}, s{S_T1}")
        E(f"v_lshlrev_b32 v33, 4, v21\n v_lshl_add_u32 v33, v{37 if fine else 31}, 2, v33\n v_lshl_add_u32 v33, v{38 if fine else 29}, 8, v33\n v_lshl_add_u32 v33, v30, 30, v33\n v_add_u32 v{MP}, s{S_T0}, v33")
        E(f"s_lshr_b32 s{S_T0}, s{S_H}, 2\n s_lshl_b32 s{S_T0}, s{S_T0}, 6\n s_and_b32 s{S_T1}, s{S_H}, 1\n s_lshl_b32 s{S_T1}, s{S_T1}, 5\n s_add_u32 s{S_T0}, s{S_T0}, s{S_T1}")
        E(f"s_and_b32 s{S_T1}, s{S_H}, 2\n s_lshl_b32 s{S_T1}, s{S_T1}, 11\n s_add_u32 s{S_T0}, s{S_T0}, s{S_T1}")
        E(f"v_lshlrev_b32 v35, 10, v21\n v_lshl_add_u32 v35, v{37 if fine else 31}, {2 if fine else 1}, v35\n v_lshl_add_u32 v35, v{38 if fine else 29}, 4, v35\n v_add_u32 v35, s{S_T0}, v35")
        for k in range(4):
            E.vmem(f"buffer_load_ushort v{44+k}, v35, s[76:79], 0 offen offset:{(k >> 1)*512 + (k & 1)*(2 if fine else 8)}")
        E("v_lshlrev_b32 v33, 4, v29\n v_mov_b32 v34, 0x3f80\n v_lshlrev_b32 v33, v33, v34\n v_and_b32 v34, 1, v20\n v_lshl_add_u32 v34, v34, 1, v30")
        for a_ in range(4):
            E(f"v_cmp_eq_u32 vcc, {a_}, v34\n s_nop 1\n v_cndmask_b32 v{48+a_}, 0, v33, vcc")
        E.ds(f"ds_write_b128 v{L16}, v[48:51] offset:{L_SEL}")
        E(f"v_lshlrev_b32 v33, 9, v21\n s_lshl_b32 s{S_T0}, s{S_W}, 11\n v_add_u32 v33, s{S_T0}, v33")
        E(f"v_lshl_add_u32 v{VD}, v22, 4, v33")
        E(f"v_lshl_add_u32 v33, v30, 8, v33\n v_add_u32 v{KD}, v33, v32")
        for i in range(4): E(f"v_mov_b32 v{ONES+i}, 0x3f803f80")
        if self.merged:
            E(f"v_and_b32 v33, 1, v20\n v_mul_u32_u24 v33, {(self.merged['r2'] - self.merged['r1'])*128}, v33\n v_min_u32 v34, 1, v20\n v_lshlrev_b32 v34, 30, v34")
            E(f"s_cmp_eq_u32 s{S_W}, 3\n s_cselect_b64 vcc, -1, 0\n v_cndmask_b32 v{XTR}, v34, v33, vcc\n v_mov_b64 v[60:61], 0\n v_mov_b32 v62, {L_FLG}")
            E.ds("ds_write_b64 v62, v[60:61]")
        E(f"s_mov_b32 s{S_HI}, 0\n s_mov_b32 s{S_HI+1}, -1")
        E(f"s_mov_b32 s{S_SCALE}, {hex(fbits(math.log2(math.e) / math.sqrt(128.0)))}")
        lo, hi = fbits(2.0 ** -32), fbits(2.0 ** 48)
        E(f"s_mov_b32 s{S_LO}, {hex(lo)}\n s_mov_b32 s{S_RNG}, {hex(hi - lo)}")
        E(f"s_lshl_b32 s{S_T0}, s{S_W}, 10")
        E(f"s_add_u32 s{S_MK0}, s{S_T0}, {L_KX}\n s_add_u32 s{S_MK1}, s{S_T0}, {L_KX + 4096 - 128}")
        E(f"s_add_u32 s{S_MV0}, s{S_T0}, {L_VX}\n s_add_u32 s{S_MV1}, s{S_T0}, {L_VX + 4096 - 256}")
        E(f"s_lshl_b32 s{S_T0}, s{S_H}, 19\n s_add_u32 s{S_KD}, s{S_T0}, {KB}\n s_add_u32 s{S_VD}, s{S_T0}, {VB}")
        E(f"s_mul_i32 s{S_T0}, s{S_H}, {KMB}\n s_add_u32 s{S_KE}, s{S_T0}, {KM}")
        E(f"s_lshl_b32 s{S_T0}, s{S_H}, 13\n s_add_u32 s{S_IN0}, s{S_T0}, {INBOX}\n s_add_u32 s{S_IN1}, s{S_T0}, {INBOX + 4096}")
        E(f"s_mov_b32 s{S_PST0}, {INBOX}\n s_mov_b32 s{S_PST1}, {INBOX + 4096}")
        for i in range(4): E(f"v_mov_b32 v{40+i}, -1")
        E(f"s_lshl_b32 s{S_T0}, s{S_W}, 13\n s_add_u32 s{S_T0}, s{S_T0}, {MEMS}\n s_add_u32 s{S_T1}, s{S_T0}, 4096")
        for ins in (f"buffer_store_dwordx4 v[40:43], v{WL16}, {ws()}, s{S_IN0} offen sc1", f"buffer_store_dwordx4 v[40:43], v{WL16}, {ws()}, s{S_IN1} offen sc1",
                    f"buffer_store_dword v40, v{MP}, {ws()}, s{S_T0} offen sc1", f"buffer_store_dword v40, v{MP}, {ws()}, s{S_T1} offen sc1"):
            E.vmem(ins, tag="init")
        if self.merged:
            E(f"v_mov_b32 v52, 0\n v_min_u32 v53, 1, v{WL16}\n v_lshlrev_b32 v53, 30, v53")
            E.vmem(f"buffer_store_dword v52, v53, {ws()}, s{S_FLG} offen sc1", tag="init")
        for n in range(2, WIN):
            issue(n)
        for n in range(32):
            consume(n)
            if n + WIN < 32:
                issue(n + WIN)
            if self.diag and n in (0, 12, 23): tmark(E, {0: 2, 12: 3, 23: 4}[n])
            if n == 2:
                assert not E.need("v[44:47]", tags=["init"])
                E("s_barrier")
                skip = E.label("T_arm")
                E(f"s_cmp_lg_u32 s{S_W}, 0\n s_cbranch_scc1 {skip}")
                E(f"s_getreg_b32 s{S_T0}, hwreg(HW_REG_XCC_ID, 0, 3)\n s_lshl_b32 s{S_T0}, s{S_T0}, 3\n s_lshl_b64 s[60:61], 1, s{S_T0}\n s_mov_b32 s62, 1")
                E(f"s_atomic_add_x2 s[60:61], s[{S_DBG}:{S_DBG+1}], 0")
                if self.merged: E(f"s_atomic_add s62, s[{S_DBG}:{S_DBG+1}], {self.merged['init_off']}")
                E("v_lshl_or_b32 v44, v45, 16, v44\n v_lshl_or_b32 v46, v47, 16, v46\n v_min_u32 v44, -2, v44\n v_min_u32 v46, -2, v46")
                E(f"s_mov_b32 s{S_T0}, {MEMS}\n s_mov_b32 s{S_T1}, {MEMS + 4096}")
                E(f"buffer_store_dword v44, v{MP}, {ws()}, s{S_T0} offen sc1\n buffer_store_dword v46, v{MP}, {ws()}, s{S_T1} offen sc1")
                E(skip + ":")
            ldc = ["buffer_load_dwordx2 v[54:55], off, s[72:75], 0 sc1"]
            if self.merged: ldc.append(f"buffer_load_dword v56, off, s[72:75], 0 offset:{self.merged['init_off']} sc1")
            if n == 30 - 2*WIN:
                for x in ldc: E.vmem(x)
            if n == 31 - WIN:
                assert not E.need("v[54:56]")
                lp, go = E.label("T_arr"), E.label("T_arrgo")
                E(f"s_mov_b32 s{S_CNT}, 0\n s_branch {go}")
                E(lp + ":")
                E(f"s_add_u32 s{S_CNT}, s{S_CNT}, 1\n s_cmp_gt_u32 s{S_CNT}, {POLL_MAX}\n s_cbranch_scc1 {fail}")
                for x in ldc: E(x)
                E("s_waitcnt vmcnt(0)")
                E(go + ":")
                E(f"v_sad_u8 v57, v54, 0, 0\n v_sad_u8 v57, v55, 0, v57\n v_or_b32 v58, v54, v55\n v_cmp_gt_u32 vcc, 32, v57\n s_cbranch_vccnz {lp}")
                if self.merged: E(f"v_cmp_gt_u32 vcc, 0x100, v56\n s_cbranch_vccnz {lp}")
                E(f"v_readfirstlane_b32 s{S_T0}, v58\n s_nop 0\n s_and_b32 s{S_T0}, s{S_T0}, 0x20202020\n s_cselect_b32 s{S_MODE}, 0, 1")
                if self.merged:
                    E(f"s_mov_b32 s{S_STEP}, -1\n s_mov_b32 s{S_RDY}, -1")
                    self.wait_kv(fail)
                for x in self.dma_list():
                    E(x[0]); E("s_nop 0"); E.vmem(x[1], tag="dma")
                self.dma_adv()
                E(f"s_lshl_b32 s{S_T0}, s{S_H}, 10\n s_add_u32 s{S_T0}, s{S_T0}, {MEMS}")
                E.vmem(f"buffer_load_dwordx4 v[40:43], v{L16}, {ws()}, s{S_T0} offen sc1")
        if self.diag: tmark(E, 5)
        E.drain(vm=True, lg=True)
        E("s_barrier")
        self.prefetch_p(); self.prefetch_vx(); self.prefetch_kx()
        E(f"s_and_b32 s{S_T0}, s{S_W}, 1\n s_lshl_b32 s{S_T0}, s{S_T0}, 12\n s_add_u32 s{S_IN0}, s{S_IN0}, s{S_T0}\n s_add_u32 s{S_MB}, s{S_T0}, {MEMS}")
        E(f"s_mov_b32 s{S_STEP}, -1")
        self.step_scalars()
        E.drain(lg=True)

    def wait_kv(self, fail):
        E = self.E; M = self.merged
        lp, ok = E.label("T_kv"), E.label("T_kvok")
        E(f"s_mov_b32 s{S_CNT}, 0")
        E(f"s_branch {ok}")
        E(lp + ":")
        E("s_sleep 4")
        E(f"s_add_u32 s{S_CNT}, s{S_CNT}, 1\n s_cmp_gt_u32 s{S_CNT}, {POLL_MAX}\n s_cbranch_scc1 {fail}")
        E(ok + ":")
        E(f"s_add_u32 s{S_T3}, s{S_KVF}, {(M['r2'] - M['r1'])*128}\n s_mov_b32 s{S_T2}, 0\n s_mov_b32 s{S_T1}, 0")
        E(f"s_atomic_or s{S_T2}, s[{S_WSP}:{S_WSP+1}], s{S_KVF} glc\n s_atomic_or s{S_T1}, s[{S_WSP}:{S_WSP+1}], s{S_T3} glc\n s_waitcnt lgkmcnt(0)")
        self.kv_ready()
        E(f"s_cmp_ge_i32 s{S_STEP}, s{S_RDY}\n s_cbranch_scc1 {lp}")

    def kv_ready(self):
        E = self.E; M = self.merged
        E(f"s_add_u32 s{S_T1}, s{S_T1}, {M['n1']}\n s_cmp_ge_u32 s{S_T2}, {M['n1']}\n s_cselect_b32 s{S_T2}, s{S_T1}, s{S_T2}")
        E(f"s_cmp_ge_u32 s{S_T2}, 64\n s_cselect_b32 s{S_T2}, 100, s{S_T2}\n s_sub_u32 s{S_T2}, s{S_T2}, 1\n s_max_i32 s{S_RDY}, s{S_RDY}, s{S_T2}")

    def kv_refresh(self):
        E = self.E
        E(f"ds_read_b64 {v(KX(2),2)}, v{L16} offset:{L_FLG}\n s_waitcnt lgkmcnt(0)")
        E(f"v_readfirstlane_b32 s{S_T2}, v{KX(2)}\n v_readfirstlane_b32 s{S_T1}, v{KX(2)+1}\n s_nop 0")
        self.kv_ready()

    def dma_list(self):
        return [(f"s_mov_b32 m0, s{S_MK0}", f"buffer_load_dwordx4 v{KD}, {ws()}, s{S_KD} offen sc1 lds"),
                (f"s_mov_b32 m0, s{S_MK1}", f"buffer_load_dwordx4 v{KD}, {ws()}, s{S_KD} offen offset:128 sc1 lds"),
                (f"s_mov_b32 m0, s{S_MV0}", f"buffer_load_dwordx4 v{VD}, {ws()}, s{S_VD} offen sc1 lds"),
                (f"s_mov_b32 m0, s{S_MV1}", f"buffer_load_dwordx4 v{VD}, {ws()}, s{S_VD} offen offset:256 sc1 lds")]

    def dma_adv(self):
        self.E(f"s_add_u32 s{S_KD}, s{S_KD}, 8192\n s_add_u32 s{S_VD}, s{S_VD}, 8192")

    def rd_op(self, o, half, reg):
        return f"ds_read_b128 {v(reg + 4*half, 4)}, v{WOP} offset:{LDS_SLOT[o]*2048 + half*1024}"

    def p_list(self):
        return [self.rd_op(o, hf, P_REG[o]) for o in sorted(P_OPS, key=lambda o: P_REG[o]) for hf in range(2)]

    def prefetch_p(self):
        for x in self.p_list(): self.E.ds(x)

    def prefetch_vx(self):
        for j in range(2):
            self.E.ds(f"ds_read_b128 {v(VX + 4*j, 4)}, v{WL16} offset:{L_VX + 4096*j}")

    def prefetch_kx(self):
        for f in range(8):
            self.E.ds(f"ds_read_b128 {v(KX(f), 4)}, v{L16} offset:{L_KX + 1024*f}")

    def zero_acc(self):
        for i in range(6):
            self.E(f"v_mov_b64 {v(AQ + 2*i, 2)}, 0")

    def scalar_list(self):
        if self.opt["rearm"]:
            return [f"s_and_b32 s{S_PH}, s{S_STEP}, 1", f"s_add_u32 s{S_T0}, s{S_STEP}, 1", f"s_and_b32 s{S_T0}, s{S_T0}, 3", f"s_lshl_b32 s{S_T0}, s{S_T0}, 13",
                    f"s_add_u32 s{S_PUB}, s{S_T0}, s{S_MB}", f"s_xor_b32 s{S_MRE}, s{S_PUB}, 0x4000",
                    f"s_add_u32 s{S_MEM0}, s{S_T0}, {MEMS}", f"s_add_u32 s{S_MEM1}, s{S_T0}, {MEMS + 4096}", "s_nop 0"]
        return [f"s_and_b32 s{S_PH}, s{S_STEP}, 1", f"s_and_b32 s{S_T0}, s{S_STEP}, 3", f"s_lshl_b32 s{S_T0}, s{S_T0}, 13",
                f"s_add_u32 s{S_MRE}, s{S_T0}, s{S_MB}", f"s_add_u32 s{S_T0}, s{S_T0}, 8192", f"s_and_b32 s{S_T0}, s{S_T0}, 0x7fff",
                f"s_add_u32 s{S_MEM0}, s{S_T0}, {MEMS}", f"s_add_u32 s{S_MEM1}, s{S_T0}, {MEMS + 4096}",
                f"s_add_u32 s{S_PUB}, s{S_T0}, s{S_MB}"]

    def step_scalars(self):
        for x in self.scalar_list(): self.E(x)

    def run(self, prog, first_need=True):
        E = self.E
        if first_need:
            E.need(*prog[0][1])
        for n, (ins, _, fill) in enumerate(prog):
            E(ins)
            l0 = len(E.lines)
            toks = list(prog[n + 1][1]) if n + 1 < len(prog) else []
            tags = []
            for f in fill:
                if isinstance(f, tuple) and f[0] == "need":
                    toks += list(f[1]); tags += list(f[2])
            E.need(*toks, tags=tags)
            for f in fill:
                if isinstance(f, tuple) and f[0] == "nop":
                    k = f[1] - len([x for x in E.lines[l0:] if hazard.parse(x) and "memtime" not in x])
                    if k > 0: E(f"s_nop {k - 1}")
                else:
                    self.put(f)

    def put(self, f):
        E = self.E
        if callable(f):
            f()
        elif isinstance(f, tuple):
            if f[0] == "need":
                return
            (E.ds if f[0].startswith("ds_") else E.vmem)(f[0], tag=f[1])
        elif f.startswith("ds_"):
            E.ds(f)
        elif f.startswith("buffer_"):
            E.vmem(f)
        else:
            E(f)

    def loops(self, mode, done, fail, xsc=""):
        E = self.E
        labs = [E.label("T_w") for _ in range(4)]
        for w in range(1, 4): E(f"s_cmp_eq_u32 s{S_W}, {w}\n s_cbranch_scc1 {labs[w]}")
        errs = []
        for w in range(4):
            E(labs[w] + ":")
            errs += self.loop(mode, w, done, fail, xsc)
        return errs

    def loop(self, mode, w, done, fail, xsc=""):
        E = self.E
        O = self.opt
        sc = " sc1" if mode else ""
        self.nst = 0; self.names = []
        cvt = lambda d, a0: f"v_cvt_pk_bf16_f32 v{d}, v{a0}, v{a0+1}"
        zero = lambda d: f"v_mov_b64 {v(d,2)}, 0"
        st = lambda name: (lambda: self.stamp(name))
        ror = lambda d, x: f"v_mov_b32_dpp v{d}, v{x} row_ror:8 row_mask:0xf bank_mask:0xf"
        def smf(d, a_, b_, first): return f"v_mfma_f32_16x16x32_bf16 {v(d,4)}, {v(a_,4)}, {v(b_,4)}, {'0' if first else v(d,4)}"
        cntchk = f"s_add_u32 s{S_CNT}, s{S_CNT}, 1\n s_cmp_gt_u32 s{S_CNT}, {POLL_MAX}\n s_cbranch_scc1 {fail}"
        NS = O["h2sets"]
        FR = {(0,0): 14, (0,1): 13, (1,0): 4, (1,1): 5, (2,0): 8, (2,1): 13, (3,0): 6, (3,1): 7,
              (4,0): 12, (4,1): 14, (5,0): 9, (5,1): 10, (6,0): 11, (6,1): 4, (7,0): 5, (7,1): 8}
        H0, Y0, H1, Y4 = Q(14), Q(13), Q(12), Q(14)
        one = O["one"]
        if one:
            FR = {(0,0): 14, (0,1): 13, (4,0): 12, (4,1): 4, (1,0): 8, (1,1): 13, (2,0): 6, (2,1): 7,
                  (3,0): 12, (3,1): 14, (5,0): 9, (5,1): 10, (6,0): 11, (6,1): 4, (7,0): 5, (7,1): 8}
            Y4 = Q(4)
        ld0 = f"buffer_load_dwordx4 {v(H0,4)}, v{L16}, {ws()}, s{S_MEM0} offen offset:{1024*w} sc1"
        ld1 = f"buffer_load_dwordx4 {v(H1,4)}, v{L16}, {ws()}, s{S_MEM1} offen offset:{1024*w} sc1"
        chk = lambda x, t: [f"v_max3_u32 v{t}, v{x}, v{x+1}, v{x+2}", f"v_max_u32 v{t}, v{t}, v{x+3}", f"v_cmp_eq_u32 vcc, -1, v{t}"]
        if one: ld0 = ld0 + "\n" + ld1
        top, retry = E.label("T_loop"), E.label("T_retry")
        E(f"s_mov_b32 s{S_CNT}, 0")
        self.zero_acc()
        for k in range(NS): E(ld0)
        E(f"s_branch {top}")
        E(".p2align 6")
        E(retry + ":")
        if O["h2mask"]: E("s_mov_b64 exec, vcc")
        E(ld0)
        if O["h2mask"]: E("s_mov_b64 exec, -1")
        E(cntchk)
        E(top + ":")
        E(f"s_waitcnt vmcnt({2*NS - 1 if one else NS - 1}) lgkmcnt(0)")
        body0 = len(E.lines)
        wr = lambda x, u, k=None: (f"ds_write_b128 v{L16}, {v(x,4)} offset:{L_MEM + 4096*u + 1024*w}" if k is None else
                                   f"ds_write_b64 v{L16}, {v(x+2*k,2)} offset:{L_MEM + 4096*u + 1024*w + 8*k}")
        if one:
            t = Y0 + 3
            E(f"v_max3_u32 v{t}, v{H0}, v{H0+1}, v{H0+2}\n v_max_u32 v{t}, v{t}, v{H0+3}")
            E(ror(Y0, H0)); E(ror(Y0 + 1, H0 + 1))
            E(f"s_waitcnt vmcnt({2*NS - 2})")
            E(f"v_max3_u32 v{t}, v{t}, v{H1}, v{H1+1}\n v_max3_u32 v{t}, v{t}, v{H1+2}, v{H1+3}\n v_cmp_eq_u32 vcc, -1, v{t}")
            E(f"s_cbranch_vccnz {retry}")
            E.lg = []; E.vm = [{"poll"}] if NS > 1 else []
        else:
            for x in chk(H0, Y0 + 3): E(x)
            E(f"s_cbranch_vccnz {retry}")
            E.lg = []; E.vm = []
            E.ds(wr(H0, 0), tag="e0w")
            E(ror(Y0, H0)); E(ror(Y0 + 1, H0 + 1))
        if self.stamps: E(f"s_mov_b32 s95, s{S_CNT}")
        self.stamp("hop2")
        def F(p, xy): return f"ds_read_b128 {v(Q(FR[p, xy]),4)}, v{YRD if xy else L16} offset:{L_MEM + 1024*(p ^ w)}"
        opreg = dict(RES_REG); opreg.update(P_REG)
        for n, o in enumerate(J_OPS): opreg[o] = Q(2 * (n & 1))
        acc = dict(q=AQ, k=AK, v=AV)
        def sm(m, p, xy):
            return (f"v_smfmac_f32_16x16x64_bf16 {v(acc[m],4)}, {v(Q(FR[p, xy]),4)}, {r(opreg[m, p, xy],8)}, v{IDX}",
                    (v(Q(FR[p, xy]), 4), r(opreg[m, p, xy], 8)))
        seq = [(m, p, xy) for p in range(3) for xy in range(2) for m in "qkv"]
        seq += [(m, p, xy) for p in (3, 4) for xy in range(2) for m in "qk"]
        seq += [(m, p, xy) for m in "qk" for p in (5, 6, 7) for xy in range(2)]
        seq += [("v", p, xy) for p in range(3, 8) for xy in range(2)]
        if one:
            seq = [(m, p, xy) for p in (0, 4, 1) for xy in range(2) for m in "qkv"]
            seq += [(m, p, xy) for m in "qkv" for p in (2, 3, 5, 6, 7) for xy in range(2)]
        J = lambda n, hf: self.rd_op(J_OPS[n], hf, Q(2 * (n & 1)))
        PQ, PK = Q(13), Q(13) + 2
        PV_ = PQ
        mul = lambda i: f"v_mul_f32 v{AQ+i}, s{S_SCALE}, v{AQ+i}"
        c1 = chk(H1, Q(9))
        dma = self.dma_list()
        sal = self.scalar_list()
        late, lateok = E.label("T_late"), E.label("T_lateok")
        KF = [Q(12), Q(14), Q(9), Q(10)]
        WA = [Q(6), Q(7), KX(0), KX(1)]
        trq = [f"ds_read_b64_tr_b16 {v(Q(kk) + 2*hi, 2)}, v{TR} offset:{L_QM + (32*kk + 8*hi)*8}" for kk in range(4) for hi in range(2)]
        trk = [f"ds_read_b64_tr_b16 {v(KF[kk] + 2*hi, 2)}, v{TR} offset:{L_KM + (32*kk + 8*hi)*8}" for kk in range(4) for hi in range(2)]
        zl = [zero(WA[k >> 1] + 2*(k & 1)) for k in range(8)]
        fill = {n: [] for n in range(48)}
        kvw, kvb = E.label("T_kvw"), E.label("T_kvb")
        adv = "0x10000000" if O.get("noadv") == 2 else 8192
        if one:
            b1 = O["b1one"]
            if O["wkind"] == 128:
                fill[0].append(wr(H0, 0)); fill[O["w2at"]].append((wr(H1, 1), "e0w"))
            else:
                for k in range(4): fill[k].append((wr(H1 if k > 1 else H0, k >> 1, k & 1), "e0w"))
            fill[0] = [f"s_add_u32 s{S_STEP}, s{S_STEP}, 1"] + fill[0] + [ror(Y0 + 2, H0 + 2)]
            fill[1] += [ror(Y0 + 3, H0 + 3)]
            for n, x in {4: J(0,0), 5: J(0,1), 6: J(1,0), 10: J(1,1), 22: J(2,0), 23: J(2,1), 24: J(3,0), 25: J(3,1),
                         30: J(4,0), 31: J(4,1), 32: J(5,0), 33: J(5,1)}.items():
                fill[n].append(x)
            for k in range(4): fill[3 + k].append(ror(Y4 + k, H1 + k))
            for k in range(6): fill[1 + k].insert(0, sal[k])
            fill[b1] = [("need", [], ["e0w"]), "s_barrier", F(1,0)] + fill[b1]
            fill[b1 + 1] = [dma[0][0], F(1,1)] + fill[b1 + 1]
            for k, (p, xy) in enumerate([(p, xy) for p in (2, 3, 5, 6, 7) for xy in range(2)]): fill[12 + k].append(F(p, xy))
            fill[14].insert(0, ("need", [], ["poll"]))
            if self.merged: fill[9] += [f"s_cmp_ge_i32 s{S_STEP}, s{S_RDY}", f"s_cbranch_scc1 {kvw}", kvb + ":"]
            d0 = O["dma1"] + w
            for k in range(O.get("ndma", 4)):
                n = d0 + 4 * k
                fill[n].append((dma[k][1], "dma"))
                if k < 3: fill[n + 1].append(dma[k + 1][0])
            fill[27] += sal[6:8]; fill[28] += sal[8:9]
            for k in range(4): fill[30 + k].append(mul(k))
            fill[34].append(cvt(PQ, AQ)); fill[35].append(cvt(PQ + 1, AQ + 2))
            fill[36].append((f"ds_write_b64 v{QW}, {v(PQ,2)} offset:{L_QM}", "qw"))
        else:
            b1 = O["b1at"]; hc = O["h1chk"]; b1b = O["b1bat"]
            fill[0] += [f"s_add_u32 s{S_STEP}, s{S_STEP}, 1"]
            fill[O["ld1at"]].append(ld1)
            fill[0] += [ror(Y0 + 2, H0 + 2)]
            fill[1] += [sal[0], J(0,0), ror(Y0 + 3, H0 + 3)]
            fill[b1] += [("need", [], ["e0w"]), "s_barrier", F(1,0)]
            fill[b1 + 1] += [F(1,1)]
            for n, x in {5: F(2,0), 6: J(0,1), 7: F(2,1), 8: J(1,0), 9: J(1,1), 10: F(3,0), 11: F(3,1), 15: J(2,0), 16: J(2,1),
                         19: J(3,0), 20: J(3,1), 28: J(4,0), 29: J(4,1), 30: J(5,0), 31: J(5,1)}.items():
                fill[n].append(x)
            for k, n in enumerate((4, 6, 7, 9, 10)): fill[n].insert(0, sal[1 + k])
            fill[hc] = [("need", [v(H1, 4)], [])] + fill[hc] + [c1[0]]
            fill[hc + 1].append(c1[1]); fill[hc + 2].append(c1[2])
            fill[hc + 3] = [f"s_cbranch_vccnz {late}", lateok + ":", f"ds_write_b64 v{L16}, {v(H1,2)} offset:{L_MEM + 4096 + 1024*w}"] + fill[hc + 3]
            fill[hc + 4] = [(f"ds_write_b64 v{L16}, {v(H1+2,2)} offset:{L_MEM + 4096 + 1024*w + 8}", "h1w")] + fill[hc + 4]
            for k in range(4): fill[hc + 4 + k].append(ror(Y4 + k, H1 + k))
            fill[b1b] = [("need", [], ["h1w"]), "s_barrier", F(5,0)] + fill[b1b]
            for k, (p, xy) in enumerate(((5,1), (6,0), (6,1), (7,0), (7,1))): fill[b1b + 1 + k].append(F(p, xy))
            if self.merged:
                fill[12] += [f"s_cmp_ge_i32 s{S_STEP}, s{S_RDY}", f"s_cbranch_scc1 {kvw}", kvb + ":"]
            d0 = O["dma0"] + w * O["dmaw"]
            fill[13].append(dma[0][0])
            for k in range(4):
                n = d0 + O["dmas"] * k
                fill[n].append((dma[k][1], "dma"))
                if k < 3: fill[n + 1].insert(0, dma[k + 1][0])
            adv = 0 if O.get("noadv") else 8192
            fill[32] = sal[6:8] + fill[32]; fill[33].insert(0, sal[8])
            qc = O["qat"]
            fill[qc] += [mul(0), mul(1)]; fill[qc + 1] += [mul(2), mul(3)]; fill[qc + 2] += [cvt(PQ, AQ), cvt(PQ + 1, AQ + 2)]
            fill[qc + 3].insert(0, (f"ds_write_b64 v{QW}, {v(PQ,2)} offset:{L_QM}", "qw"))
        fill[37] += [st("qk")]
        if self.stamps and not O.get("dumplate"): fill[37] += [lambda: self.dump_stamps(PK), st("dump")]
        fill[38] += [zl[0]]
        fill[39] += [("nop", 2), cvt(PK, AK), cvt(PK + 1, AK + 2)]
        fill[40] += [(f"ds_write_b64 v{QW}, {v(PK,2)} offset:{L_KM}", "kw"), zl[1]]
        kexp = f"buffer_store_dwordx2 {v(PK,2)}, v{QW}, {ws()}, s{S_KE} offen{xsc}"
        advs = [f"s_add_u32 s{S_KD}, s{S_KD}, {adv}", f"s_add_u32 s{S_VD}, s{S_VD}, {adv}"]
        if O.get("noadv"): advs = [f"s_xor_b32 s{S_KD}, s{S_KD}, 8192", f"s_xor_b32 s{S_VD}, s{S_VD}, 8192"]
        if one:
            fill[41] += [("need", [], ["qw"]), "s_barrier", trq[0]]
            fill[42] += [advs[0]] + trq[1:3]; fill[43] += [advs[1]] + trq[3:5]; fill[44] += ["s_nop 0"] + trq[5:7]
            fill[45] += [trq[7], zl[2]]
            fill[46] += [("need", [], ["kw"]), "s_barrier", trk[0]]
            fill[47] += [trk[1], kexp, st("B2")]
        else:
            fill[41] += [kexp, zl[2]]
            fill[42] += [("need", [], ["qw"]), "s_barrier", trq[0]]
            fill[43] += [advs[0]] + trq[1:3]
            fill[44] += [advs[1]] + trq[3:5]
            fill[45] += [("need", [], ["kw"]), "s_barrier", trq[5]]
            fill[46] += ["s_nop 0"] + trq[6:8]
            fill[47] += trk[0:2] + [st("B2")]
        for n in O.get("pst", ()): fill[n].insert(0, st(f"n{n}"))
        prog = [sm(*o) + (fill[n],) for n, o in enumerate(seq)]
        SX0, SX1, SM_ = AQ, AK, Q(11)
        TMP, PX, PM, PMM, LA, O0, O1 = Q(8), KX(2), Q(4), KX(3), Q(5), AV, Q(12)
        sq = [(SX0, KX(kk), Q(kk), kk == 0) for kk in range(4)] + [(SM_, KF[kk], Q(kk), kk == 0) for kk in range(4)] \
            + [(SX1, KX(4+kk), Q(kk), kk == 0) for kk in range(4)]
        ex = lambda i, src: f"v_exp_f32 v{TMP+i}, v{src+i}"
        cnds = [f"v_cndmask_b32 v{PMM}, v{PM}, 0, s[{S_HI}:{S_HI+1}]", f"v_cndmask_b32 v{PMM+1}, v{PM+1}, 0, s[{S_HI}:{S_HI+1}]",
                f"v_cndmask_b32 v{PMM+2}, 0, v{PM}, s[{S_HI}:{S_HI+1}]", f"v_cndmask_b32 v{PMM+3}, 0, v{PM+1}, s[{S_HI}:{S_HI+1}]"]
        sf = {n: [] for n in range(12)}
        sf[0] += trk[2:4]; sf[1] += trk[4:6]; sf[2] += trk[6:8]
        sf[3] += [cvt(PV_, AV), cvt(PV_ + 1, AV + 2)]
        sf[4] += [f"buffer_store_dwordx2 {v(PV_,2)}, v{QW}, {ws()}, s{S_KE} offen offset:{2*MHS}{xsc}", zl[3]]
        sf[5] += [("nop", 1), zl[4], ex(0, SX0)] if O["ex5"] else [zl[4]]
        e0 = 1 if O["ex5"] else 0
        if O["ex5"]:
            sf[6] += [ex(1, SX0)]; sf[7] += [ex(2, SX0)]; sf[8] += [ex(3, SX0)]
            sf[9] += [cvt(PX, TMP), cvt(PX + 1, TMP + 2)]; sf[10] += [ex(0, SM_)]
        else:
            for k in range(4): sf[6 + k] += [ex(k, SX0)]
            sf[10] += [cvt(PX, TMP), cvt(PX + 1, TMP + 2)]
        sf[7].insert(0, f"s_add_u32 s{S_KE}, s{S_KE}, {0 if O.get('noexp') else 32*KMB}")
        sf[8].insert(0, f"s_cmp_eq_u32 s{S_STEP}, 63"); sf[9].insert(0, f"s_cbranch_scc1 {done}")
        sf[11] += [ex(k, SM_) for k in range(e0, 4)] + [cvt(PM, TMP), cvt(PM + 1, TMP + 2)] + cnds + [st("S"), ex(0, SX1)]
        prog += [(smf(*x), (v(x[1], 4), v(x[2], 4)), sf[n]) for n, x in enumerate(sq)]
        m16 = lambda d, a_, b_: f"v_mfma_f32_16x16x16_bf16 {v(d,4)}, {v(a_,2)}, {v(b_,2)}, 0"
        pvm = [m16(LA, ONES, PMM), m16(O0, PV_, PMM), m16(O1, PV_, PMM + 2)]
        pvx = [smf(LA, ONES, PX, False), smf(O0, VX, PX, False), smf(O1, VX + 4, PX, False)]
        slow, back = E.label("T_slow"), E.label("T_back")
        OREG = [KX(4), KX(6), Q(2), VX]
        for n, o in enumerate(O_OPS): opreg[o] = OREG[n]
        rdo = [self.rd_op(o, hf, OREG[n]) for n, o in enumerate(O_OPS) for hf in range(2)]
        xtra = []
        if self.merged and w == 2: xtra = [[f"v_mov_b32 v{PM+2}, s{S_STEP}"], [f"buffer_store_dword v{PM+2}, v{XTR}, {ws()}, s{S_FLG} offen sc1"]]
        if self.merged and w == 3: xtra = [[f"s_mov_b32 m0, {L_FLG}"], [f"buffer_load_dword v{XTR}, {ws()}, s{S_KVF} offen sc1 lds"]]
        if O["rearm"] and w < 2: xtra = [[f"v_mov_b32 v{PM+2}, -1"], [f"buffer_store_dword v{PM+2}, v{MP}, {ws()}, s{S_MRE} offen{sc}"]]
        if xtra:
            prog[48 + O["xat"]][2][:0] = xtra[1]; prog[47 + O["xat"]][2][(0 if w == 3 else 99):0] = xtra[0]
        prog += [(pvm[0], (), [ex(1, SX1)]), (pvm[1], (), [ex(2, SX1)]),
                 (pvm[2], (), [ex(3, SX1), cvt(PX + 2, TMP), cvt(PX + 3, TMP + 2), zl[5], "s_nop 0"]),
                 (pvx[0], (), [zl[6], zl[7]]),
                 (pvx[1], (), rdo[0:2]),
                 (pvx[2], (), ["s_nop 1", f"v_rcp_f32 v{LA+1}, v{LA}", f"v_subrev_u32 v{TMP}, s{S_LO}, v{LA}",
                               f"v_cmp_le_u32 vcc, s{S_RNG}, v{TMP}", f"v_mul_f32 v{O0}, v{LA+1}, v{O0}", f"v_mul_f32 v{O0+1}, v{LA+1}, v{O0+1}",
                               f"s_cbranch_vccnz {slow}", back + ":"])]
        for n in O.get("pst2", ()): prog[n][2].insert(0, st(f"n{n}"))
        self.run(prog, first_need=False)
        OWN = Q(14)
        pkm = lambda x: f"v_pk_mul_f32 {v(x,2)}, {v(x,2)}, {v(LA,2)} op_sel:[0,1] op_sel_hi:[1,1]"
        for x in (cvt(OWN, O0), pkm(O0 + 2), pkm(O1), pkm(O1 + 2), cvt(OWN+1, O0+2), cvt(OWN+2, O1), cvt(OWN+3, O1+2)): E(x)
        E.ds(f"ds_write_b128 v{OB}, {v(OWN,4)} offset:{L_OM + 512*w}", tag="ow")
        self.stamp("PV")
        E("s_nop 0")
        OF = [OWN, Q(9), Q(10), Q(0)]
        SEL, RD, TG = Q(12), Q(13), KX(3)
        U0, U1 = AQ, AK
        so = lambda p, t: (f"v_smfmac_f32_16x16x64_bf16 {v(WA[t],4)}, {v(OF[p],4)}, {r(opreg[('o',p,t)],8)}, v{IDX}",
                           (v(OF[p], 4), r(opreg[('o', p, t)], 8)))
        tag = lambda x: f"v_bfi_b32 v{x}, 1, s{S_PH}, v{x}"
        oq = [(0, t) for t in range(4)] + [(p, t) for p in (1, 2, 3) for t in (0, 1)] + [(p, t) for p in (1, 2, 3) for t in (2, 3)]
        if O["fine"]: oq = oq[:4] + [(p, t) for t in range(4) for p in (1, 2, 3)]
        of = {n: [] for n in range(16)}
        nb3 = O["b3at"]
        of[nb3] = [("need", [], ["ow"]), "s_barrier"] + [f"ds_read_b128 {v(OF[p],4)}, v{OB} offset:{L_OM + 512*(p ^ w)}" for p in (1, 2, 3)] + [st("B3")]
        of[3] += [lambda: E.need(v(OF[1], 4))]
        rd2 = rdo[4:6] + rdo[2:4] + rdo[6:8] if O["fine"] else rdo[2:]
        for k, n in enumerate((4, 5, 6, 7, 8, 10) if O["fine"] else range(4, 10)): of[n] += rd2[k:k + 1]
        if w < 2: of[13 if O["fine"] else 10] += [f"ds_read_b128 {v(SEL,4)}, v{L16} offset:{L_SEL}"]
        u0v = [cvt(U0, WA[0]), cvt(U0+1, WA[0]+2), tag(U0), cvt(U0+2, WA[1]), cvt(U0+3, WA[1]+2)]
        u0s = [f"buffer_store_dwordx4 {v(U0,4)}, v{PS}, {ws()}, s{S_PST0} offen{sc}", st("u0")]
        if O["fine"]:
            uv = lambda t: [cvt(U0 + 2*t, WA[t]), cvt(U0 + 2*t + 1, WA[t] + 2), tag(U0 + 2*t)]
            us = lambda t: f"buffer_store_dwordx2 {v(U0 + 2*t, 2)}, v{PS}, {ws()}, s{S_PST0 + (t >> 1)} offen offset:{64*(t & 1)}{sc}"
            for t in range(3):
                if O["fine"] == 1 or t == 0:
                    of[8 + 3*t] += [("nop", 2)] + uv(t); of[9 + 3*t] += [us(t)]
                else:
                    of[8 + 3*t] += [("nop", 2)] + uv(t)[:1]; of[9 + 3*t] += uv(t)[1:]
                    if t == 1: of[13].insert(0, us(t))
                    else: of[15] += [us(t)]
            of[9].append(st("u0"))
            of[15] += [("nop", 8)] + uv(3) + [us(3), st("Wo")]
        elif O["u0at"] == 0:
            of[11] += u0v; of[12] += u0s
        elif O["u0at"] == 1:
            of[10] += [("nop", 2)] + u0v[:1]; of[11] += u0v[1:3]; of[12] += u0v[3:]; of[13] += u0s
        else:
            of[10] += [("nop", 2)] + u0v[:1]
            rest = u0v[1:]; per = {0: [4], 1: [2, 2], 2: [1, 1, 2], 3: [1, 1, 1, 1]}[w]
            for k, c in enumerate(per):
                of[11 + k] += rest[:c]; rest = rest[c:]
            of[12 + w][:0] = u0s
        if not O["fine"]: of[15] += [("nop", 5), cvt(U1, WA[2]), cvt(U1+1, WA[2]+2), tag(U1), cvt(U1+2, WA[3]), cvt(U1+3, WA[3]+2),
                   f"buffer_store_dwordx4 {v(U1,4)}, v{PS}, {ws()}, s{S_PST1} offen{sc}", st("Wo")]
        for n in O.get("pst3", ()): of[n].insert(0, st(f"o{n}"))
        self.run([so(p, t) + (of[n],) for n, (p, t) in enumerate(oq)])
        self.est = estimate(E.lines[body0:])
        if self.stamps and O.get("dumplate"): self.dump_stamps(KX(2)); self.stamp("dump")
        pre = ["s_waitcnt vmcnt(0) lgkmcnt(0)"] + E.lines[body0:]
        def gather(regs):
            return [f"buffer_load_dwordx4 {v(x,4)}, v{L16}, {ws()}, s{S_IN0} offen offset:{i*1024} sc1" for i, x in enumerate(regs)]
        G1 = [KX(4 + i) for i in range(4)]
        def reduce_(regs, after):
            for i, x in enumerate(regs):
                E(f"s_waitcnt vmcnt({3 - i + after})")
                E(smf(RD, SEL, x, i == 0))
                if i == 0: E(f"v_xor_b32 v{TG}, s{S_PH}, v{x}")
                else: E(f"v_bitop3_b32 v{TG}, v{TG}, v{x}, s{S_PH} bitop3:0xf6")
                if O["fine"]: E(f"v_bitop3_b32 v{TG}, v{TG}, v{x+2}, s{S_PH} bitop3:0xf6")
            E(f"v_and_b32 v{TG}, 1, v{TG}\n v_cmp_ne_u32 vcc, 0, v{TG}")
        def nops(n):
            for k in range(0, n, 16): E(f"s_nop {min(16, n - k) - 1}")
        errs = []
        pl = self.p_list()
        rds = [f"ds_read_b128 {v(VX + 4*j, 4)}, v{L16} offset:{L_VX + 4096*j + 1024*w}" for j in range(2)] \
            + [f"ds_read_b128 {v(KX(f), 4)}, v{L16} offset:{L_KX + 1024*f}" for f in range(8)]
        l0 = len(E.lines)
        p1, p1re, p1ok = E.label("T_p1"), E.label("T_p1re"), E.label("T_p1ok")
        nob = O["split"]
        if nob: assert O["rearm"]
        nst_ = 4 if O["fine"] else 2
        def finish():
            for i in range(2):
                E(f"v_add_f32_dpp v{RD+i}, v{RD+i}, v{RD+i} row_ror:8 row_mask:0xf bank_mask:0xf")
            E(cvt(TG, RD))
            E(f"v_min_u32 v{TG}, -2, v{TG}")
            E(f"buffer_store_dword v{TG}, v{MP}, {ws()}, s{S_PUB} offen{sc}")
            if not O["rearm"]: E(f"buffer_store_dword v{TG+1}, v{MP}, {ws()}, s{S_MRE} offen{sc}")
            if self.stamps: E(f"s_mov_b32 s94, s{S_CNT}")
        if nob: E(f"s_waitcnt vmcnt({nst_})\n s_barrier")
        npoll = NS
        if w < 2:
            npre = O["w1pre"] if w else O["h1pre"]
            ack = O["w1ack"] if w else O["h1ack"]
            kvp = O["kvpre"] if isinstance(O["kvpre"], int) else O["kvpre"][w]
            for x in pl[:npre]: E(x)
            if npre >= 2: self.zero_acc()
            E(f"s_mov_b32 s{S_CNT}, 0")
            if not O["rearm"]: E(f"v_mov_b32 v{TG+1}, -1")
            if self.merged and kvp: self.kv_refresh()
            if ack is not None: E(f"s_waitcnt vmcnt({ack})")
            nops(O["w1nop"] if w else O["h1nop"])
            for x in gather(G1): E(x)
            self.stamp("g1")
            for x in pl[npre:]: E(x)
            if npre < 2: self.zero_acc()
            if self.merged and not kvp: self.kv_refresh()
            E(f"s_waitcnt lgkmcnt({min(15, len(pl))})")
            if nob and w == 1:
                for x in rds[:5]: E(x)
                rds = rds[5:]
            reduce_(G1, 0)
            E(f"s_cbranch_vccnz {p1re}")
            l2 = len(E.lines)
            E(p1ok + ":")
            if nob and w == 1:
                E(ld0); npoll = NS - 2
            E(f"s_nop {(2 if O['fine'] else 3) - (1 if nob and w == 1 else 0)}")
            finish()
        else:
            for x in pl: E(x)
            self.zero_acc()
            if self.merged: self.kv_refresh()
            if nob:
                E(f"s_waitcnt vmcnt({O['w2ack']})")
                E(f"buffer_load_dword v{Y0}, off, {ws()}, s{S_MEM0} sc1")
                self.stamp("g1")
                E("s_waitcnt vmcnt(0)")
            else:
                self.stamp("g1")
                E(f"s_waitcnt vmcnt({nst_})")
        self.stamp("hop1")
        if not nob: E("s_barrier")
        cuts = list(O["h2cut"] if not nob or w == 0 else O["w1cut"] if w == 1 else O["w2cut"]) + [10]
        for x in rds[:cuts[0]]: E(x)
        for k in range(npoll):
            E(ld0)
            for x in rds[cuts[k]:(cuts[k + 1] if k + 1 < npoll else 10)]: E(x)
        E(f"s_mov_b32 s{S_CNT}, 0")
        self.stamp("top")
        E(f"s_branch {top}")
        l5 = len(E.lines)
        Ls = E.lines
        errs += hazard.check(pre + Ls[l0:l5] + pre, f"team w{w}")
        if w < 2:
            E(p1re + ":")
            if O["h1mask"]: E("s_mov_b64 exec, vcc")
            for x in gather(G1): E(x)
            if O["h1mask"]: E("s_mov_b64 exec, -1")
            E(cntchk)
            reduce_(G1, 0)
            E(f"s_cbranch_vccnz {p1re}\n s_branch {p1ok}")
            errs += hazard.check(pre + Ls[l0:l2] + Ls[l5:] + Ls[l2:l5] + pre, f"team w{w} retry")
        E.lg = []; E.vm = []
        if self.merged:
            E(kvw + ":")
            self.wait_kv(fail)
            E(f"s_branch {kvb}")
        if not one:
            E(late + ":")
            E(ld1); E(cntchk); E("s_waitcnt vmcnt(0)")
            for x in c1: E(x)
            if self.stamps: E(f"s_add_u32 s95, s95, 0x100")
            E(f"s_cbranch_vccnz {late}\n s_branch {lateok}")
        s0 = len(E.lines)
        E(slow + ":")
        M0, M1 = TMP, TMP + 1
        E("s_nop 7")
        E(f"v_max3_f32 v{M0}, v{SX0}, v{SX0+1}, v{SX0+2}\n v_max3_f32 v{M0}, v{M0}, v{SX0+3}, v{SX1}")
        E(f"v_max3_f32 v{M0}, v{M0}, v{SX1+1}, v{SX1+2}\n v_max3_f32 v{M0}, v{M0}, v{SX1+3}, v{SM_}")
        E(f"v_max3_f32 v{M0}, v{M0}, v{SM_+1}, v{SM_+2}\n v_max_f32 v{M0}, v{M0}, v{SM_+3}")
        for sw in ("32", "16"):
            E(f"v_mov_b32 v{M1}, v{M0}\n s_nop 1\n v_permlane{sw}_swap_b32 v{M0}, v{M1}\n s_nop 1\n v_max_f32 v{M0}, v{M0}, v{M1}")
        for base in (SX0, SX1, SM_):
            for i in range(4): E(f"v_sub_f32 v{base+i}, v{base+i}, v{M0}")
            for i in range(4): E(f"v_exp_f32 v{base+i}, v{base+i}")
        E("s_nop 0")
        E(cvt(PX, SX0)); E(cvt(PX+1, SX0+2)); E(cvt(PX+2, SX1)); E(cvt(PX+3, SX1+2)); E(cvt(PM, SM_)); E(cvt(PM+1, SM_+2))
        for x in cnds: E(x)
        E("s_nop 1")
        for x in pvm + pvx: E(x)
        E("s_nop 7\n s_nop 1")
        E(f"v_rcp_f32 v{LA+1}, v{LA}\n s_nop 0\n v_mul_f32 v{O0}, v{LA+1}, v{O0}\n v_mul_f32 v{O0+1}, v{LA+1}, v{O0+1}\n s_branch {back}")
        errs += hazard.check(E.lines[s0:], "team slow")
        return errs

    def dump_stamps(self, t=Q(12) + 2):
        E = self.E
        E("s_memrealtime s[88:89]\n s_memtime s[90:91]\n s_waitcnt lgkmcnt(0)")
        E.lg = []
        E(f"s_lshl_b32 s{S_T0}, s{S_H}, 2\n s_add_u32 s{S_T0}, s{S_T0}, s{S_W}\n s_lshl_b32 s{S_T0}, s{S_T0}, 6\n s_add_u32 s{S_T0}, s{S_T0}, s{S_STEP}")
        E(f"s_lshl_b32 s{S_T0}, s{S_T0}, 7\n s_add_u32 s{S_T0}, s{S_T0}, {STAMP}")
        E(f"v_mov_b32 v{t}, 0")
        for i in range(16):
            E(f"v_writelane_b32 v{t}, s{S_ST + 2*i}, {i}")
        E(f"v_writelane_b32 v{t}, s94, 16\n v_writelane_b32 v{t}, s95, 17")
        E(f"v_lshrrev_b32 v{t+1}, 2, v{L16}\n s_mov_b64 exec, 0xffffffff")
        E(f"buffer_store_dword v{t}, v{t+1}, {ws()}, s{S_T0} offen\n s_mov_b64 exec, -1\n s_nop 3")


def standalone(stamps=False, force_mode=None, **opt):
    E = Em()
    E("; @launch grid=(256,1,1) block=(256,1,1) lds=163840")
    E('.amdgcn_target "amdgcn-amd-amdhsa--gfx950"')
    E(kernel_header("team_kernel"))
    T = Team(E, stamps, **opt)
    E("s_cmp_ge_u32 s2, 256\n s_cbranch_scc1 T_exit\n s_and_b32 s3, s2, 7\n s_cbranch_scc1 T_exit")
    E(f"s_lshr_b32 s{S_H}, s2, 3")
    E("s_memrealtime s[100:101]\n s_waitcnt lgkmcnt(0)\n s_mov_b32 s92, s100\n s_mov_b32 s94, 0")
    l0 = len(E.lines)
    T.startup("T_fail")
    errs = hazard.check(E.lines[l0:], "team startup")
    E("s_memrealtime s[100:101]\n s_waitcnt lgkmcnt(0)\n s_mov_b32 s96, s100\n s_memtime s[100:101]\n s_waitcnt lgkmcnt(0)\n s_mov_b32 s98, s100")
    if force_mode is not None:
        E(f"s_mov_b32 s{S_MODE}, {force_mode}")
    E(f"s_cmp_lg_u32 s{S_MODE}, 0\n s_cbranch_scc1 T_global")
    errs += T.loops(0, "T_done", "T_fail")
    E("T_global:")
    errs += T.loops(1, "T_done", "T_fail")
    E("T_fail:")
    E(f"s_mov_b32 s{S_T0}, 1\n s_atomic_add s{S_T0}, s[{S_DBG}:{S_DBG+1}], 12 glc\n s_waitcnt lgkmcnt(0)")
    E("T_done:")
    E("s_memrealtime s[100:101]\n s_waitcnt lgkmcnt(0)\n s_mov_b32 s97, s100\n s_memtime s[100:101]\n s_waitcnt lgkmcnt(0)")
    E(f"s_sub_u32 s98, s100, s98\n v_mov_b32 v40, s92\n v_mov_b32 v41, s96\n v_mov_b32 v42, s97\n v_mov_b32 v43, s98")
    E(f"s_lshl_b32 s{S_T0}, s{S_H}, 4\n s_add_u32 s{S_T0}, s{S_T0}, {STAMP + MB}\n v_mov_b32 v44, 0")
    E(f"buffer_store_dwordx4 v[40:43], v44, {ws()}, s{S_T0} offen")
    E("T_exit:\n s_endpgm")
    E(kernel_desc("team_kernel"))
    txt = E.text()
    standalone.est = T.est
    if opt.get("norty") or opt.get("nomem"):
        import re
        txt = re.sub(r"s_cbranch_vccnz T_(retry|late|p1re|slow)_\d+", "s_nop 0", txt)
    if opt.get("nomem"):
        i = txt.index("T_retry_")
        pat = {1: r"buffer_(load|store)_dword(x4)? v\S+, v\d+, s\[4:7\], s(20|21|22|24|25|26|35) offen.*",
               2: r"buffer_(load|store)_dword(x4)? v\S+, v\d+, s\[4:7\], s(24|25|26|35) offen.*",
               3: r"buffer_(load|store)_dword(x4)? v\S+, v\d+, s\[4:7\], s(20|21|22) offen.*"}[opt["nomem"]]
        txt = txt[:i] + re.sub(pat, "s_mov_b32 s93, 0x12345", txt[i:])
    return txt, errs, T.names

if __name__ == "__main__":
    for st in (False, True):
        txt, errs, names = standalone(st)
        print(len(errs), "hazards", names)
        if not st:
            e = standalone.est; print("est", e[-1], "slot lengths", [b - a for a, b in zip(e, e[1:])])
    open("team.s", "w").write(txt)
```

```python
import sys
from emit import *
from layout import *
import gemm, attn, outp, team
from gemm import G_WS, G_W, G_N, G_DONE, G_FLAG, G_T0, G_T1, G_T2, G_T3, V_LANE
NAME = "gated_mix__compressed_kv_cla__memory_aug_recurrent_mem_tr__prompt"
KN = NAME + "_kernel"
INIT_OFF = 128
WAIT_MAX = 1 << 18
R_KIND, R_T0, R_DT, R_N, R_NATT, R_QB0, R_QT0, R_QB1, R_QT1 = range(48, 57)
R_H, R_ROLE, R_C, R_GB, R_LVL, R_QB, R_QT, R_CNT = range(64, 72)
R_WSP, R_DBG = 72, 74
R_A, R_B, R_D, R_E = 76, 77, 78, 79

SCHEDS = {
 0: [(1, 63, -1, 18, [7]), (1, 45, -1, 22, [6]), (2, 0, 1, 28, [5]), (0, 63, -1, 25, [4, 0]),
     (1, 23, -1, 24, [3, 1]), (0, 38, -1, 39, [2]), (2, 28, 1, 36, [])],
 1: [(1, 63, -1, 20, [7]), (1, 43, -1, 24, [6]), (2, 0, 1, 30, [5]), (2, 30, 1, 34, [4]),
     (0, 0, 1, 32, [3, 0]), (0, 63, -1, 32, [2, 1]), (1, 19, -1, 20, [])],
}
FOL0 = 16

def need_tiles(ent, lo, hi):
    _, t0, dt, n, _ = ent
    idx = [i for i in range(n) if lo <= t0 + dt*i <= hi]
    return max(idx) + 1 if idx else 0

def build(diag=False, team_opt=None, sched=1, stamps=False, pf=1):
    S = SCHEDS[sched] if isinstance(sched, int) else sched
    E = Em()
    E.lines.append("; @launch grid=(256,1,1) block=(256,1,1) lds=163840")
    E('.amdgcn_target "amdgcn-amd-amdhsa--gfx950"')
    E(kernel_header(KN))
    errs = []
    wsd = s(G_WS, 4)
    kv_roles = [r_ for r_, x in enumerate(S) if x[0] == 1]
    q_roles = [r_ for r_, x in enumerate(S) if x[0] == 0]
    b_roles = [r_ for r_, x in enumerate(S) if x[0] == 2]
    E("s_cmp_ge_u32 s2, 256\n s_cbranch_scc1 M_exit")
    if diag: tmark(E, 0); E("s_mov_b32 s97, s2")
    E(f"s_load_dwordx4 s[{R_WSP}:{R_WSP+3}], s[0:1], {ARG['dbg']}")
    gemm.lane_setup(E)
    E(f"s_and_b32 s{R_A}, s2, 7\n s_lshr_b32 s{R_B}, s2, 3\n s_sub_u32 s{R_C}, s{R_A}, 1\n s_and_b32 s{R_C}, s{R_C}, 7\n s_lshl_b32 s{R_C}, s{R_C}, 5\n s_add_u32 s{R_C}, s{R_C}, s{R_B}")
    E(f"s_lshl_b32 s{G_FLAG}, s{R_C}, 7\n s_add_u32 s{G_FLAG}, s{G_FLAG}, {FLAGS}\n s_waitcnt lgkmcnt(0)")
    E(f"s_mov_b64 s[{G_WS}:{G_WS+1}], s[{R_WSP+2}:{R_WSP+3}]\n s_mov_b64 s[{R_DBG}:{R_DBG+1}], s[{R_WSP}:{R_WSP+1}]\n s_mov_b64 s[{R_WSP}:{R_WSP+1}], s[{G_WS}:{G_WS+1}]")
    E(f"s_and_b32 s{G_WS+1}, s{G_WS+1}, 0xffff\n s_mov_b32 s{G_WS+2}, {WS_BYTES}\n s_mov_b32 s{G_WS+3}, 0x20000")
    E(f"s_cmp_eq_u32 s{R_A}, 0\n s_cbranch_scc1 M_team")
    E(f"s_mul_i32 s{R_H}, s{R_C}, 9363\n s_lshr_b32 s{R_H}, s{R_H}, 16\n s_mul_i32 s{R_GB}, s{R_H}, 7\n s_sub_u32 s{R_ROLE}, s{R_C}, s{R_GB}")
    E(f"s_lshl_b32 s{R_GB}, s{R_GB}, 7\n s_add_u32 s{R_GB}, s{R_GB}, {FLAGS}")
    E(f"s_getpc_b64 s[{R_A}:{R_A+1}]\nM_pc:\n s_add_u32 s{R_A}, s{R_A}, M_table-M_pc\n s_addc_u32 s{R_B}, s{R_B}, 0\n s_lshl_b32 s{G_T0}, s{R_ROLE}, 6")
    E(f"s_load_dwordx16 s[48:63], s[{R_A}:{R_A+1}], s{G_T0}\n s_waitcnt lgkmcnt(0)\n s_mov_b32 s{G_N}, s{R_N}")
    def init():
        E(f"s_cmp_lg_u32 s{G_W}, 3\n s_cbranch_scc1 M_noinit")
        E(f"s_mov_b32 s{R_E}, 0\n s_atomic_swap s{R_E}, s[{R_WSP}:{R_WSP+1}], s{G_FLAG} glc\n s_waitcnt lgkmcnt(0)")
        E(f"s_mov_b32 s{R_E}, 1\n s_atomic_add s{R_E}, s[{R_DBG}:{R_DBG+1}], {INIT_OFF}")
        E("M_noinit:")
        if pf:
            E(f"s_mul_i32 s{R_A}, s{R_H}, 3\n s_add_u32 s{R_A}, s{R_A}, s57\n s_mul_i32 s{R_A}, s{R_A}, {192*128}")
            E(f"v_lshlrev_b32 v4, 7, v0\n v_add_u32 v4, s{R_A}, v4")
            E.vmem(f"buffer_load_dword v5, v4, {s(gemm.G_ASRD,4)}, 0 offen")
            E.vmem(f"buffer_load_dword v5, v4, {s(gemm.G_ASRD,4)}, 0 offen offset:64")
    errs += gemm.proj_task(E, R_KIND, R_H, R_T0, R_DT, " sc1", True, 6 if diag == 2 else False, init)
    if diag: tmark(E, 1)

    def bound():
        return f"s_add_u32 s{R_CNT}, s{R_CNT}, 1\n s_cmp_gt_u32 s{R_CNT}, {WAIT_MAX}\n s_cbranch_scc1 M_exit"
    def swait(base, off, thr):
        lp, go = E.label("M_sw"), E.label("M_sg")
        E(f"s_mov_b32 s{R_CNT}, 0\n s_branch {go}")
        E(lp + ":")
        E("s_sleep 8")
        E(bound())
        E(go + ":")
        E(f"s_mov_b32 s{R_E}, 0\n s_atomic_or s{R_E}, s[{base}:{base+1}], {off} glc\n s_waitcnt lgkmcnt(0)\n s_cmp_lt_u32 s{R_E}, {thr}\n s_cbranch_scc1 {lp}")
    def vwait(va, vt, vx):
        lp, go = E.label("M_vw"), E.label("M_vg")
        E(f"s_mov_b32 s{R_CNT}, 0\n s_branch {go}")
        E(lp + ":")
        E("s_sleep 2")
        E(bound())
        E(go + ":")
        E(f"buffer_load_dword v{vx}, v{va}, {wsd}, 0 offen sc1\n s_waitcnt vmcnt(0)\n v_cmp_lt_u32 vcc, v{vx}, v{vt}\n s_cbranch_vccnz {lp}")
        E.vm = []
    def publish(val):
        E(f"s_waitcnt vmcnt(0)\n s_barrier\n s_mov_b32 s{G_DONE}, {val}")
        gemm.publish(E)
    swait(R_DBG, INIT_OFF, 256)
    E(f"s_cmp_eq_u32 s{R_ROLE}, 6\n s_cbranch_scc1 M_follow")
    def wait_q():
        for i, r_ in enumerate(q_roles):
            E(f"s_bfe_u32 s{R_D}, s{R_QT}, {hex(0x80000 + 8*i)}\n s_add_u32 s{R_A}, s{R_GB}, {128*r_}")
            swait(R_WSP, f"s{R_A}", f"s{R_D}")
    def wait_kv():
        lp, ok = E.label("M_kv"), E.label("M_kvok")
        E(lp + ":")
        E(f"s_cmp_ge_u32 s{attn.A_KOFF}, s{attn.A_RDY}\n s_cbranch_scc1 {ok}")
        for i, r_ in enumerate(kv_roles):
            first = i == 0
            op = "s_mov_b32" if first else "s_cmov_b32"
            if not first: E(f"s_cmp_eq_u32 s{R_LVL}, {i}")
            E(f"{op} s{R_A}, {128*r_}\n {op} s{R_D}, {S[r_][3]}\n {op} s{R_B}, {(S[r_][1] - S[r_][3] + 1) * 8192}")
        E(f"s_add_u32 s{R_A}, s{R_A}, s{R_GB}")
        swait(R_WSP, f"s{R_A}", f"s{R_D}")
        E(f"s_add_u32 s{attn.A_RDY}, s{R_B}, s{attn.A_KMIN}\n s_add_u32 s{R_LVL}, s{R_LVL}, 1\n s_branch {lp}")
        E(ok + ":")
    E(f"s_mov_b32 s{R_LVL}, 0\n s_mov_b32 s{attn.A_RDY}, -1\n s_mov_b32 s{R_QB}, s{R_QB0}\n s_mov_b32 s{R_QT}, s{R_QT0}")
    E("M_att:")
    errs += attn.attn_task(E, R_H, R_QB, " sc1", " sc1", False, wait_q, wait_kv)
    E(f"s_mov_b32 s{R_QB}, s{R_QB1}\n s_mov_b32 s{R_QT}, s{R_QT1}\n s_sub_u32 s{R_NATT}, s{R_NATT}, 1\n s_cmp_lg_u32 s{R_NATT}, 0\n s_cbranch_scc1 M_att")
    publish(0x200)
    if diag: tmark(E, 2)
    HG, HALF, TJ, DT = 48, 49, 50, 51
    E(f"s_lshr_b32 s{HG}, s{R_H}, 2\n s_bfe_u32 s{HALF}, s{R_H}, 0x10001\n s_and_b32 s{TJ}, s{R_H}, 1\n s_mul_i32 s{TJ}, s{TJ}, 6\n s_add_u32 s{TJ}, s{TJ}, s{R_ROLE}")
    E(f"s_mov_b32 s{DT}, 12\n s_cmp_lt_u32 s{TJ}, 4\n s_cselect_b32 s{G_N}, 6, 5")
    def wait_ctx():
        E(f"v_min_u32 v4, 27, v{V_LANE}\n v_mul_u32_u24 v5, 37, v4\n v_lshrrev_b32 v5, 8, v5\n v_mul_u32_u24 v5, 7, v5\n v_sub_u32 v5, v4, v5")
        E(f"v_mov_b32 v6, 0x200\n v_cmp_ne_u32 vcc, 6, v5\n s_mul_i32 s{R_A}, s{HG}, {28*128}\n s_add_u32 s{R_A}, s{R_A}, {FLAGS}\n v_cndmask_b32 v5, 0, v6, vcc")
        E(f"v_lshl_add_u32 v4, v4, 7, s{R_A}")
        vwait(4, 5, 6)
        if diag: tmark(E, 3)
    errs += outp.oproj_task(E, HG, HALF, TJ, DT, " sc1", " sc1", False, wait_ctx)
    publish(0x300)
    if diag: tmark(E, 4)
    ZT, ZQ, ZI = 48, 49, 50
    E(f"s_mul_i32 s{ZI}, s{R_H}, 6\n s_add_u32 s{ZI}, s{ZI}, s{R_ROLE}")
    E(f"s_mul_i32 s{R_A}, s{ZI}, 21846\n s_lshr_b32 s{R_A}, s{R_A}, 16\n s_mul_i32 s{R_B}, s{R_A}, 3\n s_add_u32 s51, s{ZI}, 64")
    E(f"s_cmp_eq_u32 s{R_B}, s{ZI}\n s_cselect_b32 s{ZI}, s{R_A}, s51")
    E("M_fin:")
    E(f"s_lshr_b32 s{ZT}, s{ZI}, 2\n s_and_b32 s{ZQ}, s{ZI}, 3")
    def wait_part(b):
        def f():
            if b == 0:
                E(f"s_mul_i32 s{R_A}, s{ZT}, 43\n s_lshr_b32 s{R_A}, s{R_A}, 9\n s_mul_i32 s{R_A}, s{R_A}, 12\n s_sub_u32 s{R_A}, s{ZT}, s{R_A}")
                E(f"s_cmp_ge_u32 s{R_A}, 6\n s_addc_u32 s{R_A}, s{R_A}, 0\n s_and_b32 s{R_B}, s{ZQ}, 2\n s_mul_i32 s{R_B}, s{R_B}, 7\n s_add_u32 s{R_A}, s{R_A}, s{R_B}")
                E("v_mov_b32 v193, 0x300")
            else:
                E(f"s_and_b32 s{R_A}, s{ZT}, 1\n s_lshl_b32 s{R_A}, s{R_A}, 1\n s_lshr_b32 s{R_B}, s{ZQ}, 1\n s_add_u32 s{R_A}, s{R_A}, s{R_B}\n s_mul_i32 s{R_A}, s{R_A}, 7\n s_add_u32 s{R_A}, s{R_A}, 6")
                E(f"s_lshr_b32 s{R_B}, s{ZT}, 1\n s_add_u32 s{R_B}, s{R_B}, 0x201\n v_mov_b32 v193, s{R_B}")
            E(f"s_lshl_b32 s{R_A}, s{R_A}, 7\n s_add_u32 s{R_A}, s{R_A}, {FLAGS}\n v_and_b32 v192, 7, v{V_LANE}\n v_mul_u32_u24 v192, {28*128}, v192\n v_add_u32 v192, s{R_A}, v192")
            vwait(192, 193, 194)
            if diag == 1: tmark(E, 5 + b)
        return f
    errs += outp.final_task(E, ZT, ZQ, " sc1", wait_part(0), wait_part(1))
    E(f"s_cmp_lt_u32 s{ZI}, 64\n s_mov_b32 s{ZI}, s51\n s_cbranch_scc1 M_fin")
    E("s_branch M_done")
    E("M_follow:")
    E(f"s_lshr_b32 s{HG}, s{R_H}, 2\n s_and_b32 s{HALF}, s{R_H}, 1\n s_bfe_u32 s{TJ}, s{R_H}, 0x10001\n s_mov_b32 s{DT}, 2\n s_mov_b32 s{G_N}, 32")
    FS, FR = 52, 53
    def wait_x(first):
        sk = E.label("M_xok")
        if not first: E(f"s_cmp_lg_u32 s{G_N}, {32 - FOL0//2}\n s_cbranch_scc1 {sk}")
        E(f"s_lshl_b32 s{R_B}, s{HG}, 2\n s_add_u32 s{R_B}, s{R_B}, s{G_W}\n s_mul_i32 s{R_D}, s{R_B}, {7*128}")
        for r_ in q_roles + b_roles:
            thr = need_tiles(S[r_], 0, FOL0 - 1 if first else 63)
            if thr:
                E(f"s_add_u32 s{R_A}, s{R_D}, {FLAGS + 128*r_}")
                swait(R_WSP, f"s{R_A}", thr)
        E(sk + ":")
        if first:
            E(f"s_lshl_b32 s{R_B}, s{R_B}, 7\n s_add_u32 s54, s{R_B}, {FLAGS + 224*128}\n s_add_u32 s{FS}, s{TJ}, 1\n s_mov_b32 s{FR}, 0\n s_mov_b32 s{G_DONE}, 0x200")
            if diag: tmark(E, 2)
    def wait_m():
        vm = list(E.vm)
        E(f"v_mov_b32 v16, s54\n v_mov_b32 v17, s{FS}")
        vwait(16, 17, 23)
        E.vm = vm
    def mid():
        E(f"v_readfirstlane_b32 s{FR}, v23")
        gemm.publish(E, 16)
        E(f"s_add_u32 s{G_DONE}, s{G_DONE}, 1\n s_add_u32 s{FS}, s{FS}, 2\n s_cmp_ge_u32 s{FR}, s{FS}\n s_cselect_b32 s{outp.F_PRE}, 1, 0")
        E(f"buffer_load_dword v23, off, {wsd}, s54 sc1")
    errs += outp.follower_task(E, HG, HALF, TJ, DT, " sc1", " sc1", wait_x, wait_m, mid, diag == 2)
    gemm.publish(E)
    E("s_branch M_done")
    E("M_team:")
    T = team.Team(E, stamps, **(team_opt or {}))
    T.diag = diag
    T.merged = dict(init_off=INIT_OFF, r1=b_roles[0], r2=b_roles[1], n1=S[b_roles[0]][3])
    E(f"s_mov_b32 s{team.S_H}, s{R_B}")
    l0 = len(E.lines)
    T.startup("M_exit")
    errs += hazard.check(E.lines[l0:], "team startup")
    if diag: tmark(E, 1)
    E(f"s_cmp_lg_u32 s{team.S_MODE}, 0\n s_cbranch_scc1 M_global")
    errs += T.loops(0, "M_tdone", "M_exit", " sc1")
    E("M_global:")
    errs += T.loops(1, "M_tdone", "M_exit", " sc1")
    E("M_tdone:")
    E(f"v_mov_b32 v16, 64\n v_or_b32 v17, s{team.S_W}, v{team.L16}\n v_min_u32 v17, 1, v17\n v_lshlrev_b32 v17, 30, v17\n s_waitcnt vmcnt(0)\n s_barrier")
    E(f"buffer_store_dword v16, v17, {wsd}, s{team.S_FLG} offen sc1")
    E("M_done:")
    if diag: tmark(E, 7); tdump(E, G_WS, STAMP, 97)
    E("M_exit:\n s_endpgm")
    E(".p2align 6\n.type M_table,@object\nM_table:")
    for ri, (kind, t0, dt, n, att) in enumerate(S):
        pfi = len([1 for x in S[:ri] if (x[0] == 1) == (kind == 1)]) % 3
        qthr = lambda qb: sum(need_tiles(S[r_], 8*qb, 8*qb + 7) << (8*i) for i, r_ in enumerate(q_roles))
        a_ = (att + [0, 0])[:2]
        row = [kind, t0, dt & 0xffffffff, n, len(att), a_[0], qthr(a_[0]), a_[1], qthr(a_[1]), pfi] + [0]*6
        E(".long " + ", ".join(hex(x) for x in row))
    E(".size M_table, 448")
    E(kernel_desc(KN))
    build.names = T.names
    return E.text(), errs

if __name__ == "__main__":
    diag = 1 if "diag" in sys.argv else 2 if "diag2" in sys.argv else 0
    txt, errs = build(diag)
    print(len(errs), "hazards", len(txt), "bytes")
    open("mega_diag.s" if diag else f"cdna_kernels/{NAME}.s", "w").write(txt)
```

```python
import re
import hazard

INLINE = re.compile(r"^(-?\d+|0x[0-9a-f]+|-?\d+\.\d+)$")
def is_lit(tok):
    if not INLINE.match(tok): return False
    if "." in tok: return False
    x = int(tok, 0)
    if x >= 0xfffffff0: x -= 1 << 32
    if x == 0x40000000: return False
    return not -16 <= x <= 64

E32 = ("v_exp_f32", "v_rcp_f32", "v_mul_f32", "v_add_f32", "v_sub_f32", "v_max_u32", "v_min_u32", "v_mov_b32", "v_mov_b64", "v_and_b32",
       "v_xor_b32", "v_or_b32", "v_subrev_u32", "v_max_f32", "v_add_u32", "v_sub_u32", "v_lshlrev_b32", "v_lshrrev_b32", "v_mul_u32_u24",
       "v_readfirstlane_b32", "v_permlane32_swap_b32", "v_permlane16_swap_b32", "v_nop")

def size(line):
    d = hazard.parse(line)
    if d is None: return 0
    op, ops, k = d["op"], d["ops"], d["kind"]
    lit = any(is_lit(x) for x in ops)
    if k in ("mfma", "ds", "vmem", "smem"): return 8
    if k == "salu":
        if op.startswith(("s_waitcnt", "s_nop", "s_barrier", "s_branch", "s_cbranch", "s_endpgm", "s_sleep", "s_setprio", "s_getreg")): return 4
        return 8 if lit else 4
    if op in E32: return 8 if lit else 4
    if op.endswith("_e64"): return 8
    if op.startswith("v_cmp") and ops[0] == "vcc": return 8 if lit else 4
    if op == "v_cndmask_b32" and ops[-1] == "vcc" and ops[2].startswith("v"): return 8 if lit else 4
    return 8

def promotable(line):
    d = hazard.parse(line)
    return d and d["kind"] == "valu" and size(line) == 4 and not d["op"].startswith(("v_readfirst", "v_permlane", "v_nop"))

def align(lines, start, end, run=3, back=12):
    fixed = missed = 0
    i, off, lastfix = start, 0, start
    while i < end:
        sz = size(lines[i])
        if sz == 8:
            j, n = i, 0
            while j < end and size(lines[j]) in (0, 8):
                n += size(lines[j]) == 8; j += 1
            if n >= run:
                if off % 8:
                    for k in range(i - 1, max(lastfix, i - back) - 1, -1):
                        if promotable(lines[k]):
                            op = lines[k].split()[0]
                            lines[k] = lines[k].replace(op, op + "_e64", 1); off += 4; fixed += 1
                            break
                    else:
                        missed += 1
                lastfix = j
            off += 8 * n; i = j
        else:
            off += sz; i += 1
    return fixed, missed
```

```python
from emit import *
from layout import *

G_WS = 4
G_WSRD = 8
G_ASRD = 12
G_W = 16
G_WOFF = 17
G_WSTR = 18
G_AOFF = 19
G_ASTR = 20
G_OOFF = 21
G_OSTR = 22
G_N = 23
G_SCALE = 24
G_M0 = 25
G_T0, G_T1, G_T2, G_T3 = 26, 27, 28, 29
G_DONE = 30
G_FLAG = 31
V_LANE = 1
V_L16 = 2
V_ST = 7
V_RD = 8
V_DM = 16
V_AF = 24
V_ACC = 64
V_PK = 128
V_T = 144
NF = 8
LEAD = 6


def lane_setup(E):
    E(f"v_lshrrev_b32 v3, 6, v0\n v_and_b32 v{V_LANE}, 63, v0\n v_readfirstlane_b32 s{G_W}, v3\n v_lshlrev_b32 v{V_L16}, 4, v{V_LANE}")


def addr_rowmajor(E):
    t = V_T
    E(f"v_and_b32 v{t}, 31, v{V_LANE}\n v_lshrrev_b32 v{t+1}, 5, v{V_LANE}\n v_and_b32 v{t+2}, 15, v{V_LANE}")
    for j in range(8):
        E(f"v_or_b32 v{t+3}, {2*j}, v{t+1}\n v_xor_b32 v{t+3}, v{t+3}, v{t+2}\n v_lshlrev_b32 v{t+3}, 4, v{t+3}")
        E(f"v_lshl_add_u32 v{V_RD+j}, v{t}, 8, v{t+3}")
    E(f"v_lshrrev_b32 v{t}, 4, v{V_LANE}\n s_lshl_b32 s{G_T0}, s{G_W}, 8")
    for j in range(8):
        E(f"v_add_u32 v{t+1}, {4*j}, v{t}\n v_and_b32 v{t+3}, 15, v{t+1}\n v_xor_b32 v{t+3}, v{t+3}, v{t+2}\n v_lshlrev_b32 v{t+3}, 4, v{t+3}")
        E(f"v_lshl_add_u32 v{t+3}, v{t+1}, 10, v{t+3}\n v_add_u32 v{V_DM+j}, s{G_T0}, v{t+3}")


def addr_frag(E, wave_stride):
    E(f"s_mul_i32 s{G_T0}, s{G_W}, {wave_stride}")
    for j in range(8):
        E(f"v_add_u32 v{V_RD+j}, {1024*j}, v{V_L16}")
        E(f"v_add_u32 v{V_DM+j}, s{G_T0}, v{V_RD+j}")


def load_w(E, perm, hook=None, win=32):
    t = V_T
    E(f"v_lshrrev_b32 v{t}, 3, v{V_LANE}\n v_mul_lo_u32 v{t}, v{t}, s{G_WSTR}\n v_and_b32 v{t+1}, 7, v{V_LANE}\n v_lshl_add_u32 v{t}, v{t+1}, 4, v{t}")
    E(f"s_lshl_b32 s{G_T2}, s{G_W}, 15\n s_add_u32 s{G_T2}, s{G_T2}, 32768\n s_lshl_b32 s{G_T3}, s{G_WSTR}, 3")
    n_iss = [0]
    def issue():
        j = n_iss[0]; n_iss[0] += 1
        E(f"s_add_u32 m0, s{G_T2}, {(j % 32) * 1024}")
        E("s_nop 0")
        E.vmem(f"buffer_load_dwordx4 v{t}, {s(G_WSRD,4)}, s{G_WOFF} offen lds", tag=("w", j // 2))
        E(f"s_add_u32 s{G_WOFF}, s{G_WOFF}, s{G_T3}")
    for j in range(win): issue()
    if hook: hook()
    E(f"v_bfe_u32 v{t+4}, v{V_LANE}, 2, 2\n v_lshrrev_b32 v{t+5}, 5, v{V_LANE}")
    E(f"v_lshl_add_u32 v{t+4}, v{t+5}, {2 if perm else 3}, v{t+4}\n v_lshlrev_b32 v{t+4}, 7, v{t+4}")
    E(f"v_bfe_u32 v{t+5}, v{V_LANE}, 4, 1\n v_lshl_add_u32 v{t+4}, v{t+5}, 5, v{t+4}")
    if perm:
        E(f"v_and_b32 v{t+5}, 1, v{V_LANE}\n v_lshl_add_u32 v{t+4}, v{t+5}, 4, v{t+4}")
        E(f"v_bfe_u32 v{t+5}, v{V_LANE}, 1, 1\n v_lshl_add_u32 v{t+4}, v{t+5}, 3, v{t+4}")
    else:
        E(f"v_and_b32 v{t+5}, 3, v{V_LANE}\n v_lshl_add_u32 v{t+4}, v{t+5}, 3, v{t+4}")
    E(f"v_add_u32 v{t+2}, s{G_T2}, v{t+4}\n v_add_u32 v{t+3}, {(8 if perm else 4) * 128}, v{t+2}")
    for k2 in range(16):
        E.need(tags=[("w", 2 * k2 + 1)])
        for ks in (2 * k2, 2 * k2 + 1):
            for ct in range(2):
                for hi in range(2):
                    E.ds(f"ds_read_b64_tr_b16 {a((ks*2 + ct)*4 + 2*hi, 2)}, v{t+2+hi} offset:{(ks % 16)*2048 + ct*64}")
        E.drain(lg=True)
        if n_iss[0] < 64:
            for _ in range(4): issue()


def fetch_list(sc):
    return [(f"s_add_u32 m0, s{G_M0}, {1024*j}", f"buffer_load_dwordx4 v{V_DM+j}, {s(G_ASRD,4)}, s{G_AOFF} offen{sc} lds") for j in range(8)]

def fetch_adv(need):
    return [f"s_cmp_gt_u32 s{G_N}, {need}", f"s_cselect_b32 s{G_T0}, s{G_ASTR}, 0", f"s_add_u32 s{G_AOFF}, s{G_AOFF}, s{G_T0}",
            f"s_add_u32 s{G_M0}, s{G_M0}, 32768", f"s_and_b32 s{G_M0}, s{G_M0}, 0x1ffff"]

def fetch_now(E, sc, tag, idx):
    if idx == 0: E(f"s_lshl_b32 s{G_M0}, s{G_W}, 13")
    for m, d in fetch_list(sc):
        E(m); E("s_nop 0"); E.vmem(d, tag=tag)
    for x in fetch_adv(idx + 1): E(x)

def rd_frag(ks, par):
    return f"ds_read_b128 {v(V_AF + 4*(ks % NF), 4)}, v{V_RD + (ks & 7)} offset:{par*32768 + (ks >> 3)*8192}"

def mfma(vstyle, par, ks, ct):
    d = v(V_ACC + 32*par + 16*ct, 16); w_ = a((ks*2 + ct)*4, 4); x_ = v(V_AF + 4*(ks % NF), 4)
    ops = (x_, w_) if vstyle else (w_, x_)
    return f"v_mfma_f32_32x32x16_bf16 {d}, {ops[0]}, {ops[1]}, {'0' if ks == 0 else d}"

def epilogue_ops(par, sc):
    out = []
    for b in range(4):
        base = V_ACC + 32*par + 8*b
        vl = []
        for i in range(4):
            vl += [f"v_mul_f32 v{base+2*i}, s{G_SCALE}, v{base+2*i}", f"v_mul_f32 v{base+2*i+1}, s{G_SCALE}, v{base+2*i+1}",
                   f"v_cvt_pk_bf16_f32 v{V_PK+4*b+i}, v{base+2*i}, v{base+2*i+1}"]
        out.append((vl, f"buffer_store_dwordx4 {v(V_PK+4*b,4)}, v{V_ST}, {s(G_WS,4)}, s{G_OOFF} offen offset:{1024*b}{sc}"))
    return out


def publish(E, t=V_T):
    E(f"v_mov_b32 v{t}, s{G_DONE}\n v_min_u32 v{t+1}, 1, v0\n v_lshlrev_b32 v{t+1}, 30, v{t+1}")
    E(f"buffer_store_dword v{t}, v{t+1}, {s(G_WS,4)}, s{G_FLAG} offen sc1")


def stream(E, vstyle, asc, osc, flags):
    errs = []
    top, done = E.label("G_top"), [E.label("G_done0"), E.label("G_done1")]
    fin = E.label("G_fin")
    E(f"s_mov_b32 s{G_T1}, s{G_OOFF}\n v_mov_b32 v{V_ST}, 0x40000000")
    if flags:
        E(f"s_mov_b32 s{G_T3}, -3\n v_min_u32 v{V_T+1}, 1, v0\n v_lshlrev_b32 v{V_T+1}, 30, v{V_T+1}")
    for ks in range(LEAD): E.ds(rd_frag(ks, 0))
    lg0 = list(E.lg)
    E(".p2align 6")
    E(top + ":")
    l0 = len(E.lines)
    NV = 13 if flags else 12
    for par in range(2):
        ep = epilogue_ops(1 - par, osc)
        fl = fetch_list(asc)
        slots = {n: [] for n in range(64)}
        for j in range(8):
            slots[4*j].append(fl[j][0]); slots[4*j + 1].append(fl[j][1])
        for k, x in enumerate(fetch_adv(3)): slots[30 + k].append(x)
        n = 2
        for b, (vl, st) in enumerate(ep):
            for k in range(0, 12, 2):
                slots[n] += vl[k:k+2]; n += 1
            slots[35 + 4*b].append(st)
        slots[48] += [f"s_mov_b32 s{G_OOFF}, s{G_T1}", f"v_mov_b32 v{V_ST}, v{V_L16}"]; slots[50].append(f"s_add_u32 s{G_T1}, s{G_T1}, s{G_OSTR}")
        if flags:
            slots[54] += [f"s_add_u32 s{G_T3}, s{G_T3}, 1"]
            slots[55] += [f"s_max_i32 s{G_DONE}, s{G_T3}, 0", f"v_mov_b32 v{V_T}, s{G_DONE}"]
            slots[57] += [f"buffer_store_dword v{V_T}, v{V_T+1}, {s(G_WS,4)}, s{G_FLAG} offen sc1"]
        slots[60].append(f"s_sub_u32 s{G_N}, s{G_N}, 1"); slots[62].append(f"s_cmp_eq_u32 s{G_N}, 0")
        for n in range(64):
            ks, ct = n >> 1, n & 1
            if n == 0: E.need(v(V_AF, 4))
            E(mfma(vstyle, par, ks, ct))
            if ct == 1 and ks < 31:
                E.need(v(V_AF + 4*((ks + 1) % NF), 4))
            kb = 32 - LEAD
            if n == 2 * kb - 1:
                E(f"s_waitcnt vmcnt({NV + 4})\n s_barrier")
            sl = slots[n]
            sc_ = [x for x in sl if x.startswith("s_")]; vm_ = [x for x in sl if x.startswith("buffer")]; va_ = [x for x in sl if x.startswith("v_")]
            for x in sc_: E(x)
            if ct == 0:
                k2 = ks + LEAD
                if k2 < 32: E.ds(rd_frag(k2, par))
                else: E.ds(rd_frag(k2 - 32, 1 - par))
            for x in vm_: E(x)
            for x in va_: E(x)
            if par == 1 and ct == 1:
                k2 = ks + LEAD
                if 24 <= k2 < 32: E(f"v_xor_b32 v{V_RD + (k2 & 7)}, 0x10000, v{V_RD + (k2 & 7)}")
        E(f"s_cbranch_scc1 {done[par]}")
    assert E.lg == lg0
    E(f"s_branch {top}")
    body = E.lines[l0:]
    errs += hazard.check([rd_frag(ks, 0) for ks in range(LEAD)] + body + body, "gemm stream")
    for par in range(2):
        E(done[par] + ":")
        l1 = len(E.lines)
        E("s_nop 7\n s_nop 3")
        for vl, st in epilogue_ops(par, osc):
            for x in vl: E(x)
            E(st)
        if par == 0: E(f"s_branch {fin}")
        errs += hazard.check([mfma(vstyle, par, 31, 1)] + E.lines[l1:], "gemm tail")
    E(fin + ":")
    E.drain(lg=True, vm=True)
    E("s_barrier")
    if flags:
        E(f"s_add_u32 s{G_DONE}, s{G_T3}, 3")
        publish(E)
    return errs


def proj_setup(E, s_kind, s_h, s_t0, s_dt):
    import math, struct
    c = struct.unpack("<I", struct.pack("<f", math.log2(math.e) / math.sqrt(128.0)))[0]
    T0, T1, T2, T3 = G_T0, G_T1, G_T2, G_T3
    E(f"s_lshr_b32 s{T3}, s{G_W}, 1")
    def pick(dst, tab):
        E(f"s_cmp_eq_u32 s{T3}, 0")
        E(f"s_cselect_b32 s{dst}, {tab[0][0]}, {tab[0][1]}\n s_cselect_b32 s{T1}, {tab[1][0]}, {tab[1][1]}\n s_cselect_b32 s{T2}, {tab[2][0]}, {tab[2][1]}")
        E(f"s_cmp_eq_u32 s{s_kind}, 1\n s_cselect_b32 s{dst}, s{T1}, s{dst}\n s_cmp_eq_u32 s{s_kind}, 2\n s_cselect_b32 s{dst}, s{T2}, s{dst}")
    pick(T0, [(ARG["wq"] // 8, ARG["bwq"] // 8), (ARG["wuk"] // 8, ARG["wuv"] // 8), (ARG["bwk"] // 8, ARG["bwv"] // 8)])
    E(f"s_lshl_b32 s{T0}, s{T0}, 3\n s_load_dwordx2 s[{G_WSRD}:{G_WSRD+1}], s[0:1], s{T0}")
    E(f"s_cmp_eq_u32 s{s_kind}, 1\n s_cselect_b32 s{T0}, {ARG['ckv']}, {ARG['x']}\n s_load_dwordx2 s[{G_ASRD}:{G_ASRD+1}], s[0:1], s{T0}")
    pick(G_OOFF, [(QA >> 24, QB >> 24), (KA >> 24, VA >> 24), (KB >> 24, VB >> 24)])
    E(f"s_lshl_b32 s{G_OOFF}, s{G_OOFF}, 5\n s_add_u32 s{G_OOFF}, s{G_OOFF}, s{s_h}\n s_lshl_b32 s{G_OOFF}, s{G_OOFF}, 6\n s_add_u32 s{G_OOFF}, s{G_OOFF}, s{s_t0}")
    E(f"s_and_b32 s{T1}, s{G_W}, 1\n s_lshl_b32 s{G_OOFF}, s{G_OOFF}, 1\n s_add_u32 s{G_OOFF}, s{G_OOFF}, s{T1}\n s_lshl_b32 s{G_OOFF}, s{G_OOFF}, 12")
    E(f"s_lshl_b32 s{G_OSTR}, s{s_dt}, 13\n s_lshl_b32 s{G_AOFF}, s{s_t0}, 15\n s_lshl_b32 s{G_ASTR}, s{s_dt}, 15")
    E(f"s_lshl_b32 s{G_WOFF}, s{s_h}, 1\n s_add_u32 s{G_WOFF}, s{G_WOFF}, s{T1}\n s_lshl_b32 s{G_WOFF}, s{G_WOFF}, 7\n s_mov_b32 s{G_WSTR}, 8192")
    E(f"s_cmp_eq_u32 s{s_kind}, 0\n s_cselect_b32 s{G_SCALE}, {hex(c)}, 1.0")
    E("s_waitcnt lgkmcnt(0)")
    E(f"s_and_b32 s{G_WSRD+1}, s{G_WSRD+1}, 0xffff\n s_mov_b32 s{G_WSRD+2}, {4*MB}\n s_mov_b32 s{G_WSRD+3}, 0x20000")
    E(f"s_and_b32 s{G_ASRD+1}, s{G_ASRD+1}, 0xffff\n s_mov_b32 s{G_ASRD+2}, {2*MB}\n s_mov_b32 s{G_ASRD+3}, 0x20000")


def proj_task(E, s_kind, s_h, s_t0, s_dt, osc, flags, diag=False, hook=None, win=32):
    errs = []
    l0 = len(E.lines)
    proj_setup(E, s_kind, s_h, s_t0, s_dt)
    addr_rowmajor(E)
    if diag and diag > 1: tmark(E, diag - 1)
    load_w(E, False, hook=lambda: (fetch_now(E, "", "a", 0), hook and hook()), win=win)
    E("s_barrier")
    fetch_now(E, "", "a", 1)
    E.drain(vm=True)
    E("s_barrier")
    errs += hazard.check(E.lines[l0:], "proj prologue")
    if diag: tmark(E, diag)
    lv, le = E.label("P_v"), E.label("P_end")
    E(f"s_cmp_eq_u32 s{s_kind}, 0\n s_cselect_b32 s{G_T0}, 0, s{G_W}\n s_cmp_ge_u32 s{G_T0}, 2\n s_cbranch_scc1 {lv}")
    errs += stream(E, False, "", osc, flags)
    E(f"s_branch {le}")
    E(lv + ":")
    errs += stream(E, True, "", osc, flags)
    E(le + ":")
    return errs


def ws_srd(E):
    E(f"s_load_dwordx2 s[{G_WS}:{G_WS+1}], s[0:1], {ARG['ws']}\n s_waitcnt lgkmcnt(0)")
    E(f"s_and_b32 s{G_WS+1}, s{G_WS+1}, 0xffff\n s_mov_b32 s{G_WS+2}, {WS_BYTES}\n s_mov_b32 s{G_WS+3}, 0x20000")


def proj_kernel(E, name, osc="", split=2, diag=False):
    E(kernel_header(name))
    end = E.label("P_exit")
    E(f"s_cmp_ge_u32 s2, {96*split}\n s_cbranch_scc1 {end}")
    lane_setup(E); ws_srd(E)
    E(f"s_and_b32 s40, s2, 31\n s_lshr_b32 s41, s2, 5\n s_mul_i32 s42, s41, 43\n s_lshr_b32 s42, s42, 7\n s_mul_i32 s43, s42, 3\n s_sub_u32 s41, s41, s43")
    E(f"s_mov_b32 s43, {split}\n s_mov_b32 s{G_N}, {64 // split}")
    if diag: tmark(E, 0)
    errs = proj_task(E, 41, 40, 42, 43, osc, False, diag)
    if diag: tmark(E, 2); tdump(E, G_WS, STAMP, 2)
    E(end + ":\n s_endpgm")
    return errs

if __name__ == "__main__":
    E = Em()
    E("; @launch grid=(192,1,1) block=(256,1,1) lds=163840")
    E('.amdgcn_target "amdgcn-amd-amdhsa--gfx950"')
    errs = proj_kernel(E, "proj_kernel")
    E(kernel_desc("proj_kernel"))
    open("proj.s", "w").write(E.text())
    print(len(errs), "hazards")
```

```python
import re

REG = re.compile(r"\b([vas])(\d+)\b|\b([vas])\[(\d+):(\d+)\]|\b(vcc|exec|m0|scc)\b")

def regs_of(tok):
    out = []
    for m in REG.finditer(tok):
        if m.group(1):
            out.append((m.group(1), int(m.group(2))))
        elif m.group(3):
            out += [(m.group(3), i) for i in range(int(m.group(4)), int(m.group(5)) + 1)]
        else:
            out.append((m.group(6), 0))
    return out

TRANS = ("v_exp_f32", "v_log_f32", "v_rcp_f32", "v_rsq_f32", "v_sqrt_f32", "v_sin_f32", "v_cos_f32")

def parse(line):
    d = _parse(line)
    if d and "; repoll" in line: d["w"] = []
    return d

def _parse(line):
    line = line.split(";")[0].strip()
    if not line or line.endswith(":") or line.startswith("."):
        return None
    p = line.split(None, 1)
    op = p[0]
    rest = p[1] if len(p) > 1 else ""
    ops = [x.strip() for x in re.split(r",(?![^\[]*\])", rest)] if rest else []
    d = dict(op=op, ops=ops, line=line, w=[], r=[], kind="other")
    R = lambda k: regs_of(ops[k]) if k < len(ops) else []
    allr = lambda k: sum((regs_of(x) for x in ops[k:]), [])
    if op.startswith("v_mfma") or op.startswith("v_smfmac"):
        d["kind"] = "mfma"
        d["passes"] = 8 if "32x32" in op else 4
        d["w"] = R(0)
        d["ab"] = R(1) + R(2)
        if op.startswith("v_smfmac"):
            d["c"] = R(0); d["ab"] += R(3)
        else:
            d["c"] = R(3)
        d["r"] = d["ab"] + d["c"]
    elif op.startswith("v_"):
        d["kind"] = "valu"
        if op.startswith("v_nop"):
            pass
        elif op.startswith("v_cmp"):
            d["w"] = R(0); d["r"] = allr(1)
        elif op.startswith("v_permlane") and "swap" in op:
            d["w"] = R(0) + R(1); d["r"] = R(0) + R(1)
        elif "_co_" in op:
            d["w"] = R(0) + R(1); d["r"] = allr(2)
        else:
            d["w"] = R(0); d["r"] = allr(1)
            if op.startswith(("v_fmac", "v_dot2c", "v_writelane")) or "dpp" in op or "_d16" in op:
                d["r"] = d["r"] + R(0)
            if op.startswith("v_cndmask") and len(ops) == 3:
                d["r"].append(("vcc", 0))
    elif op.startswith("ds_"):
        d["kind"] = "ds"
        if op.startswith(("ds_read", "ds_bpermute", "ds_swizzle")):
            d["w"] = R(0); d["r"] = allr(1)
        else:
            d["r"] = allr(0)
    elif op.startswith(("buffer_", "global_")):
        d["kind"] = "vmem"
        lds = " lds" in line or "_lds_" in op
        d["lds"] = lds
        if op in ("buffer_inv", "buffer_wbl2"):
            pass
        elif lds:
            d["r"] = allr(0) + [("m0", 0)]
        elif "load" in op:
            d["w"] = R(0); d["r"] = allr(1)
        elif "atomic" in op:
            d["r"] = allr(0)
            if " sc0" in line:
                d["w"] = R(0)
        else:
            d["r"] = allr(0)
            data = R(0) if op.startswith("buffer_") else R(1)
            if "x4" in op or "x3" in op:
                d["wide"] = data
    elif op.startswith("s_"):
        d["kind"] = "salu"
        if op.startswith(("s_load", "s_memtime", "s_memrealtime", "s_buffer_load", "s_atomic")):
            d["kind"] = "smem"; d["w"] = R(0); d["r"] = allr(1)
        elif op.startswith(("s_waitcnt", "s_nop", "s_barrier", "s_branch", "s_cbranch", "s_endpgm", "s_setprio", "s_sleep")):
            pass
        elif op.startswith("s_cmp"):
            d["r"] = allr(0)
        else:
            d["w"] = R(0); d["r"] = allr(1)
    return d


def check(lines, name="trace", quiet=False, timed=True):
    errs = []
    last_m = [None, 0]
    pos = 0
    lastw = {}
    lastc = {}
    wide = {}
    lg, vm = [], []
    def err(msg, ins):
        errs.append(f"{name}: {msg}: `{ins['line']}`")
    for ln in lines:
        ins = parse(ln)
        if ins is None:
            continue
        op, kind = ins["op"], ins["kind"]
        if kind == "mfma":
            if timed and last_m[0] is not None:
                pos = max(pos, last_m[0] + last_m[1] - 1)
            last_m[:] = [pos, ins["passes"]]
        if op == "s_waitcnt":
            m = re.search(r"vmcnt\((\d+)\)", ins["line"])
            if m:
                n = int(m.group(1)); vm[:] = vm[len(vm) - n:] if n < len(vm) and n > 0 else ([] if n == 0 else vm)
            m = re.search(r"lgkmcnt\((\d+)\)", ins["line"])
            if m:
                n = int(m.group(1))
                if n == 0:
                    lg[:] = []
                else:
                    ds = [x for x in lg if x[0] == "ds"]; sm = [x for x in lg if x[0] != "ds"]
                    ds = ds[len(ds) - n:] if n < len(ds) else ds
                    lg[:] = sm + ds
        touched = set(ins["r"]) | set(ins["w"])
        for q, nm in ((lg, "lgkm"), (vm, "vm")):
            for (k, dst, src) in q:
                if touched & dst:
                    if kind == k and not (set(ins["r"]) & dst) and k != "smem":
                        continue
                    err(f"touches {sorted(touched & dst)[:2]} with outstanding {nm} load `{src}`", ins)
        def need(reg, n, why):
            p, pi = lastw[reg]
            if pos - p - 1 < n:
                err(f"{why}: need {n} wait states after `{pi['line']}` have {pos - p - 1}", ins)
        for reg in set(ins["r"]):
            if reg not in lastw:
                continue
            p, pi = lastw[reg]
            pk = pi["kind"]
            if pk == "mfma":
                P = pi["passes"]
                if kind == "mfma":
                    if reg in ins["ab"]:
                        need(reg, {4: 8, 8: 12}[P], "mfma D->AB")
                    elif not (ins["c"] == pi["w"] and ins["passes"] == P):
                        need(reg, {4: 6, 8: 10}[P], "mfma D->C overlap")
                else:
                    need(reg, {4: 8, 8: 12}[P], "mfma D->read")
            elif pk == "valu":
                if reg[0] in "va" :
                    if kind == "mfma":
                        need(reg, 2, "valu->mfma")
                    elif kind == "valu":
                        if op.startswith("v_permlane") or ("dpp" in op and reg in regs_of(ins["ops"][1])):
                            need(reg, 2, "valu->permlane/dpp")
                        elif op.startswith(("v_readlane", "v_readfirstlane")):
                            need(reg, 1, "valu->readlane")
                        elif pi["op"].startswith(TRANS) and not op.startswith(TRANS):
                            need(reg, 1, "trans->valu")
                else:
                    if kind == "valu":
                        need(reg, 2, "valu sgpr->valu")
                    elif kind == "vmem":
                        need(reg, 5, "valu sgpr->vmem")
            elif pk == "salu" and reg == ("m0", 0) and kind in ("vmem", "ds"):
                need(reg, 1, "m0->lds dma")
        for reg in set(ins["w"]):
            if reg in lastw and lastw[reg][1]["kind"] == "mfma" and kind != "mfma":
                need(reg, {4: 8, 8: 12}[lastw[reg][1]["passes"]], "mfma D WAW")
            if reg in lastw and lastw[reg][1]["kind"] == "mfma" and kind == "mfma" and reg not in ins["c"]:
                need(reg, {4: 6, 8: 10}[lastw[reg][1]["passes"]], "mfma D WAW mfma")
            if reg in lastc and kind == "valu":
                p, P = lastc[reg]
                n = {4: 3, 8: 7}[P]
                if pos - p - 1 < n:
                    err(f"srcC WAR need {n}", ins)
            if reg in wide and pos - wide[reg] - 1 < 2:
                err("wide store data WAR need 2", ins)
        for reg in ins["w"]:
            lastw[reg] = (pos, ins)
        if kind == "mfma":
            for reg in ins["c"]:
                lastc[reg] = (pos, ins["passes"])
        for reg in ins.get("wide", []):
            wide[reg] = pos
        if kind == "ds":
            lg.append(("ds", set(ins["w"]), ins["line"]))
            if len([x for x in lg]) > 15 + 0:
                pass
        elif kind == "smem":
            lg.append(("smem", set(ins["w"]), ins["line"]))
        elif kind == "vmem":
            vm.append(("vmem", set(ins["w"]), ins["line"]))
            if len(vm) > 63:
                err("more than 63 vmem outstanding", ins)
        if op == "s_nop":
            pos += int(ins["ops"][0], 0) + 1
        else:
            pos += 1
    if not quiet:
        for e in errs[:40]:
            print("HAZARD", e)
    return errs
```

```python
import math, struct
from emit import *
from layout import *
import align

def fbits(x):
    return struct.unpack("<I", struct.pack("<f", x))[0]

L_MEM, L_KX, L_VX, L_QM, L_KM, L_OM, L_SEL, L_FLG, L_W = 0, 8192, 16384, 24576, 26880, 29184, 31232, 32256, 32768
IDX, YRD, L16, LDX, WOP, QW, TR, PS, MP, KD, VD, OB = range(12)
XTR = MP
WL16 = 59
ONES = 12
AQ, AK, AV = 16, 20, 24
VX = 28
def KX(i): return 36 + 4 * i
def Q(i): return 68 + 4 * i
S_WS = 4
S_WQ, S_WK, S_WV, S_WO = 8, 40, 44, 48
S_H, S_W, S_STEP = 12, 13, 14
S_HI = 16
S_SCALE, S_CNT = 18, 19
S_PST0, S_PST1, S_IN0, S_IN1, S_MEM0, S_MEM1, S_MRE = 20, 21, 22, 23, 24, 25, 26
S_KD, S_VD, S_KE = 27, 28, 29
S_MK0, S_MK1, S_MV0, S_MV1 = 31, 32, 33, 34
S_PUB = 35
S_MB = 23
S_T0, S_T1, S_T2, S_T3 = 36, 37, 38, 39
S_DBG = 52
S_LO, S_RNG = 54, 55
S_MODE = 56
S_RDY, S_FLG, S_WSP = 30, 15, 58
S_KVF = 99
S_PH = 57
S_ST = 60
POLL_MAX = 1 << 15

def ws(): return s(S_WS, 4)

P_OPS = [(m, 0, xy) for m in "qkv" for xy in range(2)]
O_OPS = [("o", 2, 2), ("o", 2, 3), ("o", 3, 2), ("o", 3, 3)]
ALL_QKV = [(m, p, xy) for p in range(8) for m in "qkv" for xy in range(2)]
ALL_O = [("o", p, t) for p in range(4) for t in range(4)]
P_REG = {(m, 0, xy): Q(2 * (3 * xy + "qkv".index(m))) for m in "qkv" for xy in range(2)}

def place(one):
    global J_OPS, LDS_OPS, RES_OPS, RES_REG, LDS_SLOT
    J_OPS = [(m, p, xy) for m, p in ((("v", 1), ("k", 3), ("v", 2)) if one else (("v", 2), ("k", 4), ("k", 7))) for xy in range(2)]
    LDS_OPS = P_OPS + J_OPS + O_OPS
    RES_OPS = [o for o in ALL_QKV + ALL_O if o not in LDS_OPS]
    assert len(RES_OPS) == 48 and len(LDS_OPS) == 16
    RES_REG = {o: 128 + 8 * n for n, o in enumerate(RES_OPS)}
    LDS_SLOT = {o: n for n, o in enumerate(LDS_OPS)}


def estimate(lines):
    t, tm, hold, dur, prev, out = 0, -99, 0, 0, "", []
    for ln in lines:
        d = hazard.parse(ln)
        if not d: continue
        k, op = d["kind"], d["op"]
        if k == "mfma":
            t = max(t, tm + dur); tm = t; dur = 4 * d["passes"]; hold = 12 if "smfmac" in op else 8; out.append(t); t += 4
        elif k == "valu":
            t = max(t, tm + (dur + 16 if op.startswith("v_pk_") else hold)); t += 8 if op.startswith(hazard.TRANS) or "permlane" in op else 4
        elif k in ("ds", "vmem"):
            t = max(t + (8 if prev == "valu" else 0), tm + 8) + 4
        elif op == "s_nop": t += 4 * (int(d["ops"][0]) + 1)
        elif op == "s_barrier": t += 8
        else: t += 4
        prev = k
    return out + [t]


class Team:
    def __init__(self, E, stamps=False, **opt):
        self.opt = dict(win=4, ofirst=1, swz=0, h1ack=2, h1pre=6, h1nop=0, w1ack=0, w1pre=12, w1nop=0, h1mask=1, kvpre=(0, 1),
                        line=0, xpoll=0, psch=((3, 0), (6, 1), (10, 1)), x0d=1, pdefer=0, lated=1, align=0, one=1, wkind=128, w2at=2, b1one=7, dma1=10, split=0, w1cut=(2, 5), w2cut=(3, 6, 8, 10), w2ack=1, rearm=0, fine=1, h2sets=2, h2cut=(6, 10), h2mask=1, u0at=0, b3at=3,
                        b1at=2, ld1at=0, h1chk=14, b1bat=22, dma0=23, dmaw=1, dmas=4, qat=34, ex5=1, xat=4)
        self.opt.update(opt)
        place(self.opt['one'])
        self.E = E
        self.stamps = stamps
        self.diag = False
        self.merged = None
        self.nst = 0

    def stamp(self, name):
        if self.stamps and (self.stamps is True or name in self.stamps):
            self.E(f"s_memtime s[{S_ST + 2*self.nst}:{S_ST + 2*self.nst + 1}]")
            self.names.append(name)
            self.nst += 1
            assert self.nst <= 14

    def startup(self, fail):
        E = self.E
        E(f"s_load_dwordx4 s[60:63], s[0:1], {ARG['bwq']}")
        E(f"s_load_dwordx4 s[64:67], s[0:1], {ARG['bwv']}")
        E(f"s_load_dwordx4 s[68:71], s[0:1], {ARG['dbg']}")
        E(f"s_load_dwordx2 s[72:73], s[0:1], {ARG['mem0']}")
        E(f"v_lshrrev_b32 v1, 6, v0")
        E(f"v_and_b32 v20, 63, v0")
        E(f"v_readfirstlane_b32 s{S_W}, v1")
        E("s_waitcnt lgkmcnt(0)")
        E.srd(S_WQ, 60, 4 * MB); E.srd(S_WK, 62, 4 * MB); E.srd(S_WV, 64, 4 * MB); E.srd(S_WO, 66, 4 * MB)
        E.srd(S_WS, 70, WS_BYTES)
        E.srd(76, 72, 8192)
        E.srd(72, 68, 256)
        E(f"s_mov_b64 s[{S_DBG}:{S_DBG+1}], s[68:69]")
        if self.merged:
            E(f"s_mov_b64 s[{S_WSP}:{S_WSP+1}], s[70:71]")
            E(f"s_mul_i32 s{S_KVF}, s{S_H}, {7*128}\n s_add_u32 s{S_KVF}, s{S_KVF}, {FLAGS + self.merged['r1']*128}")
            E(f"s_lshl_b32 s{S_FLG}, s{S_H}, 7\n s_add_u32 s{S_FLG}, s{S_FLG}, {FLAGS + 224*128}")
        E("v_lshrrev_b32 v21, 4, v20\n v_and_b32 v22, 15, v20\n v_and_b32 v23, 1, v21\n v_lshrrev_b32 v24, 1, v21")
        E(f"v_lshlrev_b32 v{L16}, 4, v20")
        E(f"s_lshl_b32 s{S_T0}, s{S_W}, 10\n v_add_u32 v{WL16}, s{S_T0}, v{L16}")
        E(f"s_lshl_b32 s{S_T1}, s{S_W}, 15\n s_add_u32 s{S_T1}, s{S_T1}, {L_W}\n v_add_u32 v{WOP}, s{S_T1}, v{L16}")
        E(f"v_lshrrev_b32 v25, 2, v20\n v_lshlrev_b32 v25, 13, v25\n v_and_b32 v1, 3, v20\n v_lshl_add_u32 v25, v1, 4, v25")
        E(f"s_lshl_b32 s{S_T0}, s{S_W}, 6\n s_lshl_b32 s{S_T2}, s{S_H}, 8\n s_add_u32 s{S_T0}, s{S_T0}, s{S_T2}\n v_add_u32 v25, s{S_T0}, v25")
        if self.opt.get("seg128"):
            E(f"v_lshrrev_b32 v25, 3, v20\n s_and_b32 s{S_T0}, s{S_W}, 1\n s_lshl_b32 s{S_T0}, s{S_T0}, 3\n v_add_u32 v25, s{S_T0}, v25\n v_lshlrev_b32 v25, 13, v25")
            E(f"v_and_b32 v1, 7, v20\n v_lshl_add_u32 v25, v1, 4, v25\n s_lshr_b32 s{S_T0}, s{S_W}, 1\n s_lshl_b32 s{S_T0}, s{S_T0}, 7\n s_add_u32 s{S_T0}, s{S_T0}, s{S_T2}\n v_add_u32 v25, s{S_T0}, v25")
        E(f"v_lshrrev_b32 v26, 3, v20\n v_lshlrev_b32 v26, 10, v26\n v_and_b32 v1, 7, v20\n v_lshl_add_u32 v26, v1, 4, v26")
        E(f"s_lshl_b32 s{S_T0}, s{S_W}, 7\n s_lshl_b32 s{S_T2}, s{S_H}, 17\n s_add_u32 s{S_T0}, s{S_T0}, s{S_T2}\n v_add_u32 v26, s{S_T0}, v26")
        E("v_bfe_u32 v29, v20, 2, 1\n v_bfe_u32 v30, v20, 3, 1\n v_and_b32 v31, 3, v20")
        fine = self.opt["fine"]
        if fine: E("v_lshl_add_u32 v27, v21, 2, v29\n v_lshlrev_b32 v27, 6, v27")
        else: E("v_lshl_add_u32 v27, v24, 1, v29\n v_lshl_add_u32 v27, v27, 1, v23\n v_lshlrev_b32 v27, 7, v27")
        E("v_lshl_add_u32 v27, v30, 5, v27\n v_lshl_add_u32 v27, v31, 3, v27")
        E(f"v_add_u32 v27, s{S_T1}, v27\n v_xor_b32 v36, 1, v30\n v_lshl_add_u32 v36, v36, 11, v27\n v_lshl_add_u32 v27, v30, 11, v27")
        E("v_lshl_add_u32 v28, v23, 2, v24\n v_lshl_add_u32 v28, v28, 2, v29\n v_lshlrev_b32 v28, 7, v28\n v_lshl_add_u32 v28, v30, 6, v28\n v_lshl_add_u32 v28, v31, 4, v28")
        E(f"v_add_u32 v28, s{S_T1}, v28")
        E(f"s_mov_b32 s{S_T3}, s{S_T1}")
        WIN = self.opt["win"]
        U = lambda m, p: [(m, p, 0), (m, p, 1)]
        lds_u = lambda u: u[0] in LDS_SLOT
        pairs = [sorted([U(m, p), U(m, p + 1)], key=lds_u) for p in (0, 2, 4, 6) for m in "qkv"]
        pairs.sort(key=lambda x: lds_u(x[0]) + lds_u(x[1]))
        ou = [[("o", p, t), ("o", p, t + 1)] for p in range(4) for t in (0, 2)]
        qkv_u = [u for x in pairs for u in x]
        units = [u for u in ou if not lds_u(u)] + qkv_u + [u for u in ou if lds_u(u)]
        slot = {}
        for n, u in enumerate(units):
            if lds_u(u): slot[n] = LDS_SLOT[u[0]] // 2
        for n, u in enumerate(units):
            if n not in slot:
                busy = {slot[k] for k in range(max(0, n - WIN + 1), n)} | {slot[k] for k in slot if k < n + WIN and lds_u(units[k])}
                slot[n] = min(set(range(8)) - busy)
        assert all(slot[n] != slot[k] for n in range(32) for k in range(max(0, n - WIN + 1), n))
        srd = dict(q=S_WQ, k=S_WK, v=S_WV)
        def issue(n):
            u = units[n]; base = slot[n] * 4096
            if u[0][0] == "o":
                (_, p, t), (_, p2, t2) = u
                assert p == p2 and t2 == t + 1 and t % 2 == 0
                E(f"s_xor_b32 s{S_T0}, s{S_W}, {p}\n s_lshl_b32 s{S_T0}, s{S_T0}, 15")
                for j in range(4):
                    E(f"s_add_u32 m0, s{S_T3}, {base + j*1024}")
                    E(f"s_add_u32 s{S_T1}, s{S_T0}, {j*8192 + (t//2)*512}")
                    E.vmem(f"buffer_load_dwordx4 v26, {s(S_WO,4)}, s{S_T1} offen lds", tag=("u", n))
            else:
                (m, p, xy), o2 = u
                assert xy == 0 and o2 == (m, p, 1)
                E(f"s_xor_b32 s{S_T0}, s{S_W}, {p}\n s_lshl_b32 s{S_T0}, s{S_T0}, 19")
                for j in range(4):
                    E(f"s_add_u32 m0, s{S_T3}, {base + j*1024}")
                    E(f"s_add_u32 s{S_T1}, s{S_T0}, {16*j*8192}")
                    E.vmem(f"buffer_load_dwordx4 v25, {s(srd[m],4)}, s{S_T1} offen lds", tag=("u", n))
        def consume(n):
            u = units[n]; base = slot[n] * 4096
            E.need(tags=[("u", n)])
            for k, o in enumerate(u):
                dst = RES_REG[o] if o in RES_REG else 64 + 8 * k
                for hi in range(2):
                    for lo in range(2):
                        if o[0] == "o":
                            E.ds(f"ds_read_b64_tr_b16 {r(dst + 4*hi + 2*lo, 2)}, v28 offset:{base + (8*hi + 2*lo)*128 + k*8}")
                        else:
                            E.ds(f"ds_read_b64_tr_b16 {r(dst + 4*hi + 2*lo, 2)}, v{36 if k else 27} offset:{base + hi*1024 + lo*(128 if fine else 64)}")
            E.drain(lg=True)
            if u[0] not in RES_REG:
                for k, o in enumerate(u):
                    assert LDS_SLOT[o] * 2048 == base + k * 2048
                    for hf in range(2):
                        E.ds(f"ds_write_b128 v{WOP}, {v(64 + 8*k + 4*hf, 4)} offset:{base + k*2048 + hf*1024}")
                E.drain(lg=True)
        for n in range(2):
            issue(n)
        E(f"v_mov_b32 v{IDX}, 0x4444\n v_mov_b32 v1, 0xeeee\n v_cmp_lt_u32 vcc, 7, v22\n s_nop 1\n v_cndmask_b32 v32, v{IDX}, v1, vcc")
        E(f"v_mov_b32 v{IDX}, v32")
        E(f"v_and_b32 v32, 7, v20\n v_lshlrev_b32 v32, 4, v32\n v_lshl_add_u32 v{OB}, v21, 7, v32\n v_xor_b32 v{YRD}, 128, v{L16}")
        E(f"v_lshl_add_u32 v33, v24, 4, v22\n s_lshl_b32 s{S_T0}, s{S_W}, 5\n v_add_u32 v33, s{S_T0}, v33\n v_lshlrev_b32 v33, 3, v33")
        E(f"v_mul_u32_u24 v34, {MHS}, v23\n v_add_u32 v{QW}, v33, v34")
        E(f"v_bfe_u32 v33, v20, 2, 2\n v_lshl_add_u32 v33, v23, 2, v33\n v_lshl_add_u32 v33, v24, 4, v33\n v_lshlrev_b32 v33, 3, v33")
        E(f"v_and_b32 v34, 1, v20\n v_mul_u32_u24 v34, {MHS}, v34\n v_add_u32 v{TR}, v33, v34")
        E(f"s_lshl_b32 s{S_T0}, s{S_W}, 3\n v_lshrrev_b32 v33, 3, v20\n v_add_u32 v33, s{S_T0}, v33")
        E(f"v_mul_u32_u24 v34, {self.opt['swz']}, v33\n v_add_u32 v34, s{S_H}, v34\n v_and_b32 v34, 31, v34")
        E(f"v_lshrrev_b32 v37, {1 if fine else 0}, v32\n v_lshl_add_u32 v33, v33, 13, v37\n v_lshl_add_u32 v{PS}, v34, 7, v33")
        E("v_and_b32 v37, 1, v20\n v_bfe_u32 v38, v20, 1, 1\n v_lshl_add_u32 v37, v29, 1, v37")
        E(f"s_lshr_b32 s{S_T0}, s{S_H}, 3\n s_lshl_b32 s{S_T0}, s{S_T0}, 10\n s_and_b32 s{S_T1}, s{S_H}, 1\n s_lshl_b32 s{S_T1}, s{S_T1}, 9\n s_add_u32 s{S_T0}, s{S_T0}, s{S_T1}")
        E(f"s_and_b32 s{S_T1}, s{S_H}, 6\n s_lshl_b32 s{S_T1}, s{S_T1}, 5\n s_add_u32 s{S_T0}, s{S_T0}, s{S_T1}")
        E(f"v_lshlrev_b32 v33, 4, v21\n v_lshl_add_u32 v33, v{37 if fine else 31}, 2, v33\n v_lshl_add_u32 v33, v{38 if fine else 29}, 8, v33\n v_lshl_add_u32 v33, v30, 30, v33\n v_add_u32 v{MP}, s{S_T0}, v33")
        E(f"v_mov_b32 v{LDX}, v{L16}")
        line = self.opt["line"]
        if line:
            assert fine
            if line == 2: E("v_bfe_u32 v39, v20, 3, 2\n v_lshrrev_b32 v63, 5, v20")
            else: E("v_mov_b32 v39, v21\n v_mov_b32 v63, v30")
            E(f"v_lshlrev_b32 v33, 5, v39\n v_lshl_add_u32 v33, v38, 4, v33\n v_lshl_add_u32 v33, v37, 2, v33\n v_lshl_add_u32 v33, v63, 30, v33")
            E(f"s_lshl_b32 s{S_T0}, s{S_H}, 7\n v_add_u32 v{MP}, s{S_T0}, v33")
            E(f"v_bfe_u32 v33, v20, 2, 2\n v_lshl_add_u32 v33, v33, 1, v24\n v_lshl_add_u32 v34, v31, 1, v23\n v_lshlrev_b32 v34, 4, v34\n v_lshl_add_u32 v{LDX}, v33, 7, v34")
        else:
            E("v_mov_b32 v39, v21")
        E(f"s_lshr_b32 s{S_T0}, s{S_H}, 2\n s_lshl_b32 s{S_T0}, s{S_T0}, 6\n s_and_b32 s{S_T1}, s{S_H}, 1\n s_lshl_b32 s{S_T1}, s{S_T1}, 5\n s_add_u32 s{S_T0}, s{S_T0}, s{S_T1}")
        E(f"s_and_b32 s{S_T1}, s{S_H}, 2\n s_lshl_b32 s{S_T1}, s{S_T1}, 11\n s_add_u32 s{S_T0}, s{S_T0}, s{S_T1}")
        E(f"v_lshlrev_b32 v35, 10, v39\n v_lshl_add_u32 v35, v{37 if fine else 31}, {2 if fine else 1}, v35\n v_lshl_add_u32 v35, v{38 if fine else 29}, 4, v35\n v_add_u32 v35, s{S_T0}, v35")
        for k in range(4):
            E.vmem(f"buffer_load_ushort v{44+k}, v35, s[76:79], 0 offen offset:{(k >> 1)*512 + (k & 1)*(2 if fine else 8)}")
        E(f"v_lshlrev_b32 v33, 4, v{38 if line == 2 else 29}\n v_mov_b32 v34, 0x3f80\n v_lshlrev_b32 v33, v33, v34\n v_and_b32 v34, 1, v20\n v_lshl_add_u32 v34, v34, 1, v{29 if line == 2 else 30}")
        for a_ in range(4):
            E(f"v_cmp_eq_u32 vcc, {a_}, v34\n s_nop 1\n v_cndmask_b32 v{48+a_}, 0, v33, vcc")
        E.ds(f"ds_write_b128 v{L16}, v[48:51] offset:{L_SEL}")
        E(f"v_lshlrev_b32 v33, 9, v21\n s_lshl_b32 s{S_T0}, s{S_W}, 11\n v_add_u32 v33, s{S_T0}, v33")
        E(f"v_lshl_add_u32 v{VD}, v22, 4, v33")
        E(f"v_lshl_add_u32 v33, v30, 8, v33\n v_add_u32 v{KD}, v33, v32")
        for i in range(4): E(f"v_mov_b32 v{ONES+i}, 0x3f803f80")
        if self.merged:
            E(f"v_and_b32 v33, 1, v20\n v_mul_u32_u24 v33, {(self.merged['r2'] - self.merged['r1'])*128}, v33\n v_min_u32 v34, 1, v20\n v_lshlrev_b32 v34, 30, v34")
            E(f"s_cmp_eq_u32 s{S_W}, 3\n s_cselect_b64 vcc, -1, 0\n v_cndmask_b32 v19, v34, v33, vcc\n v_mov_b64 v[60:61], 0\n v_mov_b32 v62, {L_FLG}")
            E.ds("ds_write_b64 v62, v[60:61]")
        E(f"s_mov_b32 s{S_HI}, 0\n s_mov_b32 s{S_HI+1}, -1")
        E(f"s_mov_b32 s{S_SCALE}, {hex(fbits(math.log2(math.e) / math.sqrt(128.0)))}")
        lo, hi = fbits(2.0 ** -32), fbits(2.0 ** 48)
        E(f"s_mov_b32 s{S_LO}, {hex(lo)}\n s_mov_b32 s{S_RNG}, {hex(hi - lo)}")
        E(f"s_lshl_b32 s{S_T0}, s{S_W}, 10")
        E(f"s_add_u32 s{S_MK0}, s{S_T0}, {L_KX}\n s_add_u32 s{S_MK1}, s{S_T0}, {L_KX + 4096 - 128}")
        E(f"s_add_u32 s{S_MV0}, s{S_T0}, {L_VX}\n s_add_u32 s{S_MV1}, s{S_T0}, {L_VX + 4096 - 256}")
        E(f"s_lshl_b32 s{S_T0}, s{S_H}, 19\n s_add_u32 s{S_KD}, s{S_T0}, {KB}\n s_add_u32 s{S_VD}, s{S_T0}, {VB}")
        E(f"s_mul_i32 s{S_T0}, s{S_H}, {KMB}\n s_add_u32 s{S_KE}, s{S_T0}, {KM}")
        E(f"s_lshl_b32 s{S_T0}, s{S_H}, 13\n s_add_u32 s{S_IN0}, s{S_T0}, {INBOX}\n s_add_u32 s{S_IN1}, s{S_T0}, {INBOX + 4096}")
        E(f"s_mov_b32 s{S_PST0}, {INBOX}\n s_mov_b32 s{S_PST1}, {INBOX + 4096}")
        for i in range(4): E(f"v_mov_b32 v{40+i}, -1")
        E(f"s_lshl_b32 s{S_T0}, s{S_W}, 13\n s_add_u32 s{S_T0}, s{S_T0}, {MEMS}\n s_add_u32 s{S_T1}, s{S_T0}, 4096")
        for ins in (f"buffer_store_dwordx4 v[40:43], v{WL16}, {ws()}, s{S_IN0} offen sc1", f"buffer_store_dwordx4 v[40:43], v{WL16}, {ws()}, s{S_IN1} offen sc1",
                    f"buffer_store_dword v40, v{MP}, {ws()}, s{S_T0} offen sc1", f"buffer_store_dword v40, v{MP}, {ws()}, s{S_T1} offen sc1"):
            E.vmem(ins, tag="init")
        if self.merged:
            E(f"v_mov_b32 v52, 0\n v_min_u32 v53, 1, v{WL16}\n v_lshlrev_b32 v53, 30, v53")
            E.vmem(f"buffer_store_dword v52, v53, {ws()}, s{S_FLG} offen sc1", tag="init")
        for n in range(2, WIN):
            issue(n)
        for n in range(32):
            consume(n)
            if n + WIN < 32:
                issue(n + WIN)
            if self.diag and n in (0, 13, 31 - WIN): tmark(E, {0: 2, 13: 3, 31 - WIN: 4}[n])
            if n == 2:
                assert not E.need("v[44:47]", tags=["init"])
                E("s_barrier")
                skip = E.label("T_arm")
                E(f"s_cmp_lg_u32 s{S_W}, 0\n s_cbranch_scc1 {skip}")
                E(f"s_getreg_b32 s{S_T0}, hwreg(HW_REG_XCC_ID, 0, 3)\n s_lshl_b32 s{S_T0}, s{S_T0}, 3\n s_lshl_b64 s[60:61], 1, s{S_T0}\n s_mov_b32 s62, 1")
                E(f"s_atomic_add_x2 s[60:61], s[{S_DBG}:{S_DBG+1}], 0")
                if self.merged: E(f"s_atomic_add s62, s[{S_DBG}:{S_DBG+1}], {self.merged['init_off']}")
                E("v_lshl_or_b32 v44, v45, 16, v44\n v_lshl_or_b32 v46, v47, 16, v46\n v_min_u32 v44, -2, v44\n v_min_u32 v46, -2, v46")
                E(f"s_mov_b32 s{S_T0}, {MEMS}\n s_mov_b32 s{S_T1}, {MEMS + 4096}")
                E(f"buffer_store_dword v44, v{MP}, {ws()}, s{S_T0} offen sc1\n buffer_store_dword v46, v{MP}, {ws()}, s{S_T1} offen sc1")
                E(skip + ":")
            ldc = ["buffer_load_dwordx2 v[54:55], off, s[72:75], 0 sc1"]
            if self.merged: ldc.append(f"buffer_load_dword v56, off, s[72:75], 0 offset:{self.merged['init_off']} sc1")
            if n == 30 - 2*WIN:
                for x in ldc: E.vmem(x)
            if n == 31 - WIN:
                assert not E.need("v[54:56]")
                lp, go = E.label("T_arr"), E.label("T_arrgo")
                E(f"s_mov_b32 s{S_CNT}, 0\n s_branch {go}")
                E(lp + ":")
                E(f"s_add_u32 s{S_CNT}, s{S_CNT}, 1\n s_cmp_gt_u32 s{S_CNT}, {POLL_MAX}\n s_cbranch_scc1 {fail}")
                for x in ldc: E(x)
                E("s_waitcnt vmcnt(0)")
                E(go + ":")
                E(f"v_sad_u8 v57, v54, 0, 0\n v_sad_u8 v57, v55, 0, v57\n v_or_b32 v58, v54, v55\n v_cmp_gt_u32 vcc, 32, v57\n s_cbranch_vccnz {lp}")
                if self.merged: E(f"v_cmp_gt_u32 vcc, 0x100, v56\n s_cbranch_vccnz {lp}")
                E(f"v_readfirstlane_b32 s{S_T0}, v58\n s_nop 0\n s_and_b32 s{S_T0}, s{S_T0}, 0x20202020\n s_cselect_b32 s{S_MODE}, 0, 1")
                if self.merged:
                    E(f"s_mov_b32 s{S_STEP}, -1\n s_mov_b32 s{S_RDY}, -1")
                    self.wait_kv(fail)
                    if self.diag: tmark(E, 6)
                for x in self.dma_list():
                    E(x[0]); E("s_nop 0"); E.vmem(x[1], tag="dma")
                self.dma_adv()
                E(f"s_lshl_b32 s{S_T0}, s{S_H}, 10\n s_add_u32 s{S_T0}, s{S_T0}, {MEMS}")
                E.vmem(f"buffer_load_dwordx4 v[40:43], v{L16}, {ws()}, s{S_T0} offen sc1")
        if self.diag: tmark(E, 5)
        E.drain(vm=True, lg=True)
        E("s_barrier")
        if self.merged: E(f"s_cmp_ge_u32 s{S_W}, 2\n s_cselect_b64 vcc, -1, 0\n v_cndmask_b32 v{XTR}, v{MP}, v19, vcc")
        self.prefetch_p(); self.prefetch_vx(); self.prefetch_kx()
        E(f"s_and_b32 s{S_T0}, s{S_W}, 1\n s_lshl_b32 s{S_T0}, s{S_T0}, 12\n s_add_u32 s{S_IN0}, s{S_IN0}, s{S_T0}\n s_add_u32 s{S_MB}, s{S_T0}, {MEMS}")
        E(f"s_mov_b32 s{S_STEP}, -1")
        self.step_scalars()
        E.drain(lg=True)

    def wait_kv(self, fail):
        E = self.E; M = self.merged
        lp, ok = E.label("T_kv"), E.label("T_kvok")
        E(f"s_mov_b32 s{S_CNT}, 0")
        E(f"s_branch {ok}")
        E(lp + ":")
        E("s_sleep 4")
        E(f"s_add_u32 s{S_CNT}, s{S_CNT}, 1\n s_cmp_gt_u32 s{S_CNT}, {POLL_MAX}\n s_cbranch_scc1 {fail}")
        E(ok + ":")
        E(f"s_add_u32 s{S_T3}, s{S_KVF}, {(M['r2'] - M['r1'])*128}\n s_mov_b32 s{S_T2}, 0\n s_mov_b32 s{S_T1}, 0")
        E(f"s_atomic_or s{S_T2}, s[{S_WSP}:{S_WSP+1}], s{S_KVF} glc\n s_atomic_or s{S_T1}, s[{S_WSP}:{S_WSP+1}], s{S_T3} glc\n s_waitcnt lgkmcnt(0)")
        self.kv_ready()
        E(f"s_cmp_ge_i32 s{S_STEP}, s{S_RDY}\n s_cbranch_scc1 {lp}")

    def kv_ready(self):
        E = self.E; M = self.merged
        E(f"s_add_u32 s{S_T1}, s{S_T1}, {M['n1']}\n s_cmp_ge_u32 s{S_T2}, {M['n1']}\n s_cselect_b32 s{S_T2}, s{S_T1}, s{S_T2}")
        E(f"s_cmp_ge_u32 s{S_T2}, 64\n s_cselect_b32 s{S_T2}, 100, s{S_T2}\n s_sub_u32 s{S_T2}, s{S_T2}, 1\n s_max_i32 s{S_RDY}, s{S_RDY}, s{S_T2}")

    def kv_refresh(self):
        E = self.E
        E(f"ds_read_b64 {v(KX(2),2)}, v{L16} offset:{L_FLG}\n s_waitcnt lgkmcnt(0)")
        E(f"v_readfirstlane_b32 s{S_T2}, v{KX(2)}\n v_readfirstlane_b32 s{S_T1}, v{KX(2)+1}\n s_nop 0")
        self.kv_ready()

    def dma_list(self):
        return [(f"s_mov_b32 m0, s{S_MK0}", f"buffer_load_dwordx4 v{KD}, {ws()}, s{S_KD} offen sc1 lds"),
                (f"s_mov_b32 m0, s{S_MK1}", f"buffer_load_dwordx4 v{KD}, {ws()}, s{S_KD} offen offset:128 sc1 lds"),
                (f"s_mov_b32 m0, s{S_MV0}", f"buffer_load_dwordx4 v{VD}, {ws()}, s{S_VD} offen sc1 lds"),
                (f"s_mov_b32 m0, s{S_MV1}", f"buffer_load_dwordx4 v{VD}, {ws()}, s{S_VD} offen offset:256 sc1 lds")]

    def dma_adv(self):
        self.E(f"s_add_u32 s{S_KD}, s{S_KD}, 8192\n s_add_u32 s{S_VD}, s{S_VD}, 8192")

    def rd_op(self, o, half, reg):
        return f"ds_read_b128 {v(reg + 4*half, 4)}, v{WOP} offset:{LDS_SLOT[o]*2048 + half*1024}"

    def p_list(self):
        return [self.rd_op(o, hf, P_REG[o]) for o in sorted(P_OPS, key=lambda o: P_REG[o]) for hf in range(2)]

    def prefetch_p(self):
        for x in self.p_list(): self.E.ds(x)

    def prefetch_vx(self):
        for j in range(2):
            self.E.ds(f"ds_read_b128 {v(VX + 4*j, 4)}, v{WL16} offset:{L_VX + 4096*j}")

    def prefetch_kx(self):
        for f in range(8):
            self.E.ds(f"ds_read_b128 {v(KX(f), 4)}, v{L16} offset:{L_KX + 1024*f}")

    def zero_acc(self):
        for i in range(6):
            self.E(f"v_mov_b64 {v(AQ + 2*i, 2)}, 0")

    def scalar_list(self):
        if self.opt["rearm"]:
            return [f"s_and_b32 s{S_PH}, s{S_STEP}, 1", f"s_add_u32 s{S_T0}, s{S_STEP}, 1", f"s_and_b32 s{S_T0}, s{S_T0}, 3", f"s_lshl_b32 s{S_T0}, s{S_T0}, 13",
                    f"s_add_u32 s{S_PUB}, s{S_T0}, s{S_MB}", f"s_xor_b32 s{S_MRE}, s{S_PUB}, 0x4000",
                    f"s_add_u32 s{S_MEM0}, s{S_T0}, {MEMS}", f"s_add_u32 s{S_MEM1}, s{S_T0}, {MEMS + 4096}", "s_nop 0"]
        return [f"s_and_b32 s{S_PH}, s{S_STEP}, 1", f"s_and_b32 s{S_T0}, s{S_STEP}, 3", f"s_lshl_b32 s{S_T0}, s{S_T0}, 13",
                f"s_add_u32 s{S_MRE}, s{S_T0}, s{S_MB}", f"s_add_u32 s{S_T0}, s{S_T0}, 8192", f"s_and_b32 s{S_T0}, s{S_T0}, 0x7fff",
                f"s_add_u32 s{S_MEM0}, s{S_T0}, {MEMS}", f"s_add_u32 s{S_MEM1}, s{S_T0}, {MEMS + 4096}",
                f"s_add_u32 s{S_PUB}, s{S_T0}, s{S_MB}"]

    def step_scalars(self):
        for x in self.scalar_list(): self.E(x)

    def run(self, prog, first_need=True):
        E = self.E
        if first_need:
            E.need(*prog[0][1])
        for n, (ins, _, fill) in enumerate(prog):
            E(ins)
            l0 = len(E.lines)
            toks = list(prog[n + 1][1]) if n + 1 < len(prog) else []
            tags = []
            for f in fill:
                if isinstance(f, tuple) and f[0] == "need":
                    toks += list(f[1]); tags += list(f[2])
            E.need(*toks, tags=tags)
            for f in fill:
                if isinstance(f, tuple) and f[0] == "nop":
                    k = f[1] - len([x for x in E.lines[l0:] if hazard.parse(x) and "memtime" not in x])
                    if k > 0: E(f"s_nop {k - 1}")
                else:
                    self.put(f)

    def put(self, f):
        E = self.E
        if callable(f):
            f()
        elif isinstance(f, tuple):
            if f[0] == "need":
                return
            (E.ds if f[0].startswith("ds_") else E.vmem)(f[0], tag=f[1])
        elif f.startswith("ds_"):
            E.ds(f)
        elif f.startswith("buffer_"):
            E.vmem(f)
        else:
            E(f)

    def loops(self, mode, done, fail, xsc=""):
        E = self.E
        labs = [E.label("T_w") for _ in range(4)]
        for w in range(1, 4): E(f"s_cmp_eq_u32 s{S_W}, {w}\n s_cbranch_scc1 {labs[w]}")
        errs = []
        for w in range(4):
            E(labs[w] + ":")
            errs += self.loop(mode, w, done, fail, xsc)
        return errs

    def loop(self, mode, w, done, fail, xsc=""):
        E = self.E
        O = self.opt
        sc = " sc1" if mode else ""
        self.nst = 0; self.names = []
        cvt = lambda d, a0: f"v_cvt_pk_bf16_f32 v{d}, v{a0}, v{a0+1}"
        zero = lambda d: f"v_mov_b64 {v(d,2)}, 0"
        st = lambda name: (lambda: self.stamp(name))
        ror = lambda d, x: f"v_mov_b32_dpp v{d}, v{x} row_ror:8 row_mask:0xf bank_mask:0xf"
        def smf(d, a_, b_, first): return f"v_mfma_f32_16x16x32_bf16 {v(d,4)}, {v(a_,4)}, {v(b_,4)}, {'0' if first else v(d,4)}"
        cntchk = f"s_add_u32 s{S_CNT}, s{S_CNT}, 1\n s_cmp_gt_u32 s{S_CNT}, {POLL_MAX}\n s_cbranch_scc1 {fail}"
        NS = O["h2sets"]
        FR = {(0,0): 14, (0,1): 13, (1,0): 4, (1,1): 5, (2,0): 8, (2,1): 13, (3,0): 6, (3,1): 7,
              (4,0): 12, (4,1): 14, (5,0): 9, (5,1): 10, (6,0): 11, (6,1): 4, (7,0): 5, (7,1): 8}
        H0, Y0, H1, Y4 = Q(14), Q(13), Q(12), Q(14)
        one = O["one"]
        if one:
            FR = {(0,0): 14, (0,1): 13, (4,0): 12, (4,1): 4, (1,0): 8, (1,1): 13, (2,0): 6, (2,1): 7,
                  (3,0): 12, (3,1): 14, (5,0): 9, (5,1): 10, (6,0): 11, (6,1): 4, (7,0): 5, (7,1): 8}
            Y4 = Q(4)
        ld0 = f"buffer_load_dwordx4 {v(H0,4)}, v{LDX}, {ws()}, s{S_MEM0} offen offset:{1024*w} sc1"
        ld1 = f"buffer_load_dwordx4 {v(H1,4)}, v{LDX}, {ws()}, s{S_MEM1} offen offset:{1024*w} sc1"
        chk = lambda x, t: [f"v_max3_u32 v{t}, v{x}, v{x+1}, v{x+2}", f"v_max_u32 v{t}, v{t}, v{x+3}", f"v_cmp_eq_u32 vcc, -1, v{t}"]
        if one == 1: ld0 = ld0 + "\n" + ld1
        top, retry = E.label("T_loop"), E.label("T_retry")
        E(f"s_mov_b32 s{S_CNT}, 0")
        self.zero_acc()
        PSCH = O["psch"]
        if one == 2: NS = len(PSCH) - 1
        if one == 2: E(ld0)
        for k in range(NS): E(ld1 if one == 2 else ld0)
        E(f"s_branch {top}")
        E(".p2align 6")
        lal = len(E.lines)
        E(retry + ":")
        if O["h2mask"]: E("s_mov_b64 exec, vcc")
        E(ld0)
        if O["h2mask"]: E("s_mov_b64 exec, -1")
        E(cntchk)
        if one == 2: E(ld1 + f"\n s_waitcnt vmcnt({O['x0d']})")
        E(top + ":")
        E(f"s_waitcnt vmcnt({[NS - 1, 2*NS - 1, NS][one]}) lgkmcnt(0)")
        body0 = len(E.lines)
        wr = lambda x, u, k=None: (f"ds_write_b128 v{L16}, {v(x,4)} offset:{L_MEM + 4096*u + 1024*w}" if k is None else
                                   f"ds_write_b64 v{L16}, {v(x+2*k,2)} offset:{L_MEM + 4096*u + 1024*w + 8*k}")
        if one == 2:
            for x in chk(H0, Y0 + 3): E(x)
            E(ror(Y0, H0)); E(ror(Y0 + 1, H0 + 1))
            E(f"s_cbranch_vccnz {retry}")
            f1 = [x[1] for x in PSCH].index(1)
            E.lg = []; E.vm = [{"poll"} | ({"p0"} if k == f1 else set()) for k in range(1, NS + 1)]
        elif one:
            t = Y0 + 3
            E(f"v_max3_u32 v{t}, v{H0}, v{H0+1}, v{H0+2}\n v_max_u32 v{t}, v{t}, v{H0+3}")
            E(ror(Y0, H0)); E(ror(Y0 + 1, H0 + 1))
            E(f"s_waitcnt vmcnt({2*NS - 2})")
            E(f"v_max3_u32 v{t}, v{t}, v{H1}, v{H1+1}\n v_max3_u32 v{t}, v{t}, v{H1+2}, v{H1+3}\n v_cmp_eq_u32 vcc, -1, v{t}")
            E(f"s_cbranch_vccnz {retry}")
            E.lg = []; E.vm = [{"poll"}] if NS > 1 else []
        else:
            for x in chk(H0, Y0 + 3): E(x)
            E(f"s_cbranch_vccnz {retry}")
            E.lg = []; E.vm = []
            E.ds(wr(H0, 0), tag="e0w")
            E(ror(Y0, H0)); E(ror(Y0 + 1, H0 + 1))
        if self.stamps: E(f"s_mov_b32 s95, s{S_CNT}")
        self.stamp("hop2")
        def F(p, xy): return f"ds_read_b128 {v(Q(FR[p, xy]),4)}, v{YRD if xy else L16} offset:{L_MEM + 1024*(p ^ w)}"
        opreg = dict(RES_REG); opreg.update(P_REG)
        for n, o in enumerate(J_OPS): opreg[o] = Q(2 * (n & 1))
        acc = dict(q=AQ, k=AK, v=AV)
        def sm(m, p, xy):
            return (f"v_smfmac_f32_16x16x64_bf16 {v(acc[m],4)}, {v(Q(FR[p, xy]),4)}, {r(opreg[m, p, xy],8)}, v{IDX}",
                    (v(Q(FR[p, xy]), 4), r(opreg[m, p, xy], 8)))
        seq = [(m, p, xy) for p in range(3) for xy in range(2) for m in "qkv"]
        seq += [(m, p, xy) for p in (3, 4) for xy in range(2) for m in "qk"]
        seq += [(m, p, xy) for m in "qk" for p in (5, 6, 7) for xy in range(2)]
        seq += [("v", p, xy) for p in range(3, 8) for xy in range(2)]
        if one:
            seq = [(m, p, xy) for p in (0, 4, 1) for xy in range(2) for m in "qkv"]
            seq += [(m, p, xy) for m in "qkv" for p in (2, 3, 5, 6, 7) for xy in range(2)]
        J = lambda n, hf: self.rd_op(J_OPS[n], hf, Q(2 * (n & 1)))
        PQ, PK = Q(13), Q(13) + 2
        PV_ = PQ
        mul = lambda i: f"v_mul_f32 v{AQ+i}, s{S_SCALE}, v{AQ+i}"
        c1 = chk(H1, Q(4) + 3 if one else Q(9))
        dma = self.dma_list()
        sal = self.scalar_list()
        late, lateok = E.label("T_late"), E.label("T_lateok")
        KF = [Q(12), Q(14), Q(9), Q(10)]
        WA = [Q(6), Q(7), KX(0), KX(1)]
        trq = [f"ds_read_b64_tr_b16 {v(Q(kk) + 2*hi, 2)}, v{TR} offset:{L_QM + (32*kk + 8*hi)*8}" for kk in range(4) for hi in range(2)]
        trk = [f"ds_read_b64_tr_b16 {v(KF[kk] + 2*hi, 2)}, v{TR} offset:{L_KM + (32*kk + 8*hi)*8}" for kk in range(4) for hi in range(2)]
        zl = [zero(WA[k >> 1] + 2*(k & 1)) for k in range(8)]
        fill = {n: [] for n in range(48)}
        kvw, kvb = E.label("T_kvw"), E.label("T_kvb")
        adv = "0x10000000" if O.get("noadv") == 2 else 8192
        if one:
            if one == 2:
                fill[0] = [f"s_add_u32 s{S_STEP}, s{S_STEP}, 1", (wr(H0, 0), "e0w"), ror(Y0 + 2, H0 + 2)]
                fill[1] += [sal[0]] + ([(ld1 + " ; repoll", "poll")] if O["xpoll"] else []) + [ror(Y0 + 3, H0 + 3)]
                fill[2] += [sal[1], J(0,0), sal[2]]; fill[3] += [sal[3], J(0,1), sal[4]]
                fill[4] += [("need", [], ["p0"]), J(1,0), c1[0]]
                fill[5] += [sal[5], J(1,1), c1[1], c1[2], f"s_cbranch_vccnz {late}", lateok + ":"]
                fill[6] += [(wr(H1, 1), "h1w"), ror(Y4, H1), ror(Y4 + 1, H1 + 1)]
                fill[7] += [("need", [], ["e0w"]), "s_barrier", F(1,0), ror(Y4 + 2, H1 + 2), ror(Y4 + 3, H1 + 3)]
                fill[8] += [dma[0][0], F(1,1)]
                fill[11] += [("need", [], ["h1w"]), "s_barrier"]
                for n, x in {22: J(2,0), 23: J(2,1), 24: J(3,0), 25: J(3,1), 30: J(4,0), 31: J(4,1), 32: J(5,0), 33: J(5,1)}.items():
                    fill[n].append(x)
            else:
                b1 = O["b1one"]
                if O["wkind"] == 128:
                    fill[0].append(wr(H0, 0)); fill[O["w2at"]].append((wr(H1, 1), "e0w"))
                else:
                    for k in range(4): fill[k].append((wr(H1 if k > 1 else H0, k >> 1, k & 1), "e0w"))
                fill[0] = [f"s_add_u32 s{S_STEP}, s{S_STEP}, 1"] + fill[0] + [ror(Y0 + 2, H0 + 2)]
                fill[1] += [ror(Y0 + 3, H0 + 3)]
                for n, x in {4: J(0,0), 5: J(0,1), 6: J(1,0), 10: J(1,1), 22: J(2,0), 23: J(2,1), 24: J(3,0), 25: J(3,1),
                             30: J(4,0), 31: J(4,1), 32: J(5,0), 33: J(5,1)}.items():
                    fill[n].append(x)
                for k in range(4): fill[3 + k].append(ror(Y4 + k, H1 + k))
                for k in range(6): fill[1 + k].insert(0, sal[k])
                fill[b1] = [("need", [], ["e0w"]), "s_barrier", F(1,0)] + fill[b1]
                fill[b1 + 1] = [dma[0][0], F(1,1)] + fill[b1 + 1]
            for k, (p, xy) in enumerate([(p, xy) for p in (2, 3, 5, 6, 7) for xy in range(2)]): fill[12 + k].append(F(p, xy))
            fill[14].insert(0, ("need", [], ["poll"]))
            if self.merged: fill[9] += [f"s_cmp_ge_i32 s{S_STEP}, s{S_RDY}", f"s_cbranch_scc1 {kvw}", kvb + ":"]
            d0 = O["dma1"] + w + (2 if one == 2 else 0)
            for k in range(O.get("ndma", 4)):
                n = d0 + 4 * k
                fill[n].append((dma[k][1], "dma"))
                if k < 3: fill[n + 1].append(dma[k + 1][0])
            fill[27] += sal[6:8]; fill[28] += sal[8:9]
            for k in range(4): fill[30 + k].append(mul(k))
            fill[34].append(cvt(PQ, AQ)); fill[35].append(cvt(PQ + 1, AQ + 2))
            fill[36].append((f"ds_write_b64 v{QW}, {v(PQ,2)} offset:{L_QM}", "qw"))
        else:
            b1 = O["b1at"]; hc = O["h1chk"]; b1b = O["b1bat"]
            fill[0] += [f"s_add_u32 s{S_STEP}, s{S_STEP}, 1"]
            fill[O["ld1at"]].append(ld1)
            fill[0] += [ror(Y0 + 2, H0 + 2)]
            fill[1] += [sal[0], J(0,0), ror(Y0 + 3, H0 + 3)]
            fill[b1] += [("need", [], ["e0w"]), "s_barrier", F(1,0)]
            fill[b1 + 1] += [F(1,1)]
            for n, x in {5: F(2,0), 6: J(0,1), 7: F(2,1), 8: J(1,0), 9: J(1,1), 10: F(3,0), 11: F(3,1), 15: J(2,0), 16: J(2,1),
                         19: J(3,0), 20: J(3,1), 28: J(4,0), 29: J(4,1), 30: J(5,0), 31: J(5,1)}.items():
                fill[n].append(x)
            for k, n in enumerate((4, 6, 7, 9, 10)): fill[n].insert(0, sal[1 + k])
            fill[hc] = [("need", [v(H1, 4)], [])] + fill[hc] + [c1[0]]
            fill[hc + 1].append(c1[1]); fill[hc + 2].append(c1[2])
            fill[hc + 3] = [f"s_cbranch_vccnz {late}", lateok + ":", f"ds_write_b64 v{L16}, {v(H1,2)} offset:{L_MEM + 4096 + 1024*w}"] + fill[hc + 3]
            fill[hc + 4] = [(f"ds_write_b64 v{L16}, {v(H1+2,2)} offset:{L_MEM + 4096 + 1024*w + 8}", "h1w")] + fill[hc + 4]
            for k in range(4): fill[hc + 4 + k].append(ror(Y4 + k, H1 + k))
            fill[b1b] = [("need", [], ["h1w"]), "s_barrier", F(5,0)] + fill[b1b]
            for k, (p, xy) in enumerate(((5,1), (6,0), (6,1), (7,0), (7,1))): fill[b1b + 1 + k].append(F(p, xy))
            if self.merged:
                fill[12] += [f"s_cmp_ge_i32 s{S_STEP}, s{S_RDY}", f"s_cbranch_scc1 {kvw}", kvb + ":"]
            d0 = O["dma0"] + w * O["dmaw"]
            fill[13].append(dma[0][0])
            for k in range(4):
                n = d0 + O["dmas"] * k
                fill[n].append((dma[k][1], "dma"))
                if k < 3: fill[n + 1].insert(0, dma[k + 1][0])
            adv = 0 if O.get("noadv") else 8192
            fill[32] = sal[6:8] + fill[32]; fill[33].insert(0, sal[8])
            qc = O["qat"]
            fill[qc] += [mul(0), mul(1)]; fill[qc + 1] += [mul(2), mul(3)]; fill[qc + 2] += [cvt(PQ, AQ), cvt(PQ + 1, AQ + 2)]
            fill[qc + 3].insert(0, (f"ds_write_b64 v{QW}, {v(PQ,2)} offset:{L_QM}", "qw"))
        fill[37] += [st("qk")]
        if self.stamps and not O.get("dumplate"): fill[37] += [lambda: self.dump_stamps(PK), st("dump")]
        fill[38] += [zl[0]]
        fill[39] += [("nop", 2), cvt(PK, AK), cvt(PK + 1, AK + 2)]
        fill[40] += [(f"ds_write_b64 v{QW}, {v(PK,2)} offset:{L_KM}", "kw"), zl[1]]
        kexp = f"buffer_store_dwordx2 {v(PK,2)}, v{QW}, {ws()}, s{S_KE} offen{xsc}"
        advs = [f"s_add_u32 s{S_KD}, s{S_KD}, {adv}", f"s_add_u32 s{S_VD}, s{S_VD}, {adv}"]
        if O.get("noadv"): advs = [f"s_xor_b32 s{S_KD}, s{S_KD}, 8192", f"s_xor_b32 s{S_VD}, s{S_VD}, 8192"]
        if one:
            fill[41] += [("need", [], ["qw"]), "s_barrier", trq[0]]
            fill[42] += [advs[0]] + trq[1:3]; fill[43] += [advs[1]] + trq[3:5]; fill[44] += ["s_nop 0"] + trq[5:7]
            fill[45] += [trq[7], zl[2]]
            fill[46] += [("need", [], ["kw"]), "s_barrier", trk[0]]
            fill[47] += [trk[1], kexp, st("B2")]
        else:
            fill[41] += [kexp, zl[2]]
            fill[42] += [("need", [], ["qw"]), "s_barrier", trq[0]]
            fill[43] += [advs[0]] + trq[1:3]
            fill[44] += [advs[1]] + trq[3:5]
            fill[45] += [("need", [], ["kw"]), "s_barrier", trq[5]]
            fill[46] += ["s_nop 0"] + trq[6:8]
            fill[47] += trk[0:2] + [st("B2")]
        for n in O.get("pst", ()): fill[n].insert(0, st(f"n{n}"))
        prog = [sm(*o) + (fill[n],) for n, o in enumerate(seq)]
        SX0, SX1, SM_ = AQ, AK, Q(11)
        TMP, PX, PM, PMM, LA, O0, O1 = Q(8), KX(2), Q(4), KX(3), Q(5), AV, Q(12)
        sq = [(SX0, KX(kk), Q(kk), kk == 0) for kk in range(4)] + [(SM_, KF[kk], Q(kk), kk == 0) for kk in range(4)] \
            + [(SX1, KX(4+kk), Q(kk), kk == 0) for kk in range(4)]
        ex = lambda i, src: f"v_exp_f32 v{TMP+i}, v{src+i}"
        cnds = [f"v_cndmask_b32 v{PMM}, v{PM}, 0, s[{S_HI}:{S_HI+1}]", f"v_cndmask_b32 v{PMM+1}, v{PM+1}, 0, s[{S_HI}:{S_HI+1}]",
                f"v_cndmask_b32 v{PMM+2}, 0, v{PM}, s[{S_HI}:{S_HI+1}]", f"v_cndmask_b32 v{PMM+3}, 0, v{PM+1}, s[{S_HI}:{S_HI+1}]"]
        sf = {n: [] for n in range(12)}
        sf[0] += trk[2:4]; sf[1] += trk[4:6]; sf[2] += trk[6:8]
        sf[3] += [cvt(PV_, AV), cvt(PV_ + 1, AV + 2)]
        sf[4] += [f"buffer_store_dwordx2 {v(PV_,2)}, v{QW}, {ws()}, s{S_KE} offen offset:{2*MHS}{xsc}", zl[3]]
        sf[5] += [("nop", 1), zl[4], ex(0, SX0)] if O["ex5"] else [zl[4]]
        e0 = 1 if O["ex5"] else 0
        if O["ex5"]:
            sf[6] += [ex(1, SX0)]; sf[7] += [ex(2, SX0)]; sf[8] += [ex(3, SX0)]
            sf[9] += [cvt(PX, TMP), cvt(PX + 1, TMP + 2)]; sf[10] += [ex(0, SM_)]
        else:
            for k in range(4): sf[6 + k] += [ex(k, SX0)]
            sf[10] += [cvt(PX, TMP), cvt(PX + 1, TMP + 2)]
        sf[7].insert(0, f"s_add_u32 s{S_KE}, s{S_KE}, {0 if O.get('noexp') else 32*KMB}")
        sf[8].insert(0, f"s_cmp_eq_u32 s{S_STEP}, 63"); sf[9].insert(0, f"s_cbranch_scc1 {done}")
        sf[11] += [ex(k, SM_) for k in range(e0, 4)] + [cvt(PM, TMP), cvt(PM + 1, TMP + 2)] + cnds + [st("S"), ex(0, SX1)]
        prog += [(smf(*x), (v(x[1], 4), v(x[2], 4)), sf[n]) for n, x in enumerate(sq)]
        m16 = lambda d, a_, b_: f"v_mfma_f32_16x16x16_bf16 {v(d,4)}, {v(a_,2)}, {v(b_,2)}, 0"
        pvm = [m16(LA, ONES, PMM), m16(O0, PV_, PMM), m16(O1, PV_, PMM + 2)]
        pvx = [smf(LA, ONES, PX, False), smf(O0, VX, PX, False), smf(O1, VX + 4, PX, False)]
        slow, back = E.label("T_slow"), E.label("T_back")
        OREG = [KX(4), KX(6), Q(2), VX]
        for n, o in enumerate(O_OPS): opreg[o] = OREG[n]
        rdo = [self.rd_op(o, hf, OREG[n]) for n, o in enumerate(O_OPS) for hf in range(2)]
        xtra = []
        if self.merged and w == 2: xtra = [[f"v_mov_b32 v{PM+2}, s{S_STEP}"], [f"buffer_store_dword v{PM+2}, v{XTR}, {ws()}, s{S_FLG} offen sc1"]]
        if self.merged and w == 3: xtra = [[f"s_mov_b32 m0, {L_FLG}"], [f"buffer_load_dword v{XTR}, {ws()}, s{S_KVF} offen sc1 lds"]]
        if O["rearm"] and w < 2: xtra = [[f"v_mov_b32 v{PM+2}, -1"], [f"buffer_store_dword v{PM+2}, v{MP}, {ws()}, s{S_MRE} offen{sc}"]]
        if xtra:
            prog[48 + O["xat"]][2][:0] = xtra[1]; prog[47 + O["xat"]][2][(0 if w == 3 else 99):0] = xtra[0]
        prog += [(pvm[0], (), [ex(1, SX1)]), (pvm[1], (), [ex(2, SX1)]),
                 (pvm[2], (), [ex(3, SX1), cvt(PX + 2, TMP), cvt(PX + 3, TMP + 2), zl[5], "s_nop 0"]),
                 (pvx[0], (), [zl[6], zl[7]]),
                 (pvx[1], (), rdo[0:2]),
                 (pvx[2], (), ["s_nop 1", f"v_rcp_f32 v{LA+1}, v{LA}", f"v_subrev_u32 v{TMP}, s{S_LO}, v{LA}",
                               f"v_cmp_le_u32 vcc, s{S_RNG}, v{TMP}", f"v_mul_f32 v{O0}, v{LA+1}, v{O0}", f"v_mul_f32 v{O0+1}, v{LA+1}, v{O0+1}",
                               f"s_cbranch_vccnz {slow}", back + ":"])]
        for n in O.get("pst2", ()): prog[n][2].insert(0, st(f"n{n}"))
        self.run(prog, first_need=False)
        OWN = Q(14)
        pkm = lambda x: f"v_pk_mul_f32 {v(x,2)}, {v(x,2)}, {v(LA,2)} op_sel:[0,1] op_sel_hi:[1,1]"
        for x in (cvt(OWN, O0), pkm(O0 + 2), pkm(O1), pkm(O1 + 2), cvt(OWN+1, O0+2), cvt(OWN+2, O1), cvt(OWN+3, O1+2)): E(x)
        E.ds(f"ds_write_b128 v{OB}, {v(OWN,4)} offset:{L_OM + 512*w}", tag="ow")
        self.stamp("PV")
        E("s_nop 0")
        OF = [OWN, Q(9), Q(10), Q(0)]
        SEL, RD, TG = Q(12), Q(13), KX(3)
        U0, U1 = AQ, AK
        so = lambda p, t: (f"v_smfmac_f32_16x16x64_bf16 {v(WA[t],4)}, {v(OF[p],4)}, {r(opreg[('o',p,t)],8)}, v{IDX}",
                           (v(OF[p], 4), r(opreg[('o', p, t)], 8)))
        tag = lambda x: f"v_bfi_b32 v{x}, 1, s{S_PH}, v{x}"
        oq = [(0, t) for t in range(4)] + [(p, t) for p in (1, 2, 3) for t in (0, 1)] + [(p, t) for p in (1, 2, 3) for t in (2, 3)]
        if O["fine"]: oq = oq[:4] + [(p, t) for t in range(4) for p in (1, 2, 3)]
        of = {n: [] for n in range(16)}
        nb3 = O["b3at"]
        of[nb3] = [("need", [], ["ow"]), "s_barrier"] + [f"ds_read_b128 {v(OF[p],4)}, v{OB} offset:{L_OM + 512*(p ^ w)}" for p in (1, 2, 3)] + [st("B3")]
        of[3] += [lambda: E.need(v(OF[1], 4))]
        rd2 = rdo[4:6] + rdo[2:4] + rdo[6:8] if O["fine"] else rdo[2:]
        for k, n in enumerate((4, 5, 6, 7, 8, 10) if O["fine"] else range(4, 10)): of[n] += rd2[k:k + 1]
        if w < 2: of[13 if O["fine"] else 10] += [f"ds_read_b128 {v(SEL,4)}, v{L16} offset:{L_SEL}"]
        u0v = [cvt(U0, WA[0]), cvt(U0+1, WA[0]+2), tag(U0), cvt(U0+2, WA[1]), cvt(U0+3, WA[1]+2)]
        u0s = [f"buffer_store_dwordx4 {v(U0,4)}, v{PS}, {ws()}, s{S_PST0} offen{sc}", st("u0")]
        if O["fine"]:
            uv = lambda t: [cvt(U0 + 2*t, WA[t]), cvt(U0 + 2*t + 1, WA[t] + 2), tag(U0 + 2*t)]
            us = lambda t: f"buffer_store_dwordx2 {v(U0 + 2*t, 2)}, v{PS}, {ws()}, s{S_PST0 + (t >> 1)} offen offset:{64*(t & 1)}{sc}"
            for t in range(3):
                if O["fine"] == 1 or t == 0:
                    of[8 + 3*t] += [("nop", 2)] + uv(t); of[9 + 3*t] += [us(t)]
                else:
                    of[8 + 3*t] += [("nop", 2)] + uv(t)[:1]; of[9 + 3*t] += uv(t)[1:]
                    if t == 1: of[13].insert(0, us(t))
                    else: of[15] += [us(t)]
            of[9].append(st("u0"))
            of[15] += [("nop", 8)] + uv(3) + [us(3), st("Wo")]
        elif O["u0at"] == 0:
            of[11] += u0v; of[12] += u0s
        elif O["u0at"] == 1:
            of[10] += [("nop", 2)] + u0v[:1]; of[11] += u0v[1:3]; of[12] += u0v[3:]; of[13] += u0s
        else:
            of[10] += [("nop", 2)] + u0v[:1]
            rest = u0v[1:]; per = {0: [4], 1: [2, 2], 2: [1, 1, 2], 3: [1, 1, 1, 1]}[w]
            for k, c in enumerate(per):
                of[11 + k] += rest[:c]; rest = rest[c:]
            of[12 + w][:0] = u0s
        if not O["fine"]: of[15] += [("nop", 5), cvt(U1, WA[2]), cvt(U1+1, WA[2]+2), tag(U1), cvt(U1+2, WA[3]), cvt(U1+3, WA[3]+2),
                   f"buffer_store_dwordx4 {v(U1,4)}, v{PS}, {ws()}, s{S_PST1} offen{sc}", st("Wo")]
        for n in O.get("pst3", ()): of[n].insert(0, st(f"o{n}"))
        self.run([so(p, t) + (of[n],) for n, (p, t) in enumerate(oq)])
        self.est = estimate(E.lines[body0:])
        if self.stamps and O.get("dumplate"): self.dump_stamps(KX(2)); self.stamp("dump")
        pre = ["s_waitcnt vmcnt(0) lgkmcnt(0)"] + E.lines[body0:]
        def gather(regs):
            return [f"buffer_load_dwordx4 {v(x,4)}, v{L16}, {ws()}, s{S_IN0} offen offset:{i*1024} sc1" for i, x in enumerate(regs)]
        G1 = [KX(4 + i) for i in range(4)]
        def reduce_(regs, after):
            for i, x in enumerate(regs):
                E(f"s_waitcnt vmcnt({3 - i + after})")
                E(smf(RD, SEL, x, i == 0))
                if i == 0: E(f"v_xor_b32 v{TG}, s{S_PH}, v{x}")
                else: E(f"v_bitop3_b32 v{TG}, v{TG}, v{x}, s{S_PH} bitop3:0xf6")
                if O["fine"]: E(f"v_bitop3_b32 v{TG}, v{TG}, v{x+2}, s{S_PH} bitop3:0xf6")
            E(f"v_and_b32 v{TG}, 1, v{TG}\n v_cmp_ne_u32 vcc, 0, v{TG}")
        def nops(n):
            for k in range(0, n, 16): E(f"s_nop {min(16, n - k) - 1}")
        errs = []
        pl = self.p_list()
        pdef = pl[12 - O["pdefer"]:]; pl = pl[:12 - O["pdefer"]]
        rds = [f"ds_read_b128 {v(VX + 4*j, 4)}, v{L16} offset:{L_VX + 4096*j + 1024*w}" for j in range(2)] \
            + [f"ds_read_b128 {v(KX(f), 4)}, v{L16} offset:{L_KX + 1024*f}" for f in range(8)]
        l0 = len(E.lines)
        p1, p1re, p1ok = E.label("T_p1"), E.label("T_p1re"), E.label("T_p1ok")
        nob = O["split"]
        if nob: assert O["rearm"]
        nst_ = 4 if O["fine"] else 2
        def finish():
            if O["line"] == 2:
                for i in range(4):
                    E(f"v_add_f32_dpp v{TG+2+(i&1)}, v{RD+i}, v{RD+i} row_ror:8 row_mask:0xf bank_mask:{'0xc' if i > 1 else '0x3'}")
                E(cvt(TG, TG + 2))
            else:
                for i in range(2):
                    E(f"v_add_f32_dpp v{RD+i}, v{RD+i}, v{RD+i} row_ror:8 row_mask:0xf bank_mask:0xf")
                E(cvt(TG, RD))
            E(f"v_min_u32 v{TG}, -2, v{TG}")
            E(f"buffer_store_dword v{TG}, v{MP}, {ws()}, s{S_PUB} offen{sc}")
            if not O["rearm"]: E(f"buffer_store_dword v{TG+1}, v{MP}, {ws()}, s{S_MRE} offen{sc}")
            if self.stamps: E(f"s_mov_b32 s94, s{S_CNT}")
        if nob: E(f"s_waitcnt vmcnt({nst_})\n s_barrier")
        npoll = NS
        if w < 2:
            npre = O["w1pre"] if w else O["h1pre"]
            ack = O["w1ack"] if w else O["h1ack"]
            kvp = O["kvpre"] if isinstance(O["kvpre"], int) else O["kvpre"][w]
            for x in pl[:npre]: E(x)
            if npre >= 2: self.zero_acc()
            E(f"s_mov_b32 s{S_CNT}, 0")
            if not O["rearm"]: E(f"v_mov_b32 v{TG+1}, -1")
            if self.merged and kvp: self.kv_refresh()
            if ack is not None: E(f"s_waitcnt vmcnt({ack})")
            nops(O["w1nop"] if w else O["h1nop"])
            for x in gather(G1): E(x)
            self.stamp("g1")
            for x in pl[npre:]: E(x)
            if npre < 2: self.zero_acc()
            if self.merged and not kvp: self.kv_refresh()
            E(f"s_waitcnt lgkmcnt({min(15, len(pl))})")
            if nob and w == 1:
                for x in rds[:5]: E(x)
                rds = rds[5:]
            reduce_(G1, 0)
            E(f"s_cbranch_vccnz {p1re}")
            l2 = len(E.lines)
            E(p1ok + ":")
            if nob and w == 1:
                E(ld0); npoll = NS - 2
            E(f"s_nop {(2 if O['fine'] else 3) - (1 if nob and w == 1 else 0)}")
            finish()
        else:
            for x in pl: E(x)
            self.zero_acc()
            if self.merged: self.kv_refresh()
            if nob:
                E(f"s_waitcnt vmcnt({O['w2ack']})")
                E(f"buffer_load_dword v{Y0}, off, {ws()}, s{S_MEM0} sc1")
                self.stamp("g1")
                E("s_waitcnt vmcnt(0)")
            else:
                self.stamp("g1")
                E(f"s_waitcnt vmcnt({nst_})")
        self.stamp("hop1")
        if not nob: E("s_barrier")
        cuts = list(O["h2cut"] if not nob or w == 0 else O["w1cut"] if w == 1 else O["w2cut"]) + [10]
        rds = rds + pdef
        if one == 2:
            pos = 0
            for c, hf in PSCH:
                for x in rds[pos:c]: E(x)
                pos = c
                E(ld1 if hf else ld0)
            for x in rds[pos:]: E(x)
        else:
            for x in rds[:cuts[0]]: E(x)
            for k in range(npoll):
                E(ld0)
                for x in rds[cuts[k]:(cuts[k + 1] if k + 1 < npoll else 99)]: E(x)
        E(f"s_mov_b32 s{S_CNT}, 0")
        self.stamp("top")
        E(f"s_branch {top}")
        l5 = len(E.lines)
        if O["align"]: self.alstat = align.align(E.lines, lal, l5, O["align"])
        Ls = E.lines
        errs += hazard.check(pre + Ls[l0:l5] + pre, f"team w{w}")
        if w < 2:
            E(p1re + ":")
            if O["h1mask"]: E("s_mov_b64 exec, vcc")
            for x in gather(G1): E(x)
            if O["h1mask"]: E("s_mov_b64 exec, -1")
            E(cntchk)
            reduce_(G1, 0)
            E(f"s_cbranch_vccnz {p1re}\n s_branch {p1ok}")
            errs += hazard.check(pre + Ls[l0:l2] + Ls[l5:] + Ls[l2:l5] + pre, f"team w{w} retry")
        E.lg = []; E.vm = []
        if self.merged:
            E(kvw + ":")
            self.wait_kv(fail)
            E(f"s_branch {kvb}")
        if one == 2:
            E(late + ":")
            E("s_mov_b64 exec, vcc\n" + ld1 + "\n s_mov_b64 exec, -1"); E(cntchk); E(f"s_waitcnt vmcnt({O['lated']})")
            for x in c1: E(x)
            if self.stamps: E(f"s_add_u32 s95, s95, 0x100")
            E(f"s_cbranch_vccnz {late}\n s_branch {lateok}")
        if not one:
            E(late + ":")
            E(ld1); E(cntchk); E("s_waitcnt vmcnt(0)")
            for x in c1: E(x)
            if self.stamps: E(f"s_add_u32 s95, s95, 0x100")
            E(f"s_cbranch_vccnz {late}\n s_branch {lateok}")
        s0 = len(E.lines)
        E(slow + ":")
        M0, M1 = TMP, TMP + 1
        E("s_nop 7")
        E(f"v_max3_f32 v{M0}, v{SX0}, v{SX0+1}, v{SX0+2}\n v_max3_f32 v{M0}, v{M0}, v{SX0+3}, v{SX1}")
        E(f"v_max3_f32 v{M0}, v{M0}, v{SX1+1}, v{SX1+2}\n v_max3_f32 v{M0}, v{M0}, v{SX1+3}, v{SM_}")
        E(f"v_max3_f32 v{M0}, v{M0}, v{SM_+1}, v{SM_+2}\n v_max_f32 v{M0}, v{M0}, v{SM_+3}")
        for sw in ("32", "16"):
            E(f"v_mov_b32 v{M1}, v{M0}\n s_nop 1\n v_permlane{sw}_swap_b32 v{M0}, v{M1}\n s_nop 1\n v_max_f32 v{M0}, v{M0}, v{M1}")
        for base in (SX0, SX1, SM_):
            for i in range(4): E(f"v_sub_f32 v{base+i}, v{base+i}, v{M0}")
            for i in range(4): E(f"v_exp_f32 v{base+i}, v{base+i}")
        E("s_nop 0")
        E(cvt(PX, SX0)); E(cvt(PX+1, SX0+2)); E(cvt(PX+2, SX1)); E(cvt(PX+3, SX1+2)); E(cvt(PM, SM_)); E(cvt(PM+1, SM_+2))
        for x in cnds: E(x)
        E("s_nop 1")
        for x in pvm + pvx: E(x)
        E("s_nop 7\n s_nop 1")
        E(f"v_rcp_f32 v{LA+1}, v{LA}\n s_nop 0\n v_mul_f32 v{O0}, v{LA+1}, v{O0}\n v_mul_f32 v{O0+1}, v{LA+1}, v{O0+1}\n s_branch {back}")
        errs += hazard.check(E.lines[s0:], "team slow")
        return errs

    def dump_stamps(self, t=Q(12) + 2):
        E = self.E
        E("s_memrealtime s[88:89]\n s_memtime s[90:91]\n s_waitcnt lgkmcnt(0)")
        E.lg = []
        E(f"s_lshl_b32 s{S_T0}, s{S_H}, 2\n s_add_u32 s{S_T0}, s{S_T0}, s{S_W}\n s_lshl_b32 s{S_T0}, s{S_T0}, 6\n s_add_u32 s{S_T0}, s{S_T0}, s{S_STEP}")
        E(f"s_lshl_b32 s{S_T0}, s{S_T0}, 7\n s_add_u32 s{S_T0}, s{S_T0}, {STAMP}")
        E(f"v_mov_b32 v{t}, 0")
        for i in range(16):
            E(f"v_writelane_b32 v{t}, s{S_ST + 2*i}, {i}")
        E(f"v_writelane_b32 v{t}, s94, 16\n v_writelane_b32 v{t}, s95, 17")
        E(f"v_lshrrev_b32 v{t+1}, 2, v{L16}\n s_mov_b64 exec, 0xffffffff")
        E(f"buffer_store_dword v{t}, v{t+1}, {ws()}, s{S_T0} offen\n s_mov_b64 exec, -1\n s_nop 3")


def standalone(stamps=False, force_mode=None, **opt):
    E = Em()
    E("; @launch grid=(256,1,1) block=(256,1,1) lds=163840")
    E('.amdgcn_target "amdgcn-amd-amdhsa--gfx950"')
    E(kernel_header("team_kernel"))
    T = Team(E, stamps, **opt)
    E("s_cmp_ge_u32 s2, 256\n s_cbranch_scc1 T_exit\n s_and_b32 s3, s2, 7\n s_cbranch_scc1 T_exit")
    E(f"s_lshr_b32 s{S_H}, s2, 3")
    E("s_memrealtime s[100:101]\n s_waitcnt lgkmcnt(0)\n s_mov_b32 s92, s100\n s_mov_b32 s94, 0")
    l0 = len(E.lines)
    T.startup("T_fail")
    errs = hazard.check(E.lines[l0:], "team startup")
    E("s_memrealtime s[100:101]\n s_waitcnt lgkmcnt(0)\n s_mov_b32 s96, s100\n s_memtime s[100:101]\n s_waitcnt lgkmcnt(0)\n s_mov_b32 s98, s100")
    if force_mode is not None:
        E(f"s_mov_b32 s{S_MODE}, {force_mode}")
    E(f"s_cmp_lg_u32 s{S_MODE}, 0\n s_cbranch_scc1 T_global")
    errs += T.loops(0, "T_done", "T_fail")
    E("T_global:")
    errs += T.loops(1, "T_done", "T_fail")
    E("T_fail:")
    E(f"s_mov_b32 s{S_T0}, 1\n s_atomic_add s{S_T0}, s[{S_DBG}:{S_DBG+1}], 12 glc\n s_waitcnt lgkmcnt(0)")
    E("T_done:")
    E("s_memrealtime s[100:101]\n s_waitcnt lgkmcnt(0)\n s_mov_b32 s97, s100\n s_memtime s[100:101]\n s_waitcnt lgkmcnt(0)")
    E(f"s_sub_u32 s98, s100, s98\n v_mov_b32 v40, s92\n v_mov_b32 v41, s96\n v_mov_b32 v42, s97\n v_mov_b32 v43, s98")
    E(f"s_lshl_b32 s{S_T0}, s{S_H}, 4\n s_add_u32 s{S_T0}, s{S_T0}, {STAMP + MB}\n v_mov_b32 v44, 0")
    E(f"buffer_store_dwordx4 v[40:43], v44, {ws()}, s{S_T0} offen")
    E("T_exit:\n s_endpgm")
    E(kernel_desc("team_kernel"))
    txt = E.text()
    standalone.est = T.est
    if opt.get("norty") or opt.get("nomem"):
        import re
        txt = re.sub(r"s_cbranch_vccnz T_(retry|late|p1re|slow)_\d+", "s_nop 0", txt)
    if opt.get("nomem"):
        i = txt.index("T_retry_")
        pat = {1: r"buffer_(load|store)_dword(x4)? v\S+, v\d+, s\[4:7\], s(20|21|22|24|25|26|35) offen.*",
               2: r"buffer_(load|store)_dword(x4)? v\S+, v\d+, s\[4:7\], s(24|25|26|35) offen.*",
               3: r"buffer_(load|store)_dword(x4)? v\S+, v\d+, s\[4:7\], s(20|21|22) offen.*"}[opt["nomem"]]
        txt = txt[:i] + re.sub(pat, "s_mov_b32 s93, 0x12345", txt[i:])
    return txt, errs, T.names

if __name__ == "__main__":
    for st in (False, True):
        txt, errs, names = standalone(st)
        print(len(errs), "hazards", names)
        if not st:
            e = standalone.est; print("est", e[-1], "slot lengths", [b - a for a, b in zip(e, e[1:])])
    open("team.s", "w").write(txt)
```

```python
import sys
from emit import *
from layout import *
import gemm, attn, outp, team
from gemm import G_WS, G_W, G_N, G_DONE, G_FLAG, G_T0, G_T1, G_T2, G_T3, V_LANE
NAME = "gated_mix__compressed_kv_cla__memory_aug_recurrent_mem_tr__prompt"
KN = NAME + "_kernel"
INIT_OFF = 128
WAIT_MAX = 1 << 18
R_KIND, R_T0, R_DT, R_N, R_NATT, R_QB0, R_QT0, R_QB1, R_QT1 = range(48, 57)
R_H, R_ROLE, R_C, R_GB, R_LVL, R_QB, R_QT, R_CNT = range(64, 72)
R_WSP, R_DBG = 72, 74
R_A, R_B, R_D, R_E = 76, 77, 78, 79

SCHEDS = {
 0: [(1, 63, -1, 18, [7]), (1, 45, -1, 22, [6]), (2, 0, 1, 28, [5]), (0, 63, -1, 25, [4, 0]),
     (1, 23, -1, 24, [3, 1]), (0, 38, -1, 39, [2]), (2, 28, 1, 36, [])],
 1: [(1, 63, -1, 20, [7]), (1, 43, -1, 24, [6]), (2, 0, 1, 30, [5]), (2, 30, 1, 34, [4]),
     (0, 0, 1, 32, [3, 0]), (0, 63, -1, 32, [2, 1]), (1, 19, -1, 20, [])],
 2: [(1, 63, -1, 24, [7]), (1, 39, -1, 28, [6]), (2, 0, 1, 30, [5]), (2, 30, 1, 34, [4]),
     (0, 0, 1, 32, [3, 0]), (0, 63, -1, 32, [2, 1]), (1, 11, -1, 12, [])],
 3: [(1, 63, -1, 23, [7]), (1, 40, -1, 27, [6]), (2, 0, 1, 30, [5]), (2, 30, 1, 34, [4]),
     (0, 0, 1, 32, [3, 0]), (0, 63, -1, 32, [2, 1]), (1, 13, -1, 14, [])],
}
FOL0 = 16

def need_tiles(ent, lo, hi):
    _, t0, dt, n, _ = ent
    idx = [i for i in range(n) if lo <= t0 + dt*i <= hi]
    return max(idx) + 1 if idx else 0

def build(diag=False, team_opt=None, sched=3, stamps=False, pf=1, wwin=32, bpf=((3, 0, 4), (1, 2, 4), (2, 2, 4), (0, 2, 4)), opf=1):
    S = SCHEDS[sched] if isinstance(sched, int) else sched
    E = Em()
    E.lines.append("; @launch grid=(256,1,1) block=(256,1,1) lds=163840")
    E('.amdgcn_target "amdgcn-amd-amdhsa--gfx950"')
    E(kernel_header(KN))
    errs = []
    wsd = s(G_WS, 4)
    kv_roles = [r_ for r_, x in enumerate(S) if x[0] == 1]
    q_roles = [r_ for r_, x in enumerate(S) if x[0] == 0]
    b_roles = [r_ for r_, x in enumerate(S) if x[0] == 2]
    E("s_cmp_ge_u32 s2, 256\n s_cbranch_scc1 M_exit")
    if diag: tmark(E, 0); E("s_mov_b32 s97, s2")
    E(f"s_load_dwordx4 s[{R_WSP}:{R_WSP+3}], s[0:1], {ARG['dbg']}")
    gemm.lane_setup(E)
    E(f"s_and_b32 s{R_A}, s2, 7\n s_lshr_b32 s{R_B}, s2, 3\n s_sub_u32 s{R_C}, s{R_A}, 1\n s_and_b32 s{R_C}, s{R_C}, 7\n s_lshl_b32 s{R_C}, s{R_C}, 5\n s_add_u32 s{R_C}, s{R_C}, s{R_B}")
    E(f"s_lshl_b32 s{G_FLAG}, s{R_C}, 7\n s_add_u32 s{G_FLAG}, s{G_FLAG}, {FLAGS}\n s_waitcnt lgkmcnt(0)")
    E(f"s_mov_b64 s[{G_WS}:{G_WS+1}], s[{R_WSP+2}:{R_WSP+3}]\n s_mov_b64 s[{R_DBG}:{R_DBG+1}], s[{R_WSP}:{R_WSP+1}]\n s_mov_b64 s[{R_WSP}:{R_WSP+1}], s[{G_WS}:{G_WS+1}]")
    E(f"s_and_b32 s{G_WS+1}, s{G_WS+1}, 0xffff\n s_mov_b32 s{G_WS+2}, {WS_BYTES}\n s_mov_b32 s{G_WS+3}, 0x20000")
    E(f"s_cmp_eq_u32 s{R_A}, 0\n s_cbranch_scc1 M_team")
    E(f"s_mul_i32 s{R_H}, s{R_C}, 9363\n s_lshr_b32 s{R_H}, s{R_H}, 16\n s_mul_i32 s{R_GB}, s{R_H}, 7\n s_sub_u32 s{R_ROLE}, s{R_C}, s{R_GB}")
    E(f"s_lshl_b32 s{R_GB}, s{R_GB}, 7\n s_add_u32 s{R_GB}, s{R_GB}, {FLAGS}")
    E(f"s_getpc_b64 s[{R_A}:{R_A+1}]\nM_pc:\n s_add_u32 s{R_A}, s{R_A}, M_table-M_pc\n s_addc_u32 s{R_B}, s{R_B}, 0\n s_lshl_b32 s{G_T0}, s{R_ROLE}, 6")
    E(f"s_load_dwordx16 s[48:63], s[{R_A}:{R_A+1}], s{G_T0}\n s_waitcnt lgkmcnt(0)\n s_mov_b32 s{G_N}, s{R_N}")
    if bpf:
        E(f"s_cmp_lg_u32 s{R_KIND}, 1\n s_cbranch_scc1 M_nobpf")
        E(f"s_load_dwordx8 s[36:43], s[0:1], {ARG['bwq']}\n s_mul_i32 s{R_A}, s{R_H}, 3\n s_add_u32 s{R_A}, s{R_A}, s57")
        E(f"v_lshlrev_b32 v4, 7, v0\n s_mov_b32 s10, {4*MB}\n s_mov_b32 s11, 0x20000\n s_waitcnt lgkmcnt(0)")
        for k, (ptr, lo, hi) in enumerate(bpf):
            per = -(-(hi - lo) * 8192 // 96)
            E(f"s_mov_b32 s8, s{36 + 2*ptr}\n s_and_b32 s9, s{37 + 2*ptr}, 0xffff\n s_mul_i32 s{R_B}, s{R_A}, {per*128}\n s_add_u32 s{R_B}, s{R_B}, {lo*MB}")
            for j in range(0, per, 256):
                E(f"v_min_u32 v5, {(min(256, per - j) - 1)*128}, v4\n v_add_u32 v5, s{R_B}, v5\n s_add_u32 s{R_B}, s{R_B}, {256*128}")
                E(f"buffer_load_dword v6, v5, s[8:11], 0 offen")
        E("s_waitcnt vmcnt(0)")
        E("M_nobpf:")
    def init():
        E(f"s_cmp_lg_u32 s{G_W}, 3\n s_cbranch_scc1 M_noinit")
        E(f"s_mov_b32 s{R_E}, 0\n s_atomic_swap s{R_E}, s[{R_WSP}:{R_WSP+1}], s{G_FLAG} glc\n s_waitcnt lgkmcnt(0)")
        E(f"s_mov_b32 s{R_E}, 1\n s_atomic_add s{R_E}, s[{R_DBG}:{R_DBG+1}], {INIT_OFF}")
        E("M_noinit:")
        if pf:
            E(f"s_mul_i32 s{R_A}, s{R_H}, 3\n s_add_u32 s{R_A}, s{R_A}, s57\n s_mul_i32 s{R_A}, s{R_A}, {192*128}")
            E(f"v_lshlrev_b32 v4, 7, v0\n v_add_u32 v4, s{R_A}, v4")
            E.vmem(f"buffer_load_dword v5, v4, {s(gemm.G_ASRD,4)}, 0 offen")
    errs += gemm.proj_task(E, R_KIND, R_H, R_T0, R_DT, " sc1", True, 6 if diag == 2 else False, init, wwin)
    if diag: tmark(E, 1)

    def bound():
        return f"s_add_u32 s{R_CNT}, s{R_CNT}, 1\n s_cmp_gt_u32 s{R_CNT}, {WAIT_MAX}\n s_cbranch_scc1 M_exit"
    def swait(base, off, thr):
        lp, go = E.label("M_sw"), E.label("M_sg")
        E(f"s_mov_b32 s{R_CNT}, 0\n s_branch {go}")
        E(lp + ":")
        E("s_sleep 8")
        E(bound())
        E(go + ":")
        E(f"s_mov_b32 s{R_E}, 0\n s_atomic_or s{R_E}, s[{base}:{base+1}], {off} glc\n s_waitcnt lgkmcnt(0)\n s_cmp_lt_u32 s{R_E}, {thr}\n s_cbranch_scc1 {lp}")
    def vwait(va, vt, vx):
        lp, go = E.label("M_vw"), E.label("M_vg")
        E(f"s_mov_b32 s{R_CNT}, 0\n s_branch {go}")
        E(lp + ":")
        E("s_sleep 2")
        E(bound())
        E(go + ":")
        E(f"buffer_load_dword v{vx}, v{va}, {wsd}, 0 offen sc1\n s_waitcnt vmcnt(0)\n v_cmp_lt_u32 vcc, v{vx}, v{vt}\n s_cbranch_vccnz {lp}")
        E.vm = []
    def publish(val):
        E(f"s_waitcnt vmcnt(0)\n s_barrier\n s_mov_b32 s{G_DONE}, {val}")
        gemm.publish(E)
    swait(R_DBG, INIT_OFF, 256)
    E(f"s_cmp_eq_u32 s{R_ROLE}, 6\n s_cbranch_scc1 M_follow")
    def wait_q():
        for i, r_ in enumerate(q_roles):
            E(f"s_bfe_u32 s{R_D}, s{R_QT}, {hex(0x80000 + 8*i)}\n s_add_u32 s{R_A}, s{R_GB}, {128*r_}")
            swait(R_WSP, f"s{R_A}", f"s{R_D}")
    def wait_kv():
        lp, ok = E.label("M_kv"), E.label("M_kvok")
        E(lp + ":")
        E(f"s_cmp_ge_u32 s{attn.A_KOFF}, s{attn.A_RDY}\n s_cbranch_scc1 {ok}")
        for i, r_ in enumerate(kv_roles):
            first = i == 0
            op = "s_mov_b32" if first else "s_cmov_b32"
            if not first: E(f"s_cmp_eq_u32 s{R_LVL}, {i}")
            E(f"{op} s{R_A}, {128*r_}\n {op} s{R_D}, {S[r_][3]}\n {op} s{R_B}, {(S[r_][1] - S[r_][3] + 1) * 8192}")
        E(f"s_add_u32 s{R_A}, s{R_A}, s{R_GB}")
        swait(R_WSP, f"s{R_A}", f"s{R_D}")
        E(f"s_add_u32 s{attn.A_RDY}, s{R_B}, s{attn.A_KMIN}\n s_add_u32 s{R_LVL}, s{R_LVL}, 1\n s_branch {lp}")
        E(ok + ":")
    E(f"s_mov_b32 s{R_LVL}, 0\n s_mov_b32 s{attn.A_RDY}, -1\n s_mov_b32 s{R_QB}, s{R_QB0}\n s_mov_b32 s{R_QT}, s{R_QT0}")
    E("M_att:")
    errs += attn.attn_task(E, R_H, R_QB, " sc1", " sc1", False, wait_q, wait_kv)
    E(f"s_mov_b32 s{R_QB}, s{R_QB1}\n s_mov_b32 s{R_QT}, s{R_QT1}\n s_sub_u32 s{R_NATT}, s{R_NATT}, 1\n s_cmp_lg_u32 s{R_NATT}, 0\n s_cbranch_scc1 M_att")
    publish(0x200)
    if diag: tmark(E, 2)
    HG, HALF, TJ, DT = 48, 49, 50, 51
    E(f"s_lshr_b32 s{HG}, s{R_H}, 2\n s_bfe_u32 s{HALF}, s{R_H}, 0x10001\n s_and_b32 s{TJ}, s{R_H}, 1\n s_mul_i32 s{TJ}, s{TJ}, 6\n s_add_u32 s{TJ}, s{TJ}, s{R_ROLE}")
    E(f"s_mov_b32 s{DT}, 12\n s_cmp_lt_u32 s{TJ}, 4\n s_cselect_b32 s{G_N}, 6, 5")
    def wait_ctx():
        E(f"v_min_u32 v4, 27, v{V_LANE}\n v_mul_u32_u24 v5, 37, v4\n v_lshrrev_b32 v5, 8, v5\n v_mul_u32_u24 v5, 7, v5\n v_sub_u32 v5, v4, v5")
        E(f"v_mov_b32 v6, 0x200\n v_cmp_ne_u32 vcc, 6, v5\n s_mul_i32 s{R_A}, s{HG}, {28*128}\n s_add_u32 s{R_A}, s{R_A}, {FLAGS}\n v_cndmask_b32 v5, 0, v6, vcc")
        E(f"v_lshl_add_u32 v4, v4, 7, s{R_A}")
        vwait(4, 5, 6)
        if diag: tmark(E, 3)
    errs += outp.oproj_task(E, HG, HALF, TJ, DT, " sc1", " sc1", False, wait_ctx)
    publish(0x300)
    if diag: tmark(E, 4)
    ZT, ZQ, ZI = 48, 49, 50
    E(f"s_mul_i32 s{ZI}, s{R_H}, 6\n s_add_u32 s{ZI}, s{ZI}, s{R_ROLE}")
    E(f"s_mul_i32 s{R_A}, s{ZI}, 21846\n s_lshr_b32 s{R_A}, s{R_A}, 16\n s_mul_i32 s{R_B}, s{R_A}, 3\n s_add_u32 s51, s{ZI}, 64")
    E(f"s_cmp_eq_u32 s{R_B}, s{ZI}\n s_cselect_b32 s{ZI}, s{R_A}, s51")
    E("M_fin:")
    E(f"s_lshr_b32 s{ZT}, s{ZI}, 2\n s_and_b32 s{ZQ}, s{ZI}, 3")
    def wait_part(b):
        def f():
            if b == 0:
                E(f"s_mul_i32 s{R_A}, s{ZT}, 43\n s_lshr_b32 s{R_A}, s{R_A}, 9\n s_mul_i32 s{R_A}, s{R_A}, 12\n s_sub_u32 s{R_A}, s{ZT}, s{R_A}")
                E(f"s_cmp_ge_u32 s{R_A}, 6\n s_addc_u32 s{R_A}, s{R_A}, 0\n s_and_b32 s{R_B}, s{ZQ}, 2\n s_mul_i32 s{R_B}, s{R_B}, 7\n s_add_u32 s{R_A}, s{R_A}, s{R_B}")
                E("v_mov_b32 v193, 0x300")
            else:
                E(f"s_and_b32 s{R_A}, s{ZT}, 1\n s_lshl_b32 s{R_A}, s{R_A}, 1\n s_lshr_b32 s{R_B}, s{ZQ}, 1\n s_add_u32 s{R_A}, s{R_A}, s{R_B}\n s_mul_i32 s{R_A}, s{R_A}, 7\n s_add_u32 s{R_A}, s{R_A}, 6")
                E(f"s_lshr_b32 s{R_B}, s{ZT}, 1\n s_add_u32 s{R_B}, s{R_B}, 0x201\n v_mov_b32 v193, s{R_B}")
            E(f"s_lshl_b32 s{R_A}, s{R_A}, 7\n s_add_u32 s{R_A}, s{R_A}, {FLAGS}\n v_and_b32 v192, 7, v{V_LANE}\n v_mul_u32_u24 v192, {28*128}, v192\n v_add_u32 v192, s{R_A}, v192")
            vwait(192, 193, 194)
            if diag == 1: tmark(E, 5 + b)
        return f
    errs += outp.final_task(E, ZT, ZQ, " sc1", wait_part(0), wait_part(1))
    E(f"s_cmp_lt_u32 s{ZI}, 64\n s_mov_b32 s{ZI}, s51\n s_cbranch_scc1 M_fin")
    E("s_branch M_done")
    E("M_follow:")
    E(f"s_lshr_b32 s{HG}, s{R_H}, 2\n s_and_b32 s{HALF}, s{R_H}, 1\n s_bfe_u32 s{TJ}, s{R_H}, 0x10001\n s_mov_b32 s{DT}, 2\n s_mov_b32 s{G_N}, 32")
    if opf:
        E(f"s_load_dwordx2 s[8:9], s[0:1], {ARG['wo']}\n s_lshl_b32 s{R_B}, s{R_H}, 17\n v_lshlrev_b32 v4, 7, v0\n s_waitcnt lgkmcnt(0)")
        E(f"s_and_b32 s9, s9, 0xffff\n s_mov_b32 s10, {4*MB}\n s_mov_b32 s11, 0x20000")
        for j in range(4):
            E(f"buffer_load_dword v250, v4, s[8:11], s{R_B} offen\n s_add_u32 s{R_B}, s{R_B}, 32768")
    FS, FR = 52, 53
    def wait_x(first):
        sk = E.label("M_xok")
        if not first: E(f"s_cmp_lg_u32 s{G_N}, {32 - FOL0//2}\n s_cbranch_scc1 {sk}")
        E(f"s_lshl_b32 s{R_B}, s{HG}, 2\n s_add_u32 s{R_B}, s{R_B}, s{G_W}\n s_mul_i32 s{R_D}, s{R_B}, {7*128}")
        for r_ in q_roles + b_roles:
            thr = need_tiles(S[r_], 0, FOL0 - 1 if first else 63)
            if thr:
                E(f"s_add_u32 s{R_A}, s{R_D}, {FLAGS + 128*r_}")
                swait(R_WSP, f"s{R_A}", thr)
        E(sk + ":")
        if first:
            E(f"s_lshl_b32 s{R_B}, s{R_B}, 7\n s_add_u32 s54, s{R_B}, {FLAGS + 224*128}\n s_add_u32 s{FS}, s{TJ}, 1\n s_mov_b32 s{FR}, 0\n s_mov_b32 s{G_DONE}, 0x200")
            if diag: tmark(E, 2)
    def wait_m():
        vm = list(E.vm)
        E(f"v_mov_b32 v16, s54\n v_mov_b32 v17, s{FS}")
        vwait(16, 17, 23)
        E.vm = vm
    def mid():
        E(f"v_readfirstlane_b32 s{FR}, v23")
        gemm.publish(E, 16)
        E(f"s_add_u32 s{G_DONE}, s{G_DONE}, 1\n s_add_u32 s{FS}, s{FS}, 2\n s_cmp_ge_u32 s{FR}, s{FS}\n s_cselect_b32 s{outp.F_PRE}, 1, 0")
        E(f"buffer_load_dword v23, off, {wsd}, s54 sc1")
    errs += outp.follower_task(E, HG, HALF, TJ, DT, " sc1", " sc1", wait_x, wait_m, mid, diag == 2)
    gemm.publish(E)
    E("s_branch M_done")
    E("M_team:")
    T = team.Team(E, stamps, **(team_opt or {}))
    T.diag = diag
    T.merged = dict(init_off=INIT_OFF, r1=b_roles[0], r2=b_roles[1], n1=S[b_roles[0]][3])
    E(f"s_mov_b32 s{team.S_H}, s{R_B}")
    l0 = len(E.lines)
    T.startup("M_exit")
    errs += hazard.check(E.lines[l0:], "team startup")
    if diag: tmark(E, 1)
    E(f"s_cmp_lg_u32 s{team.S_MODE}, 0\n s_cbranch_scc1 M_global")
    errs += T.loops(0, "M_tdone", "M_exit", " sc1")
    E("M_global:")
    errs += T.loops(1, "M_tdone", "M_exit", " sc1")
    E("M_tdone:")
    E(f"v_mov_b32 v16, 64\n v_or_b32 v17, s{team.S_W}, v{team.L16}\n v_min_u32 v17, 1, v17\n v_lshlrev_b32 v17, 30, v17\n s_waitcnt vmcnt(0)\n s_barrier")
    E(f"buffer_store_dword v16, v17, {wsd}, s{team.S_FLG} offen sc1")
    E("M_done:")
    if diag: tmark(E, 7); tdump(E, G_WS, STAMP, 97)
    E("M_exit:\n s_endpgm")
    E(".p2align 6\n.type M_table,@object\nM_table:")
    for ri, (kind, t0, dt, n, att) in enumerate(S):
        pfi = len([1 for x in S[:ri] if (x[0] == 1) == (kind == 1)]) % 3
        qthr = lambda qb: sum(need_tiles(S[r_], 8*qb, 8*qb + 7) << (8*i) for i, r_ in enumerate(q_roles))
        a_ = (att + [0, 0])[:2]
        row = [kind, t0, dt & 0xffffffff, n, len(att), a_[0], qthr(a_[0]), a_[1], qthr(a_[1]), pfi] + [0]*6
        E(".long " + ", ".join(hex(x) for x in row))
    E(".size M_table, 448")
    E(kernel_desc(KN))
    build.names = T.names
    return E.text(), errs

if __name__ == "__main__":
    diag = 1 if "diag" in sys.argv else 2 if "diag2" in sys.argv else 0
    txt, errs = build(diag)
    print(len(errs), "hazards", len(txt), "bytes")
    open("mega_diag.s" if diag else f"cdna_kernels/{NAME}.s", "w").write(txt)
```

```python
import sys
from emit import *
from layout import *
import gemm, attn, outp, team
from gemm import G_WS, G_W, G_N, G_DONE, G_FLAG, G_T0, G_T1, G_T2, G_T3, V_LANE
NAME = "gated_mix__compressed_kv_cla__memory_aug_recurrent_mem_tr__prompt"
KN = NAME + "_kernel"
INIT_OFF = 128
WAIT_MAX = 1 << 18
R_KIND, R_T0, R_DT, R_N, R_NATT, R_QB0, R_QT0, R_QB1, R_QT1 = range(48, 57)
R_H, R_ROLE, R_C, R_GB, R_LVL, R_QB, R_QT, R_CNT = range(64, 72)
R_WSP, R_DBG = 72, 74
R_A, R_B, R_D, R_E = 76, 77, 78, 79

SCHEDS = {
 0: [(1, 63, -1, 18, [7]), (1, 45, -1, 22, [6]), (2, 0, 1, 28, [5]), (0, 63, -1, 25, [4, 0]),
     (1, 23, -1, 24, [3, 1]), (0, 38, -1, 39, [2]), (2, 28, 1, 36, [])],
 1: [(1, 63, -1, 20, [7]), (1, 43, -1, 24, [6]), (2, 0, 1, 30, [5]), (2, 30, 1, 34, [4]),
     (0, 0, 1, 32, [3, 0]), (0, 63, -1, 32, [2, 1]), (1, 19, -1, 20, [])],
 2: [(1, 63, -1, 24, [7]), (1, 39, -1, 28, [6]), (2, 0, 1, 30, [5]), (2, 30, 1, 34, [4]),
     (0, 0, 1, 32, [3, 0]), (0, 63, -1, 32, [2, 1]), (1, 11, -1, 12, [])],
 3: [(1, 63, -1, 23, [7]), (1, 40, -1, 27, [6]), (2, 0, 1, 30, [5]), (2, 30, 1, 34, [4]),
     (0, 0, 1, 32, [3, 0]), (0, 63, -1, 32, [2, 1]), (1, 13, -1, 14, [])],
 4: [(1, 63, -1, 26, [7]), (1, 37, -1, 30, [6]), (2, 0, 1, 30, [5]), (2, 30, 1, 34, [4]),
     (0, 0, 1, 32, [3, 0]), (0, 63, -1, 32, [2, 1]), (1, 7, -1, 8, [])],
}

def need_tiles(ent, lo, hi):
    _, t0, dt, n, _ = ent
    idx = [i for i in range(n) if lo <= t0 + dt*i <= hi]
    return max(idx) + 1 if idx else 0

def build(diag=False, team_opt=None, sched=3, stamps=False, pf=1, wwin=32, bpf=((3, 0, 4), (1, 2, 4), (2, 2, 4), (0, 2, 4)), opf=1, fol=(16,)):
    S = SCHEDS[sched] if isinstance(sched, int) else sched
    E = Em()
    E.lines.append("; @launch grid=(256,1,1) block=(256,1,1) lds=163840")
    E('.amdgcn_target "amdgcn-amd-amdhsa--gfx950"')
    E(kernel_header(KN))
    errs = []
    wsd = s(G_WS, 4)
    kv_roles = [r_ for r_, x in enumerate(S) if x[0] == 1]
    q_roles = [r_ for r_, x in enumerate(S) if x[0] == 0]
    b_roles = [r_ for r_, x in enumerate(S) if x[0] == 2]
    E("s_cmp_ge_u32 s2, 256\n s_cbranch_scc1 M_exit")
    if diag: tmark(E, 0); E("s_mov_b32 s97, s2")
    E(f"s_load_dwordx4 s[{R_WSP}:{R_WSP+3}], s[0:1], {ARG['dbg']}")
    gemm.lane_setup(E)
    E(f"s_and_b32 s{R_A}, s2, 7\n s_lshr_b32 s{R_B}, s2, 3\n s_sub_u32 s{R_C}, s{R_A}, 1\n s_and_b32 s{R_C}, s{R_C}, 7\n s_lshl_b32 s{R_C}, s{R_C}, 5\n s_add_u32 s{R_C}, s{R_C}, s{R_B}")
    E(f"s_lshl_b32 s{G_FLAG}, s{R_C}, 7\n s_add_u32 s{G_FLAG}, s{G_FLAG}, {FLAGS}\n s_waitcnt lgkmcnt(0)")
    E(f"s_mov_b64 s[{G_WS}:{G_WS+1}], s[{R_WSP+2}:{R_WSP+3}]\n s_mov_b64 s[{R_DBG}:{R_DBG+1}], s[{R_WSP}:{R_WSP+1}]\n s_mov_b64 s[{R_WSP}:{R_WSP+1}], s[{G_WS}:{G_WS+1}]")
    E(f"s_and_b32 s{G_WS+1}, s{G_WS+1}, 0xffff\n s_mov_b32 s{G_WS+2}, {WS_BYTES}\n s_mov_b32 s{G_WS+3}, 0x20000")
    E(f"s_cmp_eq_u32 s{R_A}, 0\n s_cbranch_scc1 M_team")
    E(f"s_mul_i32 s{R_H}, s{R_C}, 9363\n s_lshr_b32 s{R_H}, s{R_H}, 16\n s_mul_i32 s{R_GB}, s{R_H}, 7\n s_sub_u32 s{R_ROLE}, s{R_C}, s{R_GB}")
    E(f"s_lshl_b32 s{R_GB}, s{R_GB}, 7\n s_add_u32 s{R_GB}, s{R_GB}, {FLAGS}")
    E(f"s_getpc_b64 s[{R_A}:{R_A+1}]\nM_pc:\n s_add_u32 s{R_A}, s{R_A}, M_table-M_pc\n s_addc_u32 s{R_B}, s{R_B}, 0\n s_lshl_b32 s{G_T0}, s{R_ROLE}, 6")
    E(f"s_load_dwordx16 s[48:63], s[{R_A}:{R_A+1}], s{G_T0}\n s_waitcnt lgkmcnt(0)\n s_mov_b32 s{G_N}, s{R_N}")
    if bpf:
        E(f"s_cmp_lg_u32 s{R_KIND}, 1\n s_cbranch_scc1 M_nobpf")
        E(f"s_load_dwordx8 s[36:43], s[0:1], {ARG['bwq']}\n s_mul_i32 s{R_A}, s{R_H}, 3\n s_add_u32 s{R_A}, s{R_A}, s57")
        E(f"v_lshlrev_b32 v4, 7, v0\n s_mov_b32 s10, {4*MB}\n s_mov_b32 s11, 0x20000\n s_waitcnt lgkmcnt(0)")
        for k, (ptr, lo, hi) in enumerate(bpf):
            per = -(-(hi - lo) * 8192 // 96)
            E(f"s_mov_b32 s8, s{36 + 2*ptr}\n s_and_b32 s9, s{37 + 2*ptr}, 0xffff\n s_mul_i32 s{R_B}, s{R_A}, {per*128}\n s_add_u32 s{R_B}, s{R_B}, {lo*MB}")
            for j in range(0, per, 256):
                E(f"v_min_u32 v5, {(min(256, per - j) - 1)*128}, v4\n v_add_u32 v5, s{R_B}, v5\n s_add_u32 s{R_B}, s{R_B}, {256*128}")
                E(f"buffer_load_dword v6, v5, s[8:11], 0 offen")
        E("s_waitcnt vmcnt(0)")
        E("M_nobpf:")
    def init():
        E(f"s_cmp_lg_u32 s{G_W}, 3\n s_cbranch_scc1 M_noinit")
        E(f"s_mov_b32 s{R_E}, 0\n s_atomic_swap s{R_E}, s[{R_WSP}:{R_WSP+1}], s{G_FLAG} glc\n s_waitcnt lgkmcnt(0)")
        E(f"s_mov_b32 s{R_E}, 1\n s_atomic_add s{R_E}, s[{R_DBG}:{R_DBG+1}], {INIT_OFF}")
        E("M_noinit:")
        if pf:
            E(f"s_mul_i32 s{R_A}, s{R_H}, 3\n s_add_u32 s{R_A}, s{R_A}, s57\n s_mul_i32 s{R_A}, s{R_A}, {192*128}")
            E(f"v_lshlrev_b32 v4, 7, v0\n v_add_u32 v4, s{R_A}, v4")
            E.vmem(f"buffer_load_dword v5, v4, {s(gemm.G_ASRD,4)}, 0 offen")
    errs += gemm.proj_task(E, R_KIND, R_H, R_T0, R_DT, " sc1", True, 6 if diag == 2 else False, init, wwin)
    if diag: tmark(E, 1)

    def bound():
        return f"s_add_u32 s{R_CNT}, s{R_CNT}, 1\n s_cmp_gt_u32 s{R_CNT}, {WAIT_MAX}\n s_cbranch_scc1 M_exit"
    def swait(base, off, thr):
        lp, go = E.label("M_sw"), E.label("M_sg")
        E(f"s_mov_b32 s{R_CNT}, 0\n s_branch {go}")
        E(lp + ":")
        E("s_sleep 8")
        E(bound())
        E(go + ":")
        E(f"s_mov_b32 s{R_E}, 0\n s_atomic_or s{R_E}, s[{base}:{base+1}], {off} glc\n s_waitcnt lgkmcnt(0)\n s_cmp_lt_u32 s{R_E}, {thr}\n s_cbranch_scc1 {lp}")
    def vwait(va, vt, vx):
        lp, go = E.label("M_vw"), E.label("M_vg")
        E(f"s_mov_b32 s{R_CNT}, 0\n s_branch {go}")
        E(lp + ":")
        E("s_sleep 2")
        E(bound())
        E(go + ":")
        E(f"buffer_load_dword v{vx}, v{va}, {wsd}, 0 offen sc1\n s_waitcnt vmcnt(0)\n v_cmp_lt_u32 vcc, v{vx}, v{vt}\n s_cbranch_vccnz {lp}")
        E.vm = []
    def publish(val):
        E(f"s_waitcnt vmcnt(0)\n s_barrier\n s_mov_b32 s{G_DONE}, {val}")
        gemm.publish(E)
    swait(R_DBG, INIT_OFF, 256)
    E(f"s_cmp_eq_u32 s{R_ROLE}, 6\n s_cbranch_scc1 M_follow")
    def wait_q():
        for i, r_ in enumerate(q_roles):
            E(f"s_bfe_u32 s{R_D}, s{R_QT}, {hex(0x80000 + 8*i)}\n s_add_u32 s{R_A}, s{R_GB}, {128*r_}")
            swait(R_WSP, f"s{R_A}", f"s{R_D}")
    def wait_kv():
        lp, ok = E.label("M_kv"), E.label("M_kvok")
        E(lp + ":")
        E(f"s_cmp_ge_u32 s{attn.A_KOFF}, s{attn.A_RDY}\n s_cbranch_scc1 {ok}")
        for i, r_ in enumerate(kv_roles):
            first = i == 0
            op = "s_mov_b32" if first else "s_cmov_b32"
            if not first: E(f"s_cmp_eq_u32 s{R_LVL}, {i}")
            E(f"{op} s{R_A}, {128*r_}\n {op} s{R_D}, {S[r_][3]}\n {op} s{R_B}, {(S[r_][1] - S[r_][3] + 1) * 8192}")
        E(f"s_add_u32 s{R_A}, s{R_A}, s{R_GB}")
        swait(R_WSP, f"s{R_A}", f"s{R_D}")
        E(f"s_add_u32 s{attn.A_RDY}, s{R_B}, s{attn.A_KMIN}\n s_add_u32 s{R_LVL}, s{R_LVL}, 1\n s_branch {lp}")
        E(ok + ":")
    E(f"s_mov_b32 s{R_LVL}, 0\n s_mov_b32 s{attn.A_RDY}, -1\n s_mov_b32 s{R_QB}, s{R_QB0}\n s_mov_b32 s{R_QT}, s{R_QT0}")
    E("M_att:")
    errs += attn.attn_task(E, R_H, R_QB, " sc1", " sc1", False, wait_q, wait_kv)
    E(f"s_mov_b32 s{R_QB}, s{R_QB1}\n s_mov_b32 s{R_QT}, s{R_QT1}\n s_sub_u32 s{R_NATT}, s{R_NATT}, 1\n s_cmp_lg_u32 s{R_NATT}, 0\n s_cbranch_scc1 M_att")
    publish(0x200)
    if diag: tmark(E, 2)
    HG, HALF, TJ, DT = 48, 49, 50, 51
    E(f"s_lshr_b32 s{HG}, s{R_H}, 2\n s_bfe_u32 s{HALF}, s{R_H}, 0x10001\n s_and_b32 s{TJ}, s{R_H}, 1\n s_mul_i32 s{TJ}, s{TJ}, 6\n s_add_u32 s{TJ}, s{TJ}, s{R_ROLE}")
    E(f"s_mov_b32 s{DT}, 12\n s_cmp_lt_u32 s{TJ}, 4\n s_cselect_b32 s{G_N}, 6, 5")
    def wait_ctx():
        E(f"v_min_u32 v4, 27, v{V_LANE}\n v_mul_u32_u24 v5, 37, v4\n v_lshrrev_b32 v5, 8, v5\n v_mul_u32_u24 v5, 7, v5\n v_sub_u32 v5, v4, v5")
        E(f"v_mov_b32 v6, 0x200\n v_cmp_ne_u32 vcc, 6, v5\n s_mul_i32 s{R_A}, s{HG}, {28*128}\n s_add_u32 s{R_A}, s{R_A}, {FLAGS}\n v_cndmask_b32 v5, 0, v6, vcc")
        E(f"v_lshl_add_u32 v4, v4, 7, s{R_A}")
        vwait(4, 5, 6)
        if diag: tmark(E, 3)
    errs += outp.oproj_task(E, HG, HALF, TJ, DT, " sc1", " sc1", False, wait_ctx)
    publish(0x300)
    if diag: tmark(E, 4)
    ZT, ZQ, ZI = 48, 49, 50
    E(f"s_mul_i32 s{ZI}, s{R_H}, 6\n s_add_u32 s{ZI}, s{ZI}, s{R_ROLE}")
    E(f"s_mul_i32 s{R_A}, s{ZI}, 21846\n s_lshr_b32 s{R_A}, s{R_A}, 16\n s_mul_i32 s{R_B}, s{R_A}, 3\n s_add_u32 s51, s{ZI}, 64")
    E(f"s_cmp_eq_u32 s{R_B}, s{ZI}\n s_cselect_b32 s{ZI}, s{R_A}, s51")
    E("M_fin:")
    E(f"s_lshr_b32 s{ZT}, s{ZI}, 2\n s_and_b32 s{ZQ}, s{ZI}, 3")
    def wait_part(b):
        def f():
            if b == 0:
                E(f"s_mul_i32 s{R_A}, s{ZT}, 43\n s_lshr_b32 s{R_A}, s{R_A}, 9\n s_mul_i32 s{R_A}, s{R_A}, 12\n s_sub_u32 s{R_A}, s{ZT}, s{R_A}")
                E(f"s_cmp_ge_u32 s{R_A}, 6\n s_addc_u32 s{R_A}, s{R_A}, 0\n s_and_b32 s{R_B}, s{ZQ}, 2\n s_mul_i32 s{R_B}, s{R_B}, 7\n s_add_u32 s{R_A}, s{R_A}, s{R_B}")
                E("v_mov_b32 v193, 0x300")
            else:
                E(f"s_and_b32 s{R_A}, s{ZT}, 1\n s_lshl_b32 s{R_A}, s{R_A}, 1\n s_lshr_b32 s{R_B}, s{ZQ}, 1\n s_add_u32 s{R_A}, s{R_A}, s{R_B}\n s_mul_i32 s{R_A}, s{R_A}, 7\n s_add_u32 s{R_A}, s{R_A}, 6")
                E(f"s_lshr_b32 s{R_B}, s{ZT}, 1\n s_add_u32 s{R_B}, s{R_B}, 0x201\n v_mov_b32 v193, s{R_B}")
            E(f"s_lshl_b32 s{R_A}, s{R_A}, 7\n s_add_u32 s{R_A}, s{R_A}, {FLAGS}\n v_and_b32 v192, 7, v{V_LANE}\n v_mul_u32_u24 v192, {28*128}, v192\n v_add_u32 v192, s{R_A}, v192")
            vwait(192, 193, 194)
            if diag == 1: tmark(E, 5 + b)
        return f
    errs += outp.final_task(E, ZT, ZQ, " sc1", wait_part(0), wait_part(1))
    E(f"s_cmp_lt_u32 s{ZI}, 64\n s_mov_b32 s{ZI}, s51\n s_cbranch_scc1 M_fin")
    E("s_branch M_done")
    E("M_follow:")
    E(f"s_lshr_b32 s{HG}, s{R_H}, 2\n s_and_b32 s{HALF}, s{R_H}, 1\n s_bfe_u32 s{TJ}, s{R_H}, 0x10001\n s_mov_b32 s{DT}, 2\n s_mov_b32 s{G_N}, 32")
    if opf:
        E(f"s_load_dwordx2 s[8:9], s[0:1], {ARG['wo']}\n s_lshl_b32 s{R_B}, s{R_H}, 17\n v_lshlrev_b32 v4, 7, v0\n s_waitcnt lgkmcnt(0)")
        E(f"s_and_b32 s9, s9, 0xffff\n s_mov_b32 s10, {4*MB}\n s_mov_b32 s11, 0x20000")
        for j in range(4):
            E(f"buffer_load_dword v250, v4, s[8:11], s{R_B} offen\n s_add_u32 s{R_B}, s{R_B}, 32768")
    FS, FR = 52, 53
    def wait_x(first):
        lv = list(fol) + [64]
        for lo, hi in ([(0, lv[0])] if first else zip(lv, lv[1:])):
            sk = E.label("M_xok")
            if not first: E(f"s_cmp_lg_u32 s{G_N}, {32 - lo//2}\n s_cbranch_scc1 {sk}")
            E(f"s_lshl_b32 s{R_B}, s{HG}, 2\n s_add_u32 s{R_B}, s{R_B}, s{G_W}\n s_mul_i32 s{R_D}, s{R_B}, {7*128}")
            for r_ in q_roles + b_roles:
                thr = need_tiles(S[r_], lo, hi - 1)
                if thr:
                    E(f"s_add_u32 s{R_A}, s{R_D}, {FLAGS + 128*r_}")
                    swait(R_WSP, f"s{R_A}", thr)
            E(sk + ":")
        if first:
            E(f"s_lshl_b32 s{R_B}, s{R_B}, 7\n s_add_u32 s54, s{R_B}, {FLAGS + 224*128}\n s_add_u32 s{FS}, s{TJ}, 1\n s_mov_b32 s{FR}, 0\n s_mov_b32 s{G_DONE}, 0x200")
            if diag: tmark(E, 2)
    def wait_m():
        vm = list(E.vm)
        E(f"v_mov_b32 v16, s54\n v_mov_b32 v17, s{FS}")
        vwait(16, 17, 23)
        E.vm = vm
    def mid():
        E(f"v_readfirstlane_b32 s{FR}, v23")
        gemm.publish(E, 16)
        E(f"s_add_u32 s{G_DONE}, s{G_DONE}, 1\n s_add_u32 s{FS}, s{FS}, 2\n s_cmp_ge_u32 s{FR}, s{FS}\n s_cselect_b32 s{outp.F_PRE}, 1, 0")
        E(f"buffer_load_dword v23, off, {wsd}, s54 sc1")
    errs += outp.follower_task(E, HG, HALF, TJ, DT, " sc1", " sc1", wait_x, wait_m, mid, diag == 2)
    gemm.publish(E)
    E("s_branch M_done")
    E("M_team:")
    T = team.Team(E, stamps, **(team_opt or {}))
    T.diag = diag
    T.merged = dict(init_off=INIT_OFF, r1=b_roles[0], r2=b_roles[1], n1=S[b_roles[0]][3])
    E(f"s_mov_b32 s{team.S_H}, s{R_B}")
    l0 = len(E.lines)
    T.startup("M_exit")
    errs += hazard.check(E.lines[l0:], "team startup")
    if diag: tmark(E, 1)
    E(f"s_cmp_lg_u32 s{team.S_MODE}, 0\n s_cbranch_scc1 M_global")
    errs += T.loops(0, "M_tdone", "M_exit", " sc1")
    E("M_global:")
    errs += T.loops(1, "M_tdone", "M_exit", " sc1")
    E("M_tdone:")
    E(f"v_mov_b32 v16, 64\n v_or_b32 v17, s{team.S_W}, v{team.L16}\n v_min_u32 v17, 1, v17\n v_lshlrev_b32 v17, 30, v17\n s_waitcnt vmcnt(0)\n s_barrier")
    E(f"buffer_store_dword v16, v17, {wsd}, s{team.S_FLG} offen sc1")
    E("M_done:")
    if diag: tmark(E, 7); tdump(E, G_WS, STAMP, 97)
    E("M_exit:\n s_endpgm")
    E(".p2align 6\n.type M_table,@object\nM_table:")
    for ri, (kind, t0, dt, n, att) in enumerate(S):
        pfi = len([1 for x in S[:ri] if (x[0] == 1) == (kind == 1)]) % 3
        qthr = lambda qb: sum(need_tiles(S[r_], 8*qb, 8*qb + 7) << (8*i) for i, r_ in enumerate(q_roles))
        a_ = (att + [0, 0])[:2]
        row = [kind, t0, dt & 0xffffffff, n, len(att), a_[0], qthr(a_[0]), a_[1], qthr(a_[1]), pfi] + [0]*6
        E(".long " + ", ".join(hex(x) for x in row))
    E(".size M_table, 448")
    E(kernel_desc(KN))
    build.names = T.names
    return E.text(), errs

if __name__ == "__main__":
    diag = 1 if "diag" in sys.argv else 2 if "diag2" in sys.argv else 0
    txt, errs = build(diag)
    print(len(errs), "hazards", len(txt), "bytes")
    open("mega_diag.s" if diag else f"cdna_kernels/{NAME}.s", "w").write(txt)
```

```python
import struct, math
from emit import *
from layout import *
from gemm import *

def fbits(x): return struct.unpack("<I", struct.pack("<f", x))[0]
def wsd(): return s(G_WS, 4)

def wo_setup(E, arg, s_hg, s_half, s_t0, s_dt, pbase):
    T0, T1 = G_T0, G_T1
    E(f"s_load_dwordx2 s[{G_WSRD}:{G_WSRD+1}], s[0:1], {ARG[arg]}")
    E(f"s_lshl_b32 s{G_WOFF}, s{s_hg}, 19\n s_lshl_b32 s{T0}, s{s_half}, 2\n s_add_u32 s{T0}, s{T0}, s{G_W}\n s_lshl_b32 s{T1}, s{T0}, 7")
    E(f"s_add_u32 s{G_WOFF}, s{G_WOFF}, s{T1}\n s_mov_b32 s{G_WSTR}, 1024")
    E(f"s_lshl_b32 s{G_OOFF}, s{s_hg}, 6\n s_add_u32 s{G_OOFF}, s{G_OOFF}, s{s_t0}\n s_lshl_b32 s{G_OOFF}, s{G_OOFF}, 3\n s_add_u32 s{G_OOFF}, s{G_OOFF}, s{T0}")
    E(f"s_lshl_b32 s{G_OOFF}, s{G_OOFF}, 12\n s_add_u32 s{G_OOFF}, s{G_OOFF}, {PART + pbase*2*MB}\n s_lshl_b32 s{G_OSTR}, s{s_dt}, 15")
    E(f"s_mov_b32 s{G_SCALE}, 1.0\n s_waitcnt lgkmcnt(0)")
    E(f"s_and_b32 s{G_WSRD+1}, s{G_WSRD+1}, 0xffff\n s_mov_b32 s{G_WSRD+2}, {4*MB}\n s_mov_b32 s{G_WSRD+3}, 0x20000")


def oproj_task(E, s_hg, s_half, s_t0, s_dt, sc, osc, flags, wait=None):
    l0 = len(E.lines)
    wo_setup(E, "wo", s_hg, s_half, s_t0, s_dt, 0)
    E(f"s_mov_b32 s{G_ASRD}, s{G_WS}\n s_mov_b32 s{G_ASRD+1}, s{G_WS+1}\n s_mov_b32 s{G_ASRD+2}, {WS_BYTES}\n s_mov_b32 s{G_ASRD+3}, 0x20000")
    E(f"s_lshl_b32 s{G_AOFF}, s{s_hg}, 8\n s_add_u32 s{G_AOFF}, s{G_AOFF}, s{s_t0}\n s_lshl_b32 s{G_AOFF}, s{G_AOFF}, 13\n s_add_u32 s{G_AOFF}, s{G_AOFF}, {CTXA}")
    E(f"s_lshl_b32 s{G_ASTR}, s{s_dt}, 13")
    addr_frag(E, 64 * 8192)
    load_w(E, True)
    if wait: wait()
    E("s_barrier")
    fetch_now(E, sc, "a", 0); fetch_now(E, sc, "a", 1)
    E.drain(vm=True)
    E("s_barrier")
    errs = hazard.check(E.lines[l0:], "oproj prologue")
    errs += stream(E, False, sc, osc, flags)
    return errs


FQ, FK, FV, FC = 144, 176, 208, 240
FSX, FSM, FVM, FO, FP = 24, 40, 56, 64, 128
F_WR, F_TR, F_VMA, F_M, F_T, F_XL, F_ST = 3, 4, 5, 6, 16, 21, 22
F_PRE = 24
F_QOFF, F_KMOFF, F_KML = 19, 20, 25
L_KMF = 65536

def follower_task(E, s_hg, s_half, s_t0, s_dt, sc, osc, wait_x=None, wait_m=None, mid=None, diag=False):
    errs = []
    l0 = len(E.lines)
    wo_setup(E, "bwo", s_hg, s_half, s_t0, s_dt, 8)
    addr_frag(E, 0)
    load_w(E, True)
    T0, T1, T2, T3 = G_T0, G_T1, G_T2, G_T3
    E(f"s_lshl_b32 s{T0}, s{s_hg}, 2\n s_add_u32 s{T0}, s{T0}, s{G_W}")
    E(f"s_lshl_b32 s{T1}, s{T0}, 6\n s_add_u32 s{T1}, s{T1}, s{s_t0}\n s_lshl_b32 s{F_QOFF}, s{T1}, 13")
    E(f"s_lshl_b32 s{T1}, s{s_t0}, 5\n s_add_u32 s{T1}, s{T1}, s{T0}\n s_mul_i32 s{T1}, s{T1}, {KMB}\n s_add_u32 s{F_KMOFF}, s{T1}, {KM}")
    E(f"s_lshl_b32 s{F_KML}, s{G_W}, 12\n s_add_u32 s{F_KML}, s{F_KML}, {L_KMF}")
    E(f"s_lshl_b32 s{T0}, s{G_W}, 13\n v_add_u32 v{F_WR}, s{T0}, v{V_L16}")
    t = F_T
    E(f"v_lshrrev_b32 v{t}, 5, v{V_LANE}\n v_and_b32 v{t+1}, 31, v{V_LANE}")
    E(f"v_bfe_u32 v{t+2}, v{V_LANE}, 4, 1\n v_lshl_add_u32 v{t+2}, v{t+2}, 1, v{t}\n v_and_b32 v{t+3}, 15, v{V_LANE}\n v_lshl_add_u32 v{t+2}, v{t+2}, 4, v{t+3}")
    E(f"v_lshl_add_u32 v{F_VMA}, v{t+2}, 4, s{F_KML}")
    E(f"v_bfe_u32 v{t+2}, v{V_LANE}, 2, 2\n v_lshl_add_u32 v{t+2}, v{t}, 2, v{t+2}\n v_and_b32 v{t+3}, 1, v{V_LANE}\n v_lshl_add_u32 v{t+2}, v{t+3}, 4, v{t+2}")
    E(f"v_lshl_add_u32 v{F_TR}, v{t+2}, 4, s{F_KML}")
    E(f"v_lshlrev_b32 v{t}, 2, v{t}\n v_sub_u32 v{t+1}, v{t+1}, v{t}\n v_mov_b32 v{t+2}, {hex(fbits(-1e30))}")
    for i in range(16):
        E(f"v_cmp_le_i32 vcc, {8*(i>>2) + (i&3)}, v{t+1}\n s_nop 1\n v_cndmask_b32 v{FC+i}, v{t+2}, 0, vcc")
    def xloads():
        out = []
        for reg, base in ((FQ, QB), (FK, KB), (FV, VB)):
            for hf in range(2):
                out.append(f"s_add_u32 s{T2 + hf}, s{F_QOFF}, {base + 4096*hf}")
                out += [f"buffer_load_dwordx4 {v(reg + 16*hf + 4*i, 4)}, v{F_XL}, {wsd()}, s{T2 + hf} offen offset:{1024*i}{sc}" for i in range(4)]
        return out
    E(f"v_mov_b32 v{F_XL}, v{V_L16}\n s_barrier")
    if wait_x: wait_x(True)
    def mloads():
        E(f"s_mov_b32 m0, s{F_KML}\n s_nop 0")
        for j in range(4):
            E(f"buffer_load_dwordx4 v{V_L16}, {wsd()}, s{F_KMOFF} offen offset:{1024*j}{sc} lds")
    for x in xloads(): (E.vmem if x.startswith("buffer") else E)(x)
    E(f"s_mov_b32 s{F_PRE}, 0\n v_mov_b32 v{F_ST}, 0x40000000\n s_sub_u32 s{G_OOFF}, s{G_OOFF}, s{G_OSTR}")
    errs += hazard.check(E.lines[l0:], "follower prologue")
    E.vm = E.vm[8:]
    vm0 = [set(x) for x in E.vm]
    top, have = E.label("F_top"), E.label("F_have")
    if diag:
        for i in range(8): E(f"s_mov_b32 s{86+i}, 0")
        tacc(E, None)
    E(top + ":")
    l1 = len(E.lines)
    m32 = lambda d, a_, b_, c_: f"v_mfma_f32_32x32x16_bf16 {v(d,16)}, {v(a_,4)}, {v(b_,4)}, {c_}"
    cv = lambda d, x: f"v_cvt_pk_bf16_f32 v{d}, v{x}, v{x+1}"
    stp = lambda b: f"buffer_store_dwordx4 {v(V_PK+4*b,4)}, v{F_ST}, {wsd()}, s{G_OOFF} offen offset:{1024*b}{osc}"
    E.need(v(FQ, 64))
    if diag: tacc(E, 0)
    for st in range(8):
        E(m32(FSX, FK + 4*st, FQ + 4*st, v(FC if st == 0 else FSX, 16)))
        if st & 1: E.vmem(stp(st >> 1), tag="st")
        else:
            if st == 0: E("s_nop 1")
            for j in range(4): E(cv(V_PK + 2*st + j, V_ACC + 4*st + 2*j))
    E(f"s_add_u32 s{G_OOFF}, s{G_OOFF}, s{G_OSTR}\n v_mov_b32 v{F_ST}, v{V_L16}")
    E(f"s_cmp_lg_u32 s{F_PRE}, 0\n s_cbranch_scc1 {have}")
    l2 = len(E.lines)
    if wait_m: wait_m()
    mloads()
    E("s_waitcnt vmcnt(0)")
    l3 = len(E.lines)
    E(have + ":")
    if diag: tacc(E, 1)
    trs = [f"ds_read_b64_tr_b16 {v(FK + 4*st + 2*hi, 2)}, v{F_TR} offset:{512*st + 128*hi + 8}" for st in range(8) for hi in range(2)]
    trs += [f"ds_read_b64 {v(FVM + 2*dt, 2)}, v{F_VMA} offset:{1024*dt}" for dt in range(4)]
    for x in trs[:12]: E.ds(x)
    E(f"s_sub_u32 s{G_N}, s{G_N}, 1\n s_cmp_gt_u32 s{G_N}, 0\n s_cselect_b32 s{T0}, s{s_dt}, 0")
    E(f"s_cselect_b32 s{T1}, 0, 0x40000000\n v_or_b32 v{F_XL}, s{T1}, v{F_XL}")
    E(f"s_lshl_b32 s{T1}, s{T0}, 13\n s_add_u32 s{F_QOFF}, s{F_QOFF}, s{T1}\n s_mul_i32 s{T1}, s{T0}, {32*KMB}\n s_add_u32 s{F_KMOFF}, s{F_KMOFF}, s{T1}")
    if wait_x: wait_x(False)
    mxs = [f"v_max_f32 v{F_M}, v{FSX}, v{FSX+1}"] + [f"v_max3_f32 v{F_M}, v{F_M}, v{FSX+e}, v{FSX+e+1}" for e in range(2, 16, 2)]
    for st in range(8):
        E.need(v(FK + 4*st, 4))
        E(m32(FSM, FK + 4*st, FQ + 4*st, "0" if st == 0 else v(FSM, 16)))
        if st < 4:
            for x in trs[12 + 2*st:14 + 2*st]: E.ds(x)
        E(mxs[st])
    xl = xloads()
    def xput(n=1):
        for _ in range(n):
            if xl[0].startswith("s_"): E(xl.pop(0))
            E.vmem(xl.pop(0))
    xput(2)
    E("s_nop 7")
    E(f"v_max3_f32 v{F_M}, v{F_M}, v{FSM}, v{FSM+1}\n v_max3_f32 v{F_M}, v{F_M}, v{FSM+2}, v{FSM+3}")
    E(f"v_mov_b32 v{t}, v{F_M}\n s_nop 1\n v_permlane32_swap_b32 v{F_M}, v{t}\n s_nop 1\n v_max_f32 v{F_M}, v{F_M}, v{t}")
    if diag: tacc(E, 2)
    vals = [FSX + i for i in range(20)]
    assert FSM == FSX + 16
    for x in vals[::2]: E(f"v_pk_add_f32 {v(x,2)}, {v(x,2)}, {v(F_M,2)} op_sel_hi:[1,0] neg_lo:[0,1] neg_hi:[0,1]")
    for k, x in enumerate(vals):
        E(f"v_exp_f32 v{x}, v{x}")
        if k == 9: xput()
    E(f"v_pk_add_f32 {v(t,2)}, {v(vals[0],2)}, {v(vals[2],2)}")
    for x in vals[4::2]: E(f"v_pk_add_f32 {v(t,2)}, {v(t,2)}, {v(x,2)}")
    E(f"v_add_f32 v{t}, v{t}, v{t+1}\n v_mov_b32 v{t+1}, v{t}")
    xput()
    E(f"s_nop 0\n v_permlane32_swap_b32 v{t}, v{t+1}\n s_nop 1\n v_add_f32 v{t}, v{t}, v{t+1}\n v_rcp_f32 v{F_M}, v{t}\n s_nop 0")
    for x in vals[::2]: E(f"v_pk_mul_f32 {v(x,2)}, {v(x,2)}, {v(F_M,2)} op_sel_hi:[1,0]")
    for p in range(10): E(cv(FP + p, FSX + 2*p))
    E.need(v(FV, 32), v(FVM, 8))
    if diag: tacc(E, 3)
    wr = lambda b: f"ds_write_b128 v{F_WR}, {v(FSX+4*b,4)} offset:{1024*b}"
    post = lambda b: [cv(FSX + 4*b + j, FO + 8*b + 2*j) for j in range(4)]
    for dt in range(4):
        E(m32(FO + 16*dt, FV + 8*dt, FP, "0"))
        if dt >= 2: E.ds(wr(2*dt - 3))
        xput()
        E(m32(FO + 16*dt, FV + 8*dt + 4, FP + 4, v(FO + 16*dt, 16)))
        if dt >= 1:
            for x in post(2*dt - 2): E(x)
        E(f"v_mfma_f32_32x32x8_bf16 {v(FO+16*dt,16)}, {v(FVM+2*dt,2)}, {v(FP+8,2)}, {v(FO+16*dt,16)}")
        if dt >= 1:
            E.ds(wr(2*dt - 2))
            for x in post(2*dt - 1): E(x)
    E.ds(wr(5))
    E("s_nop 5")
    for b in (6, 7):
        for x in post(b): E(x)
        E.ds(wr(b))
    if diag: tacc(E, 4)
    E.need(tags=["st"])
    E.drain(lg=True)
    E("s_barrier")
    if diag: tacc(E, 5)
    for ks in range(LEAD): E.ds(rd_frag(ks, 0))
    if mid:
        mid()
        nopre = E.label("F_nopre")
        E(f"s_cmp_eq_u32 s{F_PRE}, 0\n s_cbranch_scc1 {nopre}")
        mloads()
        E(nopre + ":")
    for n in range(64):
        ks, ct = n >> 1, n & 1
        if n == 0: E.need(v(V_AF, 4))
        E(mfma(False, 0, ks, ct))
        if ct == 1 and ks < 31: E.need(v(V_AF + 4*((ks + 1) % NF), 4))
        if ct == 0:
            if xl and xl[0].startswith("s_"): E(xl.pop(0))
            if ks + LEAD < 32: E.ds(rd_frag(ks + LEAD, 0))
        elif n % 4 == 3: xput()
        if n >= 54 and n < 62: E(f"v_xor_b32 v{V_RD + n - 54}, 0x8000, v{V_RD + n - 54}")
        if n == 62: E(f"v_xor_b32 v{F_WR}, 0x8000, v{F_WR}")
    assert not xl
    if diag: tacc(E, 6)
    E.vm = E.vm[8:]
    assert E.vm == vm0
    E(f"s_cmp_gt_u32 s{G_N}, 0\n s_cbranch_scc1 {top}")
    body = E.lines[l1:]
    errs += hazard.check(body + body, "follower loop")
    errs += hazard.check(body + body[:l2 - l1] + body[l3 - l1:], "follower loop (prefetched)")
    l4 = len(E.lines)
    E("s_nop 2")
    for b in range(4):
        for j in range(4): E(cv(V_PK + 4*b + j, V_ACC + 8*b + 2*j))
        E(stp(b))
    errs += hazard.check(body + E.lines[l4:], "follower tail")
    E.drain(vm=True, lg=True)
    E("s_barrier")
    return errs


def final_task(E, s_t, s_cq, sc, wait_a=None, wait_b=None):
    l0 = len(E.lines)
    T0, T1, T2, T3 = G_T0, G_T1, G_T2, G_T3
    X, GW, D, LD, SA, SB, t = 16, 48, 80, 96, 160, 176, 4
    E(f"s_load_dwordx2 s[8:9], s[0:1], {ARG['x']}\n s_load_dwordx2 s[12:13], s[0:1], {ARG['gate']}\n s_load_dwordx2 s[32:33], s[0:1], {ARG['out']}")
    E(f"v_and_b32 v{t}, 31, v{V_LANE}\n v_lshrrev_b32 v{t+1}, 5, v{V_LANE}\n v_lshlrev_b32 v{t+1}, 4, v{t+1}\n v_lshl_add_u32 v{t+2}, v{t}, 10, v{t+1}")
    E(f"s_lshl_b32 s{T0}, s{G_W}, 8\n s_lshl_b32 s{T1}, s{s_t}, 15\n s_add_u32 s{T1}, s{T1}, s{T0}\n s_waitcnt lgkmcnt(0)")
    for b, n in ((8, 2*MB), (12, 1024), (32, 2*MB)):
        E(f"s_and_b32 s{b+1}, s{b+1}, 0xffff\n s_mov_b32 s{b+2}, {n}\n s_mov_b32 s{b+3}, 0x20000")
    for k in range(8):
        E.vmem(f"buffer_load_dwordx4 {v(X+4*k,4)}, v{t+2}, s[8:11], s{T1} offen offset:{32*k}")
        E.vmem(f"buffer_load_dwordx4 {v(GW+4*k,4)}, v{t+1}, s[12:15], s{T0} offen offset:{32*k}")
    E(f"s_lshl_b32 s{T2}, s{s_t}, 2\n s_add_u32 s{T2}, s{T2}, s{s_cq}\n s_lshl_b32 s{T2}, s{T2}, 2\n s_add_u32 s{T2}, s{T2}, s{G_W}\n s_lshl_b32 s{T2}, s{T2}, 11")
    def loads(p0):
        for p in range(8):
            E(f"s_add_u32 s{T3}, s{T2}, {PART + (p0 + p)*2*MB}")
            for b in range(2):
                E.vmem(f"buffer_load_dwordx4 {v(LD + 8*p + 4*b, 4)}, v{V_L16}, {wsd()}, s{T3} offen offset:{1024*b}{sc}")
    def accum(S):
        for p in range(8):
            E.need(v(LD + 8*p, 8))
            for j in range(8):
                x = LD + 8*p + j
                if p == 0:
                    E(f"v_lshlrev_b32 v{S+2*j}, 16, v{x}\n v_and_b32 v{S+2*j+1}, 0xffff0000, v{x}")
                else:
                    u = t + 4 + 2*(j & 3)
                    E(f"v_lshlrev_b32 v{u}, 16, v{x}\n v_and_b32 v{u+1}, 0xffff0000, v{x}\n v_pk_add_f32 {v(S+2*j,2)}, {v(S+2*j,2)}, {v(u,2)}")
    for k in range(8):
        E.need(v(X+4*k, 4), v(GW+4*k, 4))
        E(f"v_mfma_f32_32x32x16_bf16 {v(D,16)}, {v(GW+4*k,4)}, {v(X+4*k,4)}, {'0' if k == 0 else v(D,16)}")
    if wait_a: wait_a()
    loads(0)
    E(f"v_lshlrev_b32 v{t+3}, 4, v{t}\n s_lshl_b32 s{T0}, s{G_W}, 2\n v_add_u32 v{t}, s{T0}, v{t+3}")
    E(f"s_barrier\n ds_write_b32 v{t}, v{D}\n s_waitcnt lgkmcnt(0)\n s_barrier\n ds_read_b128 {v(D+4,4)}, v{t+3}\n s_waitcnt lgkmcnt(0)")
    E(f"v_add_f32 v{D}, v{D+4}, v{D+5}\n v_add_f32 v{D+1}, v{D+6}, v{D+7}\n v_add_f32 v{D}, v{D}, v{D+1}")
    E(f"v_mul_f32 v{D}, {hex(fbits(-math.log2(math.e)))}, v{D}\n v_exp_f32 v{D}, v{D}\n s_nop 0\n v_add_f32 v{D}, 1.0, v{D}\n v_rcp_f32 v{D}, v{D}\n s_nop 0\n v_sub_f32 v{D+2}, 1.0, v{D}")
    accum(SA)
    if wait_b: wait_b()
    loads(8)
    for j in range(8): E(f"v_pk_mul_f32 {v(SA+2*j,2)}, {v(SA+2*j,2)}, {v(D,2)} op_sel_hi:[1,0]")
    accum(SB)
    for j in range(8):
        E(f"v_pk_fma_f32 {v(SA+2*j,2)}, {v(SB+2*j,2)}, {v(D+2,2)}, {v(SA+2*j,2)} op_sel_hi:[1,0,1]")
        E(f"v_cvt_pk_bf16_f32 v{X+j}, v{SA+2*j}, v{SA+2*j+1}")
    E(f"s_lshl_b32 s{T0}, s{s_cq}, 2\n s_add_u32 s{T0}, s{T0}, s{G_W}\n s_lshl_b32 s{T0}, s{T0}, 6\n s_lshl_b32 s{T1}, s{s_t}, 15\n s_add_u32 s{T0}, s{T0}, s{T1}")
    for b in range(2):
        E(f"buffer_store_dwordx4 {v(X+4*b,4)}, v{t+2}, s[32:35], s{T0} offen offset:{32*b}")
    return hazard.check(E.lines[l0:], "final")


def simple_kernel(E, name, nwg, body):
    E(kernel_header(name))
    end = E.label("K_exit")
    E(f"s_cmp_ge_u32 s2, {nwg}\n s_cbranch_scc1 {end}")
    lane_setup(E); ws_srd(E)
    errs = body()
    E(end + ":\n s_endpgm")
    return errs

def oproj_kernel(E, name):
    def body():
        E(f"s_and_b32 s40, s2, 7\n s_bfe_u32 s41, s2, 0x10003\n s_lshr_b32 s42, s2, 4\n s_mov_b32 s43, 16\n s_mov_b32 s{G_N}, 4")
        return oproj_task(E, 40, 41, 42, 43, "", "", False)
    return simple_kernel(E, name, 256, body)

def follower_kernel(E, name):
    def body():
        E(f"s_and_b32 s40, s2, 7\n s_bfe_u32 s41, s2, 0x10003\n s_lshr_b32 s42, s2, 4\n s_mov_b32 s43, 16\n s_mov_b32 s{G_N}, 4")
        return follower_task(E, 40, 41, 42, 43, "", "")
    return simple_kernel(E, name, 256, body)

def final_kernel(E, name):
    def body():
        E("s_lshr_b32 s40, s2, 2\n s_and_b32 s41, s2, 3")
        return final_task(E, 40, 41, "")
    return simple_kernel(E, name, 256, body)
```

```python
import math, struct
from emit import *
from layout import *
import align

def fbits(x):
    return struct.unpack("<I", struct.pack("<f", x))[0]

L_MEM, L_KX, L_VX, L_QM, L_KM, L_OM, L_SEL, L_FLG, L_W = 0, 8192, 16384, 24576, 26880, 29184, 31232, 32256, 32768
IDX, YRD, L16, LDX, WOP, QW, TR, PS, MP, KD, VD, OB = range(12)
XTR = MP
WL16 = 59
ONES = 12
AQ, AK, AV = 16, 20, 24
VX = 28
def KX(i): return 36 + 4 * i
def Q(i): return 68 + 4 * i
S_WS = 4
S_WQ, S_WK, S_WV, S_WO = 8, 40, 44, 48
S_H, S_W, S_STEP = 12, 13, 14
S_HI = 16
S_SCALE, S_CNT = 18, 19
S_PST0, S_PST1, S_IN0, S_IN1, S_MEM0, S_MEM1, S_MRE = 20, 21, 22, 23, 24, 25, 26
S_KD, S_VD, S_KE = 27, 28, 29
S_MK0, S_MK1, S_MV0, S_MV1 = 31, 32, 33, 34
S_PUB = 35
S_MB = 23
S_T0, S_T1, S_T2, S_T3 = 36, 37, 38, 39
S_DBG = 52
S_LO, S_RNG = 54, 55
S_MODE = 56
S_RDY, S_FLG, S_WSP = 30, 15, 58
S_KVF = 99
S_ONE, S_PRG = 2, 98
S_PH = 57
S_ST = 60
POLL_MAX = 1 << 15

def ws(): return s(S_WS, 4)

P_OPS = [(m, 0, xy) for m in "qkv" for xy in range(2)]
O_OPS = [("o", 2, 2), ("o", 2, 3), ("o", 3, 2), ("o", 3, 3)]
ALL_QKV = [(m, p, xy) for p in range(8) for m in "qkv" for xy in range(2)]
ALL_O = [("o", p, t) for p in range(4) for t in range(4)]
P_REG = {(m, 0, xy): Q(2 * (3 * xy + "qkv".index(m))) for m in "qkv" for xy in range(2)}

def place(one):
    global J_OPS, LDS_OPS, RES_OPS, RES_REG, LDS_SLOT
    J_OPS = [(m, p, xy) for m, p in ((("v", 1), ("k", 3), ("v", 2)) if one else (("v", 2), ("k", 4), ("k", 7))) for xy in range(2)]
    LDS_OPS = P_OPS + J_OPS + O_OPS
    RES_OPS = [o for o in ALL_QKV + ALL_O if o not in LDS_OPS]
    assert len(RES_OPS) == 48 and len(LDS_OPS) == 16
    RES_REG = {o: 128 + 8 * n for n, o in enumerate(RES_OPS)}
    LDS_SLOT = {o: n for n, o in enumerate(LDS_OPS)}


def estimate(lines):
    t, tm, hold, dur, prev, out = 0, -99, 0, 0, "", []
    for ln in lines:
        d = hazard.parse(ln)
        if not d: continue
        k, op = d["kind"], d["op"]
        if k == "mfma":
            t = max(t, tm + dur); tm = t; dur = 4 * d["passes"]; hold = 12 if "smfmac" in op else 8; out.append(t); t += 4
        elif k == "valu":
            t = max(t, tm + (dur + 16 if op.startswith("v_pk_") else hold)); t += 8 if op.startswith(hazard.TRANS) or "permlane" in op else 4
        elif k in ("ds", "vmem"):
            t = max(t + (8 if prev == "valu" else 0), tm + 8) + 4
        elif op == "s_nop": t += 4 * (int(d["ops"][0]) + 1)
        elif op == "s_barrier": t += 8
        else: t += 4
        prev = k
    return out + [t]


class Team:
    def __init__(self, E, stamps=False, **opt):
        self.opt = dict(win=4, ofirst=1, swz=0, h1ack=2, h1pre=6, h1nop=0, w1ack=0, w1pre=12, w1nop=0, h1mask=1, kvpre=(0, 1),
                        defer=0, line=0, xpoll=0, psch=((3, 0), (6, 1), (10, 1)), x0d=1, pdefer=0, lated=1, align=0, one=1, wkind=128, w2at=2, b1one=7, dma1=10, split=0, w1cut=(2, 5), w2cut=(3, 6, 8, 10), w2ack=1, rearm=0, fine=1, h2sets=2, h2cut=(6, 10), h2mask=1, u0at=0, b3at=3,
                        b1at=2, ld1at=0, h1chk=14, b1bat=22, dma0=23, dmaw=1, dmas=4, qat=34, ex5=1, xat=4)
        self.opt.update(opt)
        place(self.opt['one'])
        self.E = E
        self.stamps = stamps
        self.diag = False
        self.merged = None
        self.nst = 0

    def stamp(self, name):
        if self.stamps and (self.stamps is True or name in self.stamps):
            self.E(f"s_memtime s[{S_ST + 2*self.nst}:{S_ST + 2*self.nst + 1}]")
            self.names.append(name)
            self.nst += 1
            assert self.nst <= 14

    def startup(self, fail):
        E = self.E
        E(f"s_load_dwordx4 s[60:63], s[0:1], {ARG['bwq']}")
        E(f"s_load_dwordx4 s[64:67], s[0:1], {ARG['bwv']}")
        E(f"s_load_dwordx4 s[68:71], s[0:1], {ARG['dbg']}")
        E(f"s_load_dwordx2 s[72:73], s[0:1], {ARG['mem0']}")
        E(f"v_lshrrev_b32 v1, 6, v0")
        E(f"v_and_b32 v20, 63, v0")
        E(f"v_readfirstlane_b32 s{S_W}, v1")
        E("s_waitcnt lgkmcnt(0)")
        E.srd(S_WQ, 60, 4 * MB); E.srd(S_WK, 62, 4 * MB); E.srd(S_WV, 64, 4 * MB); E.srd(S_WO, 66, 4 * MB)
        E.srd(S_WS, 70, WS_BYTES)
        E.srd(76, 72, 8192)
        E.srd(72, 68, 256)
        E(f"s_mov_b64 s[{S_DBG}:{S_DBG+1}], s[68:69]")
        if self.merged:
            E(f"s_mov_b64 s[{S_WSP}:{S_WSP+1}], s[70:71]")
            E(f"s_mul_i32 s{S_KVF}, s{S_H}, {7*128}\n s_add_u32 s{S_KVF}, s{S_KVF}, {FLAGS + self.merged['r1']*128}")
            E(f"s_lshl_b32 s{S_FLG}, s{S_H}, 7\n s_add_u32 s{S_FLG}, s{S_FLG}, {FLAGS + 224*128}")
        E("v_lshrrev_b32 v21, 4, v20\n v_and_b32 v22, 15, v20\n v_and_b32 v23, 1, v21\n v_lshrrev_b32 v24, 1, v21")
        E(f"v_lshlrev_b32 v{L16}, 4, v20")
        E(f"s_lshl_b32 s{S_T0}, s{S_W}, 10\n v_add_u32 v{WL16}, s{S_T0}, v{L16}")
        E(f"s_lshl_b32 s{S_T1}, s{S_W}, 15\n s_add_u32 s{S_T1}, s{S_T1}, {L_W}\n v_add_u32 v{WOP}, s{S_T1}, v{L16}")
        E(f"v_lshrrev_b32 v25, 2, v20\n v_lshlrev_b32 v25, 13, v25\n v_and_b32 v1, 3, v20\n v_lshl_add_u32 v25, v1, 4, v25")
        E(f"s_lshl_b32 s{S_T0}, s{S_W}, 6\n s_lshl_b32 s{S_T2}, s{S_H}, 8\n s_add_u32 s{S_T0}, s{S_T0}, s{S_T2}\n v_add_u32 v25, s{S_T0}, v25")
        if self.opt.get("seg128"):
            E(f"v_lshrrev_b32 v25, 3, v20\n s_and_b32 s{S_T0}, s{S_W}, 1\n s_lshl_b32 s{S_T0}, s{S_T0}, 3\n v_add_u32 v25, s{S_T0}, v25\n v_lshlrev_b32 v25, 13, v25")
            E(f"v_and_b32 v1, 7, v20\n v_lshl_add_u32 v25, v1, 4, v25\n s_lshr_b32 s{S_T0}, s{S_W}, 1\n s_lshl_b32 s{S_T0}, s{S_T0}, 7\n s_add_u32 s{S_T0}, s{S_T0}, s{S_T2}\n v_add_u32 v25, s{S_T0}, v25")
        E(f"v_lshrrev_b32 v26, 3, v20\n v_lshlrev_b32 v26, 10, v26\n v_and_b32 v1, 7, v20\n v_lshl_add_u32 v26, v1, 4, v26")
        E(f"s_lshl_b32 s{S_T0}, s{S_W}, 7\n s_lshl_b32 s{S_T2}, s{S_H}, 17\n s_add_u32 s{S_T0}, s{S_T0}, s{S_T2}\n v_add_u32 v26, s{S_T0}, v26")
        E("v_bfe_u32 v29, v20, 2, 1\n v_bfe_u32 v30, v20, 3, 1\n v_and_b32 v31, 3, v20")
        fine = self.opt["fine"]
        if fine: E("v_lshl_add_u32 v27, v21, 2, v29\n v_lshlrev_b32 v27, 6, v27")
        else: E("v_lshl_add_u32 v27, v24, 1, v29\n v_lshl_add_u32 v27, v27, 1, v23\n v_lshlrev_b32 v27, 7, v27")
        E("v_lshl_add_u32 v27, v30, 5, v27\n v_lshl_add_u32 v27, v31, 3, v27")
        E(f"v_add_u32 v27, s{S_T1}, v27\n v_xor_b32 v36, 1, v30\n v_lshl_add_u32 v36, v36, 11, v27\n v_lshl_add_u32 v27, v30, 11, v27")
        E("v_lshl_add_u32 v28, v23, 2, v24\n v_lshl_add_u32 v28, v28, 2, v29\n v_lshlrev_b32 v28, 7, v28\n v_lshl_add_u32 v28, v30, 6, v28\n v_lshl_add_u32 v28, v31, 4, v28")
        E(f"v_add_u32 v28, s{S_T1}, v28")
        E(f"s_mov_b32 s{S_T3}, s{S_T1}")
        WIN = self.opt["win"]
        U = lambda m, p: [(m, p, 0), (m, p, 1)]
        lds_u = lambda u: u[0] in LDS_SLOT
        pairs = [sorted([U(m, p), U(m, p + 1)], key=lds_u) for p in (0, 2, 4, 6) for m in "qkv"]
        pairs.sort(key=lambda x: lds_u(x[0]) + lds_u(x[1]))
        ou = [[("o", p, t), ("o", p, t + 1)] for p in range(4) for t in (0, 2)]
        qkv_u = [u for x in pairs for u in x]
        units = [u for u in ou if not lds_u(u)] + qkv_u + [u for u in ou if lds_u(u)]
        slot = {}
        for n, u in enumerate(units):
            if lds_u(u): slot[n] = LDS_SLOT[u[0]] // 2
        for n, u in enumerate(units):
            if n not in slot:
                busy = {slot[k] for k in range(max(0, n - WIN + 1), n)} | {slot[k] for k in slot if k < n + WIN and lds_u(units[k])}
                slot[n] = min(set(range(8)) - busy)
        assert all(slot[n] != slot[k] for n in range(32) for k in range(max(0, n - WIN + 1), n))
        srd = dict(q=S_WQ, k=S_WK, v=S_WV)
        def issue(n):
            u = units[n]; base = slot[n] * 4096
            if u[0][0] == "o":
                (_, p, t), (_, p2, t2) = u
                assert p == p2 and t2 == t + 1 and t % 2 == 0
                E(f"s_xor_b32 s{S_T0}, s{S_W}, {p}\n s_lshl_b32 s{S_T0}, s{S_T0}, 15")
                for j in range(4):
                    E(f"s_add_u32 m0, s{S_T3}, {base + j*1024}")
                    E(f"s_add_u32 s{S_T1}, s{S_T0}, {j*8192 + (t//2)*512}")
                    E.vmem(f"buffer_load_dwordx4 v26, {s(S_WO,4)}, s{S_T1} offen lds", tag=("u", n))
            else:
                (m, p, xy), o2 = u
                assert xy == 0 and o2 == (m, p, 1)
                E(f"s_xor_b32 s{S_T0}, s{S_W}, {p}\n s_lshl_b32 s{S_T0}, s{S_T0}, 19")
                for j in range(4):
                    E(f"s_add_u32 m0, s{S_T3}, {base + j*1024}")
                    E(f"s_add_u32 s{S_T1}, s{S_T0}, {16*j*8192}")
                    E.vmem(f"buffer_load_dwordx4 v25, {s(srd[m],4)}, s{S_T1} offen lds", tag=("u", n))
        def consume(n):
            u = units[n]; base = slot[n] * 4096
            E.need(tags=[("u", n)])
            for k, o in enumerate(u):
                dst = RES_REG[o] if o in RES_REG else 64 + 8 * k
                for hi in range(2):
                    for lo in range(2):
                        if o[0] == "o":
                            E.ds(f"ds_read_b64_tr_b16 {r(dst + 4*hi + 2*lo, 2)}, v28 offset:{base + (8*hi + 2*lo)*128 + k*8}")
                        else:
                            E.ds(f"ds_read_b64_tr_b16 {r(dst + 4*hi + 2*lo, 2)}, v{36 if k else 27} offset:{base + hi*1024 + lo*(128 if fine else 64)}")
            E.drain(lg=True)
            if u[0] not in RES_REG:
                for k, o in enumerate(u):
                    assert LDS_SLOT[o] * 2048 == base + k * 2048
                    for hf in range(2):
                        E.ds(f"ds_write_b128 v{WOP}, {v(64 + 8*k + 4*hf, 4)} offset:{base + k*2048 + hf*1024}")
                E.drain(lg=True)
        for n in range(2):
            issue(n)
        E(f"v_mov_b32 v{IDX}, 0x4444\n v_mov_b32 v1, 0xeeee\n v_cmp_lt_u32 vcc, 7, v22\n s_nop 1\n v_cndmask_b32 v32, v{IDX}, v1, vcc")
        E(f"v_mov_b32 v{IDX}, v32")
        E(f"v_and_b32 v32, 7, v20\n v_lshlrev_b32 v32, 4, v32\n v_lshl_add_u32 v{OB}, v21, 7, v32\n v_xor_b32 v{YRD}, 128, v{L16}")
        E(f"v_lshl_add_u32 v33, v24, 4, v22\n s_lshl_b32 s{S_T0}, s{S_W}, 5\n v_add_u32 v33, s{S_T0}, v33\n v_lshlrev_b32 v33, 3, v33")
        E(f"v_mul_u32_u24 v34, {MHS}, v23\n v_add_u32 v{QW}, v33, v34")
        E(f"v_bfe_u32 v33, v20, 2, 2\n v_lshl_add_u32 v33, v23, 2, v33\n v_lshl_add_u32 v33, v24, 4, v33\n v_lshlrev_b32 v33, 3, v33")
        E(f"v_and_b32 v34, 1, v20\n v_mul_u32_u24 v34, {MHS}, v34\n v_add_u32 v{TR}, v33, v34")
        E(f"s_lshl_b32 s{S_T0}, s{S_W}, 3\n v_lshrrev_b32 v33, 3, v20\n v_add_u32 v33, s{S_T0}, v33")
        E(f"v_mul_u32_u24 v34, {self.opt['swz']}, v33\n v_add_u32 v34, s{S_H}, v34\n v_and_b32 v34, 31, v34")
        E(f"v_lshrrev_b32 v37, {1 if fine else 0}, v32\n v_lshl_add_u32 v33, v33, 13, v37\n v_lshl_add_u32 v{PS}, v34, 7, v33")
        E("v_and_b32 v37, 1, v20\n v_bfe_u32 v38, v20, 1, 1\n v_lshl_add_u32 v37, v29, 1, v37")
        E(f"s_lshr_b32 s{S_T0}, s{S_H}, 3\n s_lshl_b32 s{S_T0}, s{S_T0}, 10\n s_and_b32 s{S_T1}, s{S_H}, 1\n s_lshl_b32 s{S_T1}, s{S_T1}, 9\n s_add_u32 s{S_T0}, s{S_T0}, s{S_T1}")
        E(f"s_and_b32 s{S_T1}, s{S_H}, 6\n s_lshl_b32 s{S_T1}, s{S_T1}, 5\n s_add_u32 s{S_T0}, s{S_T0}, s{S_T1}")
        E(f"v_lshlrev_b32 v33, 4, v21\n v_lshl_add_u32 v33, v{37 if fine else 31}, 2, v33\n v_lshl_add_u32 v33, v{38 if fine else 29}, 8, v33\n v_lshl_add_u32 v33, v30, 30, v33\n v_add_u32 v{MP}, s{S_T0}, v33")
        E(f"v_mov_b32 v{LDX}, v{L16}")
        line = self.opt["line"]
        if line:
            assert fine
            if line == 2: E("v_bfe_u32 v39, v20, 3, 2\n v_lshrrev_b32 v63, 5, v20")
            else: E("v_mov_b32 v39, v21\n v_mov_b32 v63, v30")
            E(f"v_lshlrev_b32 v33, 5, v39\n v_lshl_add_u32 v33, v38, 4, v33\n v_lshl_add_u32 v33, v37, 2, v33\n v_lshl_add_u32 v33, v63, 30, v33")
            E(f"s_lshl_b32 s{S_T0}, s{S_H}, 7\n v_add_u32 v{MP}, s{S_T0}, v33")
            E(f"v_bfe_u32 v33, v20, 2, 2\n v_lshl_add_u32 v33, v33, 1, v24\n v_lshl_add_u32 v34, v31, 1, v23\n v_lshlrev_b32 v34, 4, v34\n v_lshl_add_u32 v{LDX}, v33, 7, v34")
        else:
            E("v_mov_b32 v39, v21")
        E(f"s_lshr_b32 s{S_T0}, s{S_H}, 2\n s_lshl_b32 s{S_T0}, s{S_T0}, 6\n s_and_b32 s{S_T1}, s{S_H}, 1\n s_lshl_b32 s{S_T1}, s{S_T1}, 5\n s_add_u32 s{S_T0}, s{S_T0}, s{S_T1}")
        E(f"s_and_b32 s{S_T1}, s{S_H}, 2\n s_lshl_b32 s{S_T1}, s{S_T1}, 11\n s_add_u32 s{S_T0}, s{S_T0}, s{S_T1}")
        E(f"v_lshlrev_b32 v35, 10, v39\n v_lshl_add_u32 v35, v{37 if fine else 31}, {2 if fine else 1}, v35\n v_lshl_add_u32 v35, v{38 if fine else 29}, 4, v35\n v_add_u32 v35, s{S_T0}, v35")
        for k in range(4):
            E.vmem(f"buffer_load_ushort v{44+k}, v35, s[76:79], 0 offen offset:{(k >> 1)*512 + (k & 1)*(2 if fine else 8)}")
        E(f"v_lshlrev_b32 v33, 4, v{38 if line == 2 else 29}\n v_mov_b32 v34, 0x3f80\n v_lshlrev_b32 v33, v33, v34\n v_and_b32 v34, 1, v20\n v_lshl_add_u32 v34, v34, 1, v{29 if line == 2 else 30}")
        for a_ in range(4):
            E(f"v_cmp_eq_u32 vcc, {a_}, v34\n s_nop 1\n v_cndmask_b32 v{48+a_}, 0, v33, vcc")
        E.ds(f"ds_write_b128 v{L16}, v[48:51] offset:{L_SEL}")
        E(f"v_lshlrev_b32 v33, 9, v21\n s_lshl_b32 s{S_T0}, s{S_W}, 11\n v_add_u32 v33, s{S_T0}, v33")
        E(f"v_lshl_add_u32 v{VD}, v22, 4, v33")
        E(f"v_lshl_add_u32 v33, v30, 8, v33\n v_add_u32 v{KD}, v33, v32")
        for i in range(4): E(f"v_mov_b32 v{ONES+i}, 0x3f803f80")
        E(f"s_mov_b32 s{S_ONE}, 0x3f803f80\n s_mov_b32 s{S_ONE+1}, 0x3f803f80\n s_mov_b32 s{S_PRG}, 0")
        if self.merged:
            E(f"v_and_b32 v33, 1, v20\n v_mul_u32_u24 v33, {(self.merged['r2'] - self.merged['r1'])*128}, v33\n v_min_u32 v34, 1, v20\n v_lshlrev_b32 v34, 30, v34")
            E(f"s_cmp_eq_u32 s{S_W}, 3\n s_cselect_b64 vcc, -1, 0\n v_cndmask_b32 v19, v34, v33, vcc\n v_mov_b64 v[60:61], 0\n v_mov_b32 v62, {L_FLG}")
            E.ds("ds_write_b64 v62, v[60:61]")
        E(f"s_mov_b32 s{S_HI}, 0\n s_mov_b32 s{S_HI+1}, -1")
        E(f"s_mov_b32 s{S_SCALE}, {hex(fbits(math.log2(math.e) / math.sqrt(128.0)))}")
        lo, hi = fbits(2.0 ** -32), fbits(2.0 ** 48)
        E(f"s_mov_b32 s{S_LO}, {hex(lo)}\n s_mov_b32 s{S_RNG}, {hex(hi - lo)}")
        E(f"s_lshl_b32 s{S_T0}, s{S_W}, 10")
        E(f"s_add_u32 s{S_MK0}, s{S_T0}, {L_KX}\n s_add_u32 s{S_MK1}, s{S_T0}, {L_KX + 4096 - 128}")
        E(f"s_add_u32 s{S_MV0}, s{S_T0}, {L_VX}\n s_add_u32 s{S_MV1}, s{S_T0}, {L_VX + 4096 - 256}")
        E(f"s_lshl_b32 s{S_T0}, s{S_H}, 19\n s_add_u32 s{S_KD}, s{S_T0}, {KB}\n s_add_u32 s{S_VD}, s{S_T0}, {VB}")
        E(f"s_mul_i32 s{S_T0}, s{S_H}, {KMB}\n s_add_u32 s{S_KE}, s{S_T0}, {KM - (32*KMB if self.opt['defer'] else 0)}")
        E(f"s_lshl_b32 s{S_T0}, s{S_H}, 13\n s_add_u32 s{S_IN0}, s{S_T0}, {INBOX}\n s_add_u32 s{S_IN1}, s{S_T0}, {INBOX + 4096}")
        E(f"s_mov_b32 s{S_PST0}, {INBOX}\n s_mov_b32 s{S_PST1}, {INBOX + 4096}")
        for i in range(4): E(f"v_mov_b32 v{40+i}, -1")
        E(f"s_lshl_b32 s{S_T0}, s{S_W}, 13\n s_add_u32 s{S_T0}, s{S_T0}, {MEMS}\n s_add_u32 s{S_T1}, s{S_T0}, 4096")
        for ins in (f"buffer_store_dwordx4 v[40:43], v{WL16}, {ws()}, s{S_IN0} offen sc1", f"buffer_store_dwordx4 v[40:43], v{WL16}, {ws()}, s{S_IN1} offen sc1",
                    f"buffer_store_dword v40, v{MP}, {ws()}, s{S_T0} offen sc1", f"buffer_store_dword v40, v{MP}, {ws()}, s{S_T1} offen sc1"):
            E.vmem(ins, tag="init")
        if self.merged:
            E(f"v_mov_b32 v52, 0\n v_min_u32 v53, 1, v{WL16}\n v_lshlrev_b32 v53, 30, v53")
            E.vmem(f"buffer_store_dword v52, v53, {ws()}, s{S_FLG} offen sc1", tag="init")
        for n in range(2, WIN):
            issue(n)
        for n in range(32):
            consume(n)
            if n + WIN < 32:
                issue(n + WIN)
            if self.diag and n in (0, 13, 31 - WIN): tmark(E, {0: 2, 13: 3, 31 - WIN: 4}[n])
            if n == 2:
                assert not E.need("v[44:47]", tags=["init"])
                E("s_barrier")
                skip = E.label("T_arm")
                E(f"s_cmp_lg_u32 s{S_W}, 0\n s_cbranch_scc1 {skip}")
                E(f"s_getreg_b32 s{S_T0}, hwreg(HW_REG_XCC_ID, 0, 3)\n s_lshl_b32 s{S_T0}, s{S_T0}, 3\n s_lshl_b64 s[60:61], 1, s{S_T0}\n s_mov_b32 s62, 1")
                E(f"s_atomic_add_x2 s[60:61], s[{S_DBG}:{S_DBG+1}], 0")
                if self.merged: E(f"s_atomic_add s62, s[{S_DBG}:{S_DBG+1}], {self.merged['init_off']}")
                E("v_lshl_or_b32 v44, v45, 16, v44\n v_lshl_or_b32 v46, v47, 16, v46\n v_min_u32 v44, -2, v44\n v_min_u32 v46, -2, v46")
                E(f"s_mov_b32 s{S_T0}, {MEMS}\n s_mov_b32 s{S_T1}, {MEMS + 4096}")
                E(f"buffer_store_dword v44, v{MP}, {ws()}, s{S_T0} offen sc1\n buffer_store_dword v46, v{MP}, {ws()}, s{S_T1} offen sc1")
                E(skip + ":")
            ldc = ["buffer_load_dwordx2 v[54:55], off, s[72:75], 0 sc1"]
            if self.merged: ldc.append(f"buffer_load_dword v56, off, s[72:75], 0 offset:{self.merged['init_off']} sc1")
            if n == 30 - 2*WIN:
                for x in ldc: E.vmem(x)
            if n == 31 - WIN:
                assert not E.need("v[54:56]")
                lp, go = E.label("T_arr"), E.label("T_arrgo")
                E(f"s_mov_b32 s{S_CNT}, 0\n s_branch {go}")
                E(lp + ":")
                E(f"s_add_u32 s{S_CNT}, s{S_CNT}, 1\n s_cmp_gt_u32 s{S_CNT}, {POLL_MAX}\n s_cbranch_scc1 {fail}")
                for x in ldc: E(x)
                E("s_waitcnt vmcnt(0)")
                E(go + ":")
                E(f"v_sad_u8 v57, v54, 0, 0\n v_sad_u8 v57, v55, 0, v57\n v_or_b32 v58, v54, v55\n v_cmp_gt_u32 vcc, 32, v57\n s_cbranch_vccnz {lp}")
                if self.merged: E(f"v_cmp_gt_u32 vcc, 0x100, v56\n s_cbranch_vccnz {lp}")
                E(f"v_readfirstlane_b32 s{S_T0}, v58\n s_nop 0\n s_and_b32 s{S_T0}, s{S_T0}, 0x20202020\n s_cselect_b32 s{S_MODE}, 0, 1")
                if self.merged:
                    E(f"s_mov_b32 s{S_STEP}, -1\n s_mov_b32 s{S_RDY}, -1")
                    self.wait_kv(fail)
                    if self.diag: tmark(E, 6)
                for x in self.dma_list():
                    E(x[0]); E("s_nop 0"); E.vmem(x[1], tag="dma")
                self.dma_adv()
                E(f"s_lshl_b32 s{S_T0}, s{S_H}, 10\n s_add_u32 s{S_T0}, s{S_T0}, {MEMS}")
                E.vmem(f"buffer_load_dwordx4 v[40:43], v{L16}, {ws()}, s{S_T0} offen sc1")
        if self.diag: tmark(E, 5)
        E.drain(vm=True, lg=True)
        E("s_barrier")
        if self.merged: E(f"s_cmp_ge_u32 s{S_W}, 2\n s_cselect_b64 vcc, -1, 0\n v_cndmask_b32 v{XTR}, v{MP}, v19, vcc")
        self.prefetch_p(); self.prefetch_vx(); self.prefetch_kx()
        E(f"s_and_b32 s{S_T0}, s{S_W}, 1\n s_lshl_b32 s{S_T0}, s{S_T0}, 12\n s_add_u32 s{S_IN0}, s{S_IN0}, s{S_T0}\n s_add_u32 s{S_MB}, s{S_T0}, {MEMS}")
        E(f"s_mov_b32 s{S_STEP}, -1")
        self.step_scalars()
        E.drain(lg=True)

    def wait_kv(self, fail):
        E = self.E; M = self.merged
        lp, ok = E.label("T_kv"), E.label("T_kvok")
        E(f"s_mov_b32 s{S_CNT}, 0")
        E(f"s_branch {ok}")
        E(lp + ":")
        E("s_sleep 4")
        E(f"s_add_u32 s{S_CNT}, s{S_CNT}, 1\n s_cmp_gt_u32 s{S_CNT}, {POLL_MAX}\n s_cbranch_scc1 {fail}")
        E(ok + ":")
        E(f"s_add_u32 s{S_T3}, s{S_KVF}, {(M['r2'] - M['r1'])*128}\n s_mov_b32 s{S_T2}, 0\n s_mov_b32 s{S_T1}, 0")
        E(f"s_atomic_or s{S_T2}, s[{S_WSP}:{S_WSP+1}], s{S_KVF} glc\n s_atomic_or s{S_T1}, s[{S_WSP}:{S_WSP+1}], s{S_T3} glc\n s_waitcnt lgkmcnt(0)")
        self.kv_ready()
        E(f"s_cmp_ge_i32 s{S_STEP}, s{S_RDY}\n s_cbranch_scc1 {lp}")

    def kv_ready(self):
        E = self.E; M = self.merged
        E(f"s_add_u32 s{S_T1}, s{S_T1}, {M['n1']}\n s_cmp_ge_u32 s{S_T2}, {M['n1']}\n s_cselect_b32 s{S_T2}, s{S_T1}, s{S_T2}")
        E(f"s_cmp_ge_u32 s{S_T2}, 64\n s_cselect_b32 s{S_T2}, 100, s{S_T2}\n s_sub_u32 s{S_T2}, s{S_T2}, 1\n s_max_i32 s{S_RDY}, s{S_RDY}, s{S_T2}")

    def kv_refresh(self):
        E = self.E
        E(f"ds_read_b64 {v(KX(2),2)}, v{L16} offset:{L_FLG}\n s_waitcnt lgkmcnt(0)")
        E(f"v_readfirstlane_b32 s{S_T2}, v{KX(2)}\n v_readfirstlane_b32 s{S_T1}, v{KX(2)+1}\n s_nop 0")
        self.kv_ready()

    def dma_list(self):
        return [(f"s_mov_b32 m0, s{S_MK0}", f"buffer_load_dwordx4 v{KD}, {ws()}, s{S_KD} offen sc1 lds"),
                (f"s_mov_b32 m0, s{S_MK1}", f"buffer_load_dwordx4 v{KD}, {ws()}, s{S_KD} offen offset:128 sc1 lds"),
                (f"s_mov_b32 m0, s{S_MV0}", f"buffer_load_dwordx4 v{VD}, {ws()}, s{S_VD} offen sc1 lds"),
                (f"s_mov_b32 m0, s{S_MV1}", f"buffer_load_dwordx4 v{VD}, {ws()}, s{S_VD} offen offset:256 sc1 lds")]

    def dma_adv(self):
        self.E(f"s_add_u32 s{S_KD}, s{S_KD}, 8192\n s_add_u32 s{S_VD}, s{S_VD}, 8192")

    def rd_op(self, o, half, reg):
        return f"ds_read_b128 {v(reg + 4*half, 4)}, v{WOP} offset:{LDS_SLOT[o]*2048 + half*1024}"

    def p_list(self):
        return [self.rd_op(o, hf, P_REG[o]) for o in sorted(P_OPS, key=lambda o: P_REG[o]) for hf in range(2)]

    def prefetch_p(self):
        for x in self.p_list(): self.E.ds(x)

    def prefetch_vx(self):
        for j in range(2):
            self.E.ds(f"ds_read_b128 {v(VX + 4*j, 4)}, v{WL16} offset:{L_VX + 4096*j}")

    def prefetch_kx(self):
        for f in range(8):
            self.E.ds(f"ds_read_b128 {v(KX(f), 4)}, v{L16} offset:{L_KX + 1024*f}")

    def zero_acc(self):
        for i in range(6):
            self.E(f"v_mov_b64 {v(AQ + 2*i, 2)}, 0")

    def scalar_list(self):
        if self.opt["rearm"]:
            return [f"s_and_b32 s{S_PH}, s{S_STEP}, 1", f"s_add_u32 s{S_T0}, s{S_STEP}, 1", f"s_and_b32 s{S_T0}, s{S_T0}, 3", f"s_lshl_b32 s{S_T0}, s{S_T0}, 13",
                    f"s_add_u32 s{S_PUB}, s{S_T0}, s{S_MB}", f"s_xor_b32 s{S_MRE}, s{S_PUB}, 0x4000",
                    f"s_add_u32 s{S_MEM0}, s{S_T0}, {MEMS}", f"s_add_u32 s{S_MEM1}, s{S_T0}, {MEMS + 4096}", "s_nop 0"]
        return [f"s_and_b32 s{S_PH}, s{S_STEP}, 1", f"s_and_b32 s{S_T0}, s{S_STEP}, 3", f"s_lshl_b32 s{S_T0}, s{S_T0}, 13",
                f"s_add_u32 s{S_MRE}, s{S_T0}, s{S_MB}", f"s_add_u32 s{S_T0}, s{S_T0}, 8192", f"s_and_b32 s{S_T0}, s{S_T0}, 0x7fff",
                f"s_add_u32 s{S_MEM0}, s{S_T0}, {MEMS}", f"s_add_u32 s{S_MEM1}, s{S_T0}, {MEMS + 4096}",
                f"s_add_u32 s{S_PUB}, s{S_T0}, s{S_MB}"]

    def step_scalars(self):
        for x in self.scalar_list(): self.E(x)

    def run(self, prog, first_need=True):
        E = self.E
        if first_need:
            E.need(*prog[0][1])
        for n, (ins, _, fill) in enumerate(prog):
            E(ins)
            l0 = len(E.lines)
            toks = list(prog[n + 1][1]) if n + 1 < len(prog) else []
            tags = []
            for f in fill:
                if isinstance(f, tuple) and f[0] == "need":
                    toks += list(f[1]); tags += list(f[2])
            E.need(*toks, tags=tags)
            for f in fill:
                if isinstance(f, tuple) and f[0] == "nop":
                    k = f[1] - len([x for x in E.lines[l0:] if hazard.parse(x) and "memtime" not in x])
                    if k > 0: E(f"s_nop {k - 1}")
                else:
                    self.put(f)

    def put(self, f):
        E = self.E
        if callable(f):
            f()
        elif isinstance(f, tuple):
            if f[0] == "need":
                return
            (E.ds if f[0].startswith("ds_") else E.vmem)(f[0], tag=f[1])
        elif f.startswith("ds_"):
            E.ds(f)
        elif f.startswith("buffer_"):
            E.vmem(f)
        else:
            E(f)

    def loops(self, mode, done, fail, xsc=""):
        E = self.E
        labs = [E.label("T_w") for _ in range(4)]
        for w in range(1, 4): E(f"s_cmp_eq_u32 s{S_W}, {w}\n s_cbranch_scc1 {labs[w]}")
        errs = []
        for w in range(4):
            E(labs[w] + ":")
            errs += self.loop(mode, w, done, fail, xsc)
        return errs

    def loop(self, mode, w, done, fail, xsc=""):
        E = self.E
        O = self.opt
        sc = " sc1" if mode else ""
        self.nst = 0; self.names = []
        cvt = lambda d, a0: f"v_cvt_pk_bf16_f32 v{d}, v{a0}, v{a0+1}"
        zero = lambda d: f"v_mov_b64 {v(d,2)}, 0"
        st = lambda name: (lambda: self.stamp(name))
        ror = lambda d, x: f"v_mov_b32_dpp v{d}, v{x} row_ror:8 row_mask:0xf bank_mask:0xf"
        def smf(d, a_, b_, first): return f"v_mfma_f32_16x16x32_bf16 {v(d,4)}, {v(a_,4)}, {v(b_,4)}, {'0' if first else v(d,4)}"
        cntchk = f"s_add_u32 s{S_CNT}, s{S_CNT}, 1\n s_cmp_gt_u32 s{S_CNT}, {POLL_MAX}\n s_cbranch_scc1 {fail}"
        NS = O["h2sets"]
        FR = {(0,0): 14, (0,1): 13, (1,0): 4, (1,1): 5, (2,0): 8, (2,1): 13, (3,0): 6, (3,1): 7,
              (4,0): 12, (4,1): 14, (5,0): 9, (5,1): 10, (6,0): 11, (6,1): 4, (7,0): 5, (7,1): 8}
        H0, Y0, H1, Y4 = Q(14), Q(13), Q(12), Q(14)
        one = O["one"]
        if one:
            FR = {(0,0): 14, (0,1): 13, (4,0): 12, (4,1): 4, (1,0): 8, (1,1): 13, (2,0): 6, (2,1): 7,
                  (3,0): 12, (3,1): 14, (5,0): 9, (5,1): 10, (6,0): 11, (6,1): 4, (7,0): 5, (7,1): 8}
            Y4 = Q(4)
        ld0 = f"buffer_load_dwordx4 {v(H0,4)}, v{LDX}, {ws()}, s{S_MEM0} offen offset:{1024*w} sc1"
        ld1 = f"buffer_load_dwordx4 {v(H1,4)}, v{LDX}, {ws()}, s{S_MEM1} offen offset:{1024*w} sc1"
        chk = lambda x, t: [f"v_max3_u32 v{t}, v{x}, v{x+1}, v{x+2}", f"v_max_u32 v{t}, v{t}, v{x+3}", f"v_cmp_eq_u32 vcc, -1, v{t}"]
        if one == 1: ld0 = ld0 + "\n" + ld1
        top, retry = E.label("T_loop"), E.label("T_retry")
        E(f"s_mov_b32 s{S_CNT}, 0")
        self.zero_acc()
        PSCH = O["psch"]
        if one == 2: NS = len(PSCH) - 1
        if one == 2: E(ld0)
        for k in range(NS): E(ld1 if one == 2 else ld0)
        E(f"s_branch {top}")
        E(".p2align 6")
        lal = len(E.lines)
        E(retry + ":")
        if O["h2mask"]: E("s_mov_b64 exec, vcc")
        E(ld0)
        if O["h2mask"]: E("s_mov_b64 exec, -1")
        E(cntchk)
        if one == 2: E(ld1 + f"\n s_waitcnt vmcnt({O['x0d']})")
        E(top + ":")
        E(f"s_waitcnt vmcnt({[NS - 1, 2*NS - 1, NS][one]}) lgkmcnt(0)")
        body0 = len(E.lines)
        wr = lambda x, u, k=None: (f"ds_write_b128 v{L16}, {v(x,4)} offset:{L_MEM + 4096*u + 1024*w}" if k is None else
                                   f"ds_write_b64 v{L16}, {v(x+2*k,2)} offset:{L_MEM + 4096*u + 1024*w + 8*k}")
        if one == 2:
            for x in chk(H0, Y0 + 3): E(x)
            E(ror(Y0, H0)); E(ror(Y0 + 1, H0 + 1))
            E(f"s_cbranch_vccnz {retry}")
            f1 = [x[1] for x in PSCH].index(1)
            E.lg = []; E.vm = [{"poll"} | ({"p0"} if k == f1 else set()) for k in range(1, NS + 1)]
        elif one:
            t = Y0 + 3
            E(f"v_max3_u32 v{t}, v{H0}, v{H0+1}, v{H0+2}\n v_max_u32 v{t}, v{t}, v{H0+3}")
            E(ror(Y0, H0)); E(ror(Y0 + 1, H0 + 1))
            E(f"s_waitcnt vmcnt({2*NS - 2})")
            E(f"v_max3_u32 v{t}, v{t}, v{H1}, v{H1+1}\n v_max3_u32 v{t}, v{t}, v{H1+2}, v{H1+3}\n v_cmp_eq_u32 vcc, -1, v{t}")
            E(f"s_cbranch_vccnz {retry}")
            E.lg = []; E.vm = [{"poll"}] if NS > 1 else []
        else:
            for x in chk(H0, Y0 + 3): E(x)
            E(f"s_cbranch_vccnz {retry}")
            E.lg = []; E.vm = []
            E.ds(wr(H0, 0), tag="e0w")
            E(ror(Y0, H0)); E(ror(Y0 + 1, H0 + 1))
        if self.stamps: E(f"s_mov_b32 s95, s{S_CNT}")
        self.stamp("hop2")
        def F(p, xy): return f"ds_read_b128 {v(Q(FR[p, xy]),4)}, v{YRD if xy else L16} offset:{L_MEM + 1024*(p ^ w)}"
        opreg = dict(RES_REG); opreg.update(P_REG)
        for n, o in enumerate(J_OPS): opreg[o] = Q(2 * (n & 1))
        acc = dict(q=AQ, k=AK, v=AV)
        def sm(m, p, xy):
            return (f"v_smfmac_f32_16x16x64_bf16 {v(acc[m],4)}, {v(Q(FR[p, xy]),4)}, {r(opreg[m, p, xy],8)}, v{IDX}",
                    (v(Q(FR[p, xy]), 4), r(opreg[m, p, xy], 8)))
        seq = [(m, p, xy) for p in range(3) for xy in range(2) for m in "qkv"]
        seq += [(m, p, xy) for p in (3, 4) for xy in range(2) for m in "qk"]
        seq += [(m, p, xy) for m in "qk" for p in (5, 6, 7) for xy in range(2)]
        seq += [("v", p, xy) for p in range(3, 8) for xy in range(2)]
        if one:
            seq = [(m, p, xy) for p in (0, 4, 1) for xy in range(2) for m in "qkv"]
            seq += [(m, p, xy) for m in "qkv" for p in (2, 3, 5, 6, 7) for xy in range(2)]
        J = lambda n, hf: self.rd_op(J_OPS[n], hf, Q(2 * (n & 1)))
        PQ, PK = Q(13), Q(13) + 2
        PV_ = PQ
        mul = lambda i: f"v_mul_f32 v{AQ+i}, s{S_SCALE}, v{AQ+i}"
        c1 = chk(H1, Q(4) + 3 if one else Q(9))
        dma = self.dma_list()
        sal = self.scalar_list()
        late, lateok = E.label("T_late"), E.label("T_lateok")
        KF = [Q(12), Q(14), Q(9), Q(10)]
        WA = [Q(6), Q(7), KX(0), KX(1)]
        trq = [f"ds_read_b64_tr_b16 {v(Q(kk) + 2*hi, 2)}, v{TR} offset:{L_QM + (32*kk + 8*hi)*8}" for kk in range(4) for hi in range(2)]
        trk = [f"ds_read_b64_tr_b16 {v(KF[kk] + 2*hi, 2)}, v{TR} offset:{L_KM + (32*kk + 8*hi)*8}" for kk in range(4) for hi in range(2)]
        zl = [zero(WA[k >> 1] + 2*(k & 1)) for k in range(8)]
        fill = {n: [] for n in range(48)}
        kvw, kvb = E.label("T_kvw"), E.label("T_kvb")
        adv = "0x10000000" if O.get("noadv") == 2 else 8192
        if one:
            if one == 2:
                fill[0] = [f"s_add_u32 s{S_STEP}, s{S_STEP}, 1", (wr(H0, 0), "e0w"), ror(Y0 + 2, H0 + 2)]
                fill[1] += [sal[0]] + ([(ld1 + " ; repoll", "poll")] if O["xpoll"] else []) + [ror(Y0 + 3, H0 + 3)]
                fill[2] += [sal[1], J(0,0), sal[2]]; fill[3] += [sal[3], J(0,1), sal[4]]
                fill[4] += [("need", [], ["p0"]), J(1,0), c1[0]]
                fill[5] += [sal[5], J(1,1), c1[1], c1[2], f"s_cbranch_vccnz {late}", lateok + ":"]
                fill[6] += [(wr(H1, 1), "h1w"), ror(Y4, H1), ror(Y4 + 1, H1 + 1)]
                fill[7] += [("need", [], ["e0w"]), "s_barrier", F(1,0), ror(Y4 + 2, H1 + 2), ror(Y4 + 3, H1 + 3)]
                fill[8] += [dma[0][0], F(1,1)]
                fill[11] += [("need", [], ["h1w"]), "s_barrier"]
                for n, x in {22: J(2,0), 23: J(2,1), 24: J(3,0), 25: J(3,1), 30: J(4,0), 31: J(4,1), 32: J(5,0), 33: J(5,1)}.items():
                    fill[n].append(x)
            else:
                b1 = O["b1one"]
                if O["wkind"] == 128:
                    fill[0].append(wr(H0, 0)); fill[O["w2at"]].append((wr(H1, 1), "e0w"))
                else:
                    for k in range(4): fill[k].append((wr(H1 if k > 1 else H0, k >> 1, k & 1), "e0w"))
                fill[0] = [f"s_add_u32 s{S_STEP}, s{S_STEP}, 1"] + fill[0] + [ror(Y0 + 2, H0 + 2)]
                fill[1] += [ror(Y0 + 3, H0 + 3)]
                for n, x in {4: J(0,0), 5: J(0,1), 6: J(1,0), 10: J(1,1), 22: J(2,0), 23: J(2,1), 24: J(3,0), 25: J(3,1),
                             30: J(4,0), 31: J(4,1), 32: J(5,0), 33: J(5,1)}.items():
                    fill[n].append(x)
                for k in range(4): fill[3 + k].append(ror(Y4 + k, H1 + k))
                for k in range(6): fill[1 + k].insert(0, sal[k])
                fill[b1] = [("need", [], ["e0w"]), "s_barrier", F(1,0)] + fill[b1]
                fill[b1 + 1] = [dma[0][0], F(1,1)] + fill[b1 + 1]
            for k, (p, xy) in enumerate([(p, xy) for p in (2, 3, 5, 6, 7) for xy in range(2)]): fill[12 + k].append(F(p, xy))
            fill[14].insert(0, ("need", [], ["poll"]))
            if self.merged: fill[9] += [f"s_cmp_ge_i32 s{S_STEP}, s{S_RDY}", f"s_cbranch_scc1 {kvw}", kvb + ":"]
            vq = [[(dma[k][1], "dma")] + [dma[k + 1][0] if k < 3 else None] for k in range(4)]
            if O["defer"]:
                ex_ = [f"buffer_store_dwordx4 {v(ONES,4)}, v{L16}, {ws()}, s{S_KE} offen offset:{1024*w}{xsc}", f"s_add_u32 s{S_KE}, s{S_KE}, {32*KMB}"]
                vq.insert(0 if O["defer"] == 1 else 4, ex_)
                for k in range(2): fill[36 + k].append(f"v_mov_b64 {v(ONES + 2*k, 2)}, s[{S_ONE}:{S_ONE+1}]")
            if self.merged and w == 2:
                fill[18].append(f"v_mov_b32 v{PK}, s{S_PRG}")
                vq.append([f"buffer_store_dword v{PK}, v{XTR}, {ws()}, s{S_FLG} offen sc1", f"s_add_u32 s{S_PRG}, s{S_STEP}, {0 if O['defer'] else 1}"])
            if self.merged and w == 3:
                [x for x in vq if x[0] == (dma[3][1], "dma")][0][1] = f"s_mov_b32 m0, {L_FLG}"
                vq.append([f"buffer_load_dword v{XTR}, {ws()}, s{S_KVF} offen sc1 lds", None])
            for k, (x, y) in enumerate(vq):
                n = O["dma1"] + w + 4 * k
                fill[n].append(x)
                if y: fill[n + 1].append(y)
            fill[27] += sal[6:8]; fill[28] += sal[8:9]
            for k in range(4): fill[30 + k].append(mul(k))
            fill[34].append(cvt(PQ, AQ)); fill[35].append(cvt(PQ + 1, AQ + 2))
            fill[36].insert(0, (f"ds_write_b64 v{QW}, {v(PQ,2)} offset:{L_QM}", "qw"))
        else:
            b1 = O["b1at"]; hc = O["h1chk"]; b1b = O["b1bat"]
            fill[0] += [f"s_add_u32 s{S_STEP}, s{S_STEP}, 1"]
            fill[O["ld1at"]].append(ld1)
            fill[0] += [ror(Y0 + 2, H0 + 2)]
            fill[1] += [sal[0], J(0,0), ror(Y0 + 3, H0 + 3)]
            fill[b1] += [("need", [], ["e0w"]), "s_barrier", F(1,0)]
            fill[b1 + 1] += [F(1,1)]
            for n, x in {5: F(2,0), 6: J(0,1), 7: F(2,1), 8: J(1,0), 9: J(1,1), 10: F(3,0), 11: F(3,1), 15: J(2,0), 16: J(2,1),
                         19: J(3,0), 20: J(3,1), 28: J(4,0), 29: J(4,1), 30: J(5,0), 31: J(5,1)}.items():
                fill[n].append(x)
            for k, n in enumerate((4, 6, 7, 9, 10)): fill[n].insert(0, sal[1 + k])
            fill[hc] = [("need", [v(H1, 4)], [])] + fill[hc] + [c1[0]]
            fill[hc + 1].append(c1[1]); fill[hc + 2].append(c1[2])
            fill[hc + 3] = [f"s_cbranch_vccnz {late}", lateok + ":", f"ds_write_b64 v{L16}, {v(H1,2)} offset:{L_MEM + 4096 + 1024*w}"] + fill[hc + 3]
            fill[hc + 4] = [(f"ds_write_b64 v{L16}, {v(H1+2,2)} offset:{L_MEM + 4096 + 1024*w + 8}", "h1w")] + fill[hc + 4]
            for k in range(4): fill[hc + 4 + k].append(ror(Y4 + k, H1 + k))
            fill[b1b] = [("need", [], ["h1w"]), "s_barrier", F(5,0)] + fill[b1b]
            for k, (p, xy) in enumerate(((5,1), (6,0), (6,1), (7,0), (7,1))): fill[b1b + 1 + k].append(F(p, xy))
            if self.merged:
                fill[12] += [f"s_cmp_ge_i32 s{S_STEP}, s{S_RDY}", f"s_cbranch_scc1 {kvw}", kvb + ":"]
            d0 = O["dma0"] + w * O["dmaw"]
            fill[13].append(dma[0][0])
            for k in range(4):
                n = d0 + O["dmas"] * k
                fill[n].append((dma[k][1], "dma"))
                if k < 3: fill[n + 1].insert(0, dma[k + 1][0])
            adv = 0 if O.get("noadv") else 8192
            fill[32] = sal[6:8] + fill[32]; fill[33].insert(0, sal[8])
            qc = O["qat"]
            fill[qc] += [mul(0), mul(1)]; fill[qc + 1] += [mul(2), mul(3)]; fill[qc + 2] += [cvt(PQ, AQ), cvt(PQ + 1, AQ + 2)]
            fill[qc + 3].insert(0, (f"ds_write_b64 v{QW}, {v(PQ,2)} offset:{L_QM}", "qw"))
        fill[37] += [st("qk")]
        if self.stamps and not O.get("dumplate"): fill[37] += [lambda: self.dump_stamps(PK), st("dump")]
        fill[38] += [zl[0]]
        fill[39] += [("nop", 2), cvt(PK, AK), cvt(PK + 1, AK + 2)]
        fill[40] += [(f"ds_write_b64 v{QW}, {v(PK,2)} offset:{L_KM}", "kw"), zl[1]]
        exp4 = lambda x: f"buffer_store_dwordx4 {v(x,4)}, v{L16}, {ws()}, s{S_KE} offen offset:{1024*w}{xsc}"
        kadv = f"s_add_u32 s{S_KE}, s{S_KE}, {32*KMB}"
        defer = O["defer"]
        advs = [f"s_add_u32 s{S_KD}, s{S_KD}, {adv}", f"s_add_u32 s{S_VD}, s{S_VD}, {adv}"]
        if O.get("noadv"): advs = [f"s_xor_b32 s{S_KD}, s{S_KD}, 8192", f"s_xor_b32 s{S_VD}, s{S_VD}, 8192"]
        if one:
            fill[41] += [("need", [], ["qw"]), "s_barrier", trq[0]]
            fill[42] += [advs[0]] + trq[1:3]; fill[43] += [advs[1]] + trq[3:5]; fill[44] += ["s_nop 0"] + trq[5:7]
            fill[45] += [trq[7], zl[2]]
            fill[46] += [("need", [], ["kw"]), "s_barrier", trk[0]]
            fill[47] += [trk[1], st("B2")]
        else:
            fill[41] += [zl[2]]
            fill[42] += [("need", [], ["qw"]), "s_barrier", trq[0]]
            fill[43] += [advs[0]] + trq[1:3]
            fill[44] += [advs[1]] + trq[3:5]
            fill[45] += [("need", [], ["kw"]), "s_barrier", trq[5]]
            fill[46] += ["s_nop 0"] + trq[6:8]
            fill[47] += trk[0:2] + [st("B2")]
        for n in O.get("pst", ()): fill[n].insert(0, st(f"n{n}"))
        prog = [sm(*o) + (fill[n],) for n, o in enumerate(seq)]
        SX0, SX1, SM_ = AQ, AK, Q(11)
        TMP, PX, PM, PMM, LA, O0, O1 = Q(8), KX(2), Q(4), KX(3), Q(5), AV, Q(12)
        sq = [(SX0, KX(kk), Q(kk), kk == 0) for kk in range(4)] + [(SM_, KF[kk], Q(kk), kk == 0) for kk in range(4)] \
            + [(SX1, KX(4+kk), Q(kk), kk == 0) for kk in range(4)]
        ex = lambda i, src: f"v_exp_f32 v{TMP+i}, v{src+i}"
        cnds = [f"v_cndmask_b32 v{PMM}, v{PM}, 0, s[{S_HI}:{S_HI+1}]", f"v_cndmask_b32 v{PMM+1}, v{PM+1}, 0, s[{S_HI}:{S_HI+1}]",
                f"v_cndmask_b32 v{PMM+2}, 0, v{PM}, s[{S_HI}:{S_HI+1}]", f"v_cndmask_b32 v{PMM+3}, 0, v{PM+1}, s[{S_HI}:{S_HI+1}]"]
        sf = {n: [] for n in range(12)}
        sf[0] += trk[2:4]; sf[1] += trk[4:6]; sf[2] += trk[6:8]
        sf[3] += [cvt(PV_, AV), cvt(PV_ + 1, AV + 2)]
        sf[4] += ([] if defer else [exp4(PQ)]) + [zl[3]]
        sf[5] += [("nop", 1), zl[4], ex(0, SX0)] if O["ex5"] else [zl[4]]
        e0 = 1 if O["ex5"] else 0
        if O["ex5"]:
            sf[6] += [ex(1, SX0)]; sf[7] += [ex(2, SX0)]; sf[8] += [ex(3, SX0)]
            sf[9] += [cvt(PX, TMP), cvt(PX + 1, TMP + 2)]; sf[10] += [ex(0, SM_)]
        else:
            for k in range(4): sf[6 + k] += [ex(k, SX0)]
            sf[10] += [cvt(PX, TMP), cvt(PX + 1, TMP + 2)]
        last = E.label("T_last")
        if not defer: sf[7].insert(0, kadv)
        sf[8].insert(0, f"s_cmp_eq_u32 s{S_STEP}, 63"); sf[9].insert(0, f"s_cbranch_scc1 {last if defer else done}")
        sf[11] += [ex(k, SM_) for k in range(e0, 4)] + [cvt(PM, TMP), cvt(PM + 1, TMP + 2)] + cnds + [st("S"), ex(0, SX1)]
        prog += [(smf(*x), (v(x[1], 4), v(x[2], 4)), sf[n]) for n, x in enumerate(sq)]
        m16 = lambda d, a_, b_: f"v_mfma_f32_16x16x16_bf16 {v(d,4)}, {v(a_,2)}, {v(b_,2)}, 0"
        pvm = [m16(LA, ONES, PMM), m16(O0, PV_, PMM), m16(O1, PV_, PMM + 2)]
        pvx = [smf(LA, ONES, PX, False), smf(O0, VX, PX, False), smf(O1, VX + 4, PX, False)]
        slow, back = E.label("T_slow"), E.label("T_back")
        OREG = [KX(4), KX(6), Q(2), VX]
        for n, o in enumerate(O_OPS): opreg[o] = OREG[n]
        rdo = [self.rd_op(o, hf, OREG[n]) for n, o in enumerate(O_OPS) for hf in range(2)]
        prog += [(pvm[0], (), [ex(1, SX1)]), (pvm[1], (), [ex(2, SX1)]),
                 (pvm[2], (), [ex(3, SX1), cvt(PX + 2, TMP), cvt(PX + 3, TMP + 2), zl[5], "s_nop 0"]),
                 (pvx[0], (), [zl[6], zl[7]]),
                 (pvx[1], (), rdo[0:2]),
                 (pvx[2], (), ["s_nop 1", f"v_rcp_f32 v{LA+1}, v{LA}", f"v_subrev_u32 v{TMP}, s{S_LO}, v{LA}",
                               f"v_cmp_le_u32 vcc, s{S_RNG}, v{TMP}", f"v_mul_f32 v{O0}, v{LA+1}, v{O0}", f"v_mul_f32 v{O0+1}, v{LA+1}, v{O0+1}",
                               f"s_cbranch_vccnz {slow}", back + ":"])]
        for n in O.get("pst2", ()): prog[n][2].insert(0, st(f"n{n}"))
        self.run(prog, first_need=False)
        OWN = Q(14)
        pkm = lambda x: f"v_pk_mul_f32 {v(x,2)}, {v(x,2)}, {v(LA,2)} op_sel:[0,1] op_sel_hi:[1,1]"
        for x in (cvt(OWN, O0), pkm(O0 + 2), pkm(O1), pkm(O1 + 2), cvt(OWN+1, O0+2), cvt(OWN+2, O1), cvt(OWN+3, O1+2)): E(x)
        E.ds(f"ds_write_b128 v{OB}, {v(OWN,4)} offset:{L_OM + 512*w}", tag="ow")
        self.stamp("PV")
        E("s_nop 0")
        OF = [OWN, Q(9), Q(10), Q(0)]
        SEL, RD, TG = Q(12), Q(13), KX(3)
        U0, U1 = AQ, AK
        so = lambda p, t: (f"v_smfmac_f32_16x16x64_bf16 {v(WA[t],4)}, {v(OF[p],4)}, {r(opreg[('o',p,t)],8)}, v{IDX}",
                           (v(OF[p], 4), r(opreg[('o', p, t)], 8)))
        tag = lambda x: f"v_bfi_b32 v{x}, 1, s{S_PH}, v{x}"
        oq = [(0, t) for t in range(4)] + [(p, t) for p in (1, 2, 3) for t in (0, 1)] + [(p, t) for p in (1, 2, 3) for t in (2, 3)]
        if O["fine"]: oq = oq[:4] + [(p, t) for t in range(4) for p in (1, 2, 3)]
        of = {n: [] for n in range(16)}
        nb3 = O["b3at"]
        of[nb3] = [("need", [], ["ow"]), "s_barrier"] + [f"ds_read_b128 {v(OF[p],4)}, v{OB} offset:{L_OM + 512*(p ^ w)}" for p in (1, 2, 3)] + [st("B3")]
        of[3] += [lambda: E.need(v(OF[1], 4))]
        rd2 = rdo[4:6] + rdo[2:4] + rdo[6:8] if O["fine"] else rdo[2:]
        for k, n in enumerate((4, 5, 6, 7, 8, 10) if O["fine"] else range(4, 10)): of[n] += rd2[k:k + 1]
        if w < 2: of[13 if O["fine"] else 10] += [f"ds_read_b128 {v(SEL,4)}, v{L16} offset:{L_SEL}"]
        u0v = [cvt(U0, WA[0]), cvt(U0+1, WA[0]+2), tag(U0), cvt(U0+2, WA[1]), cvt(U0+3, WA[1]+2)]
        u0s = [f"buffer_store_dwordx4 {v(U0,4)}, v{PS}, {ws()}, s{S_PST0} offen{sc}", st("u0")]
        if O["fine"]:
            uv = lambda t: [cvt(U0 + 2*t, WA[t]), cvt(U0 + 2*t + 1, WA[t] + 2), tag(U0 + 2*t)]
            us = lambda t: f"buffer_store_dwordx2 {v(U0 + 2*t, 2)}, v{PS}, {ws()}, s{S_PST0 + (t >> 1)} offen offset:{64*(t & 1)}{sc}"
            for t in range(3):
                if O["fine"] == 1 or t == 0:
                    of[8 + 3*t] += [("nop", 2)] + uv(t); of[9 + 3*t] += [us(t)]
                else:
                    of[8 + 3*t] += [("nop", 2)] + uv(t)[:1]; of[9 + 3*t] += uv(t)[1:]
                    if t == 1: of[13].insert(0, us(t))
                    else: of[15] += [us(t)]
            of[9].append(st("u0"))
            of[15] += [("nop", 8)] + uv(3) + [us(3), st("Wo")]
        elif O["u0at"] == 0:
            of[11] += u0v; of[12] += u0s
        elif O["u0at"] == 1:
            of[10] += [("nop", 2)] + u0v[:1]; of[11] += u0v[1:3]; of[12] += u0v[3:]; of[13] += u0s
        else:
            of[10] += [("nop", 2)] + u0v[:1]
            rest = u0v[1:]; per = {0: [4], 1: [2, 2], 2: [1, 1, 2], 3: [1, 1, 1, 1]}[w]
            for k, c in enumerate(per):
                of[11 + k] += rest[:c]; rest = rest[c:]
            of[12 + w][:0] = u0s
        if not O["fine"]: of[15] += [("nop", 5), cvt(U1, WA[2]), cvt(U1+1, WA[2]+2), tag(U1), cvt(U1+2, WA[3]), cvt(U1+3, WA[3]+2),
                   f"buffer_store_dwordx4 {v(U1,4)}, v{PS}, {ws()}, s{S_PST1} offen{sc}", st("Wo")]
        for n in O.get("pst3", ()): of[n].insert(0, st(f"o{n}"))
        self.run([so(p, t) + (of[n],) for n, (p, t) in enumerate(oq)])
        self.est = estimate(E.lines[body0:])
        if self.stamps and O.get("dumplate"): self.dump_stamps(KX(2)); self.stamp("dump")
        pre = ["s_waitcnt vmcnt(0) lgkmcnt(0)"] + E.lines[body0:]
        def gather(regs):
            return [f"buffer_load_dwordx4 {v(x,4)}, v{L16}, {ws()}, s{S_IN0} offen offset:{i*1024} sc1" for i, x in enumerate(regs)]
        G1 = [KX(4 + i) for i in range(4)]
        def reduce_(regs, after):
            for i, x in enumerate(regs):
                E(f"s_waitcnt vmcnt({3 - i + after})")
                E(smf(RD, SEL, x, i == 0))
                if i == 0: E(f"v_xor_b32 v{TG}, s{S_PH}, v{x}")
                else: E(f"v_bitop3_b32 v{TG}, v{TG}, v{x}, s{S_PH} bitop3:0xf6")
                if O["fine"]: E(f"v_bitop3_b32 v{TG}, v{TG}, v{x+2}, s{S_PH} bitop3:0xf6")
            E(f"v_and_b32 v{TG}, 1, v{TG}\n v_cmp_ne_u32 vcc, 0, v{TG}")
        def nops(n):
            for k in range(0, n, 16): E(f"s_nop {min(16, n - k) - 1}")
        errs = []
        pl = self.p_list()
        pdef = pl[12 - O["pdefer"]:]; pl = pl[:12 - O["pdefer"]]
        rds = [f"ds_read_b128 {v(VX + 4*j, 4)}, v{L16} offset:{L_VX + 4096*j + 1024*w}" for j in range(2)] \
            + [f"ds_read_b128 {v(KX(f), 4)}, v{L16} offset:{L_KX + 1024*f}" for f in range(8)]
        l0 = len(E.lines)
        p1, p1re, p1ok = E.label("T_p1"), E.label("T_p1re"), E.label("T_p1ok")
        if defer:
            for k in range(2): E(f"v_mov_b64 {v(ONES + 2*k, 2)}, {v(PQ + 2*k, 2)}")
        nob = O["split"]
        if nob: assert O["rearm"]
        nst_ = 4 if O["fine"] else 2
        def finish():
            if O["line"] == 2:
                for i in range(4):
                    E(f"v_add_f32_dpp v{TG+2+(i&1)}, v{RD+i}, v{RD+i} row_ror:8 row_mask:0xf bank_mask:{'0xc' if i > 1 else '0x3'}")
                E(cvt(TG, TG + 2))
            else:
                for i in range(2):
                    E(f"v_add_f32_dpp v{RD+i}, v{RD+i}, v{RD+i} row_ror:8 row_mask:0xf bank_mask:0xf")
                E(cvt(TG, RD))
            E(f"v_min_u32 v{TG}, -2, v{TG}")
            E(f"buffer_store_dword v{TG}, v{MP}, {ws()}, s{S_PUB} offen{sc}")
            if not O["rearm"]: E(f"buffer_store_dword v{TG+1}, v{MP}, {ws()}, s{S_MRE} offen{sc}")
            if self.stamps: E(f"s_mov_b32 s94, s{S_CNT}")
        if nob: E(f"s_waitcnt vmcnt({nst_})\n s_barrier")
        npoll = NS
        if w < 2:
            npre = O["w1pre"] if w else O["h1pre"]
            ack = O["w1ack"] if w else O["h1ack"]
            kvp = O["kvpre"] if isinstance(O["kvpre"], int) else O["kvpre"][w]
            for x in pl[:npre]: E(x)
            if npre >= 2: self.zero_acc()
            E(f"s_mov_b32 s{S_CNT}, 0")
            if not O["rearm"]: E(f"v_mov_b32 v{TG+1}, -1")
            if self.merged and kvp: self.kv_refresh()
            if ack is not None: E(f"s_waitcnt vmcnt({ack})")
            nops(O["w1nop"] if w else O["h1nop"])
            for x in gather(G1): E(x)
            self.stamp("g1")
            for x in pl[npre:]: E(x)
            if npre < 2: self.zero_acc()
            if self.merged and not kvp: self.kv_refresh()
            E(f"s_waitcnt lgkmcnt({min(15, len(pl))})")
            if nob and w == 1:
                for x in rds[:5]: E(x)
                rds = rds[5:]
            reduce_(G1, 0)
            E(f"s_cbranch_vccnz {p1re}")
            l2 = len(E.lines)
            E(p1ok + ":")
            if nob and w == 1:
                E(ld0); npoll = NS - 2
            E(f"s_nop {(2 if O['fine'] else 3) - (1 if nob and w == 1 else 0)}")
            finish()
        else:
            for x in pl: E(x)
            self.zero_acc()
            if self.merged: self.kv_refresh()
            if nob:
                E(f"s_waitcnt vmcnt({O['w2ack']})")
                E(f"buffer_load_dword v{Y0}, off, {ws()}, s{S_MEM0} sc1")
                self.stamp("g1")
                E("s_waitcnt vmcnt(0)")
            else:
                self.stamp("g1")
                E(f"s_waitcnt vmcnt({nst_})")
        self.stamp("hop1")
        if not nob: E("s_barrier")
        cuts = list(O["h2cut"] if not nob or w == 0 else O["w1cut"] if w == 1 else O["w2cut"]) + [10]
        rds = rds + pdef
        if one == 2:
            pos = 0
            for c, hf in PSCH:
                for x in rds[pos:c]: E(x)
                pos = c
                E(ld1 if hf else ld0)
            for x in rds[pos:]: E(x)
        else:
            for x in rds[:cuts[0]]: E(x)
            for k in range(npoll):
                E(ld0)
                for x in rds[cuts[k]:(cuts[k + 1] if k + 1 < npoll else 99)]: E(x)
        E(f"s_mov_b32 s{S_CNT}, 0")
        self.stamp("top")
        E(f"s_branch {top}")
        l5 = len(E.lines)
        if O["align"]: self.alstat = align.align(E.lines, lal, l5, O["align"])
        Ls = E.lines
        errs += hazard.check(pre + Ls[l0:l5] + pre, f"team w{w}")
        if w < 2:
            E(p1re + ":")
            if O["h1mask"]: E("s_mov_b64 exec, vcc")
            for x in gather(G1): E(x)
            if O["h1mask"]: E("s_mov_b64 exec, -1")
            E(cntchk)
            reduce_(G1, 0)
            E(f"s_cbranch_vccnz {p1re}\n s_branch {p1ok}")
            errs += hazard.check(pre + Ls[l0:l2] + Ls[l5:] + Ls[l2:l5] + pre, f"team w{w} retry")
        E.lg = []; E.vm = []
        if self.merged:
            E(kvw + ":")
            self.wait_kv(fail)
            E(f"s_branch {kvb}")
        if defer:
            E(last + ":")
            E(exp4(PQ)); E(f"s_branch {done}")
        if one == 2:
            E(late + ":")
            E("s_mov_b64 exec, vcc\n" + ld1 + "\n s_mov_b64 exec, -1"); E(cntchk); E(f"s_waitcnt vmcnt({O['lated']})")
            for x in c1: E(x)
            if self.stamps: E(f"s_add_u32 s95, s95, 0x100")
            E(f"s_cbranch_vccnz {late}\n s_branch {lateok}")
        if not one:
            E(late + ":")
            E(ld1); E(cntchk); E("s_waitcnt vmcnt(0)")
            for x in c1: E(x)
            if self.stamps: E(f"s_add_u32 s95, s95, 0x100")
            E(f"s_cbranch_vccnz {late}\n s_branch {lateok}")
        s0 = len(E.lines)
        E(slow + ":")
        M0, M1 = TMP, TMP + 1
        E("s_nop 7")
        E(f"v_max3_f32 v{M0}, v{SX0}, v{SX0+1}, v{SX0+2}\n v_max3_f32 v{M0}, v{M0}, v{SX0+3}, v{SX1}")
        E(f"v_max3_f32 v{M0}, v{M0}, v{SX1+1}, v{SX1+2}\n v_max3_f32 v{M0}, v{M0}, v{SX1+3}, v{SM_}")
        E(f"v_max3_f32 v{M0}, v{M0}, v{SM_+1}, v{SM_+2}\n v_max_f32 v{M0}, v{M0}, v{SM_+3}")
        for sw in ("32", "16"):
            E(f"v_mov_b32 v{M1}, v{M0}\n s_nop 1\n v_permlane{sw}_swap_b32 v{M0}, v{M1}\n s_nop 1\n v_max_f32 v{M0}, v{M0}, v{M1}")
        for base in (SX0, SX1, SM_):
            for i in range(4): E(f"v_sub_f32 v{base+i}, v{base+i}, v{M0}")
            for i in range(4): E(f"v_exp_f32 v{base+i}, v{base+i}")
        E("s_nop 0")
        E(cvt(PX, SX0)); E(cvt(PX+1, SX0+2)); E(cvt(PX+2, SX1)); E(cvt(PX+3, SX1+2)); E(cvt(PM, SM_)); E(cvt(PM+1, SM_+2))
        for x in cnds: E(x)
        E("s_nop 1")
        for x in pvm + pvx: E(x)
        E("s_nop 7\n s_nop 1")
        E(f"v_rcp_f32 v{LA+1}, v{LA}\n s_nop 0\n v_mul_f32 v{O0}, v{LA+1}, v{O0}\n v_mul_f32 v{O0+1}, v{LA+1}, v{O0+1}\n s_branch {back}")
        errs += hazard.check(E.lines[s0:], "team slow")
        return errs

    def dump_stamps(self, t=Q(12) + 2):
        E = self.E
        E("s_memrealtime s[88:89]\n s_memtime s[90:91]\n s_waitcnt lgkmcnt(0)")
        E.lg = []
        E(f"s_lshl_b32 s{S_T0}, s{S_H}, 2\n s_add_u32 s{S_T0}, s{S_T0}, s{S_W}\n s_lshl_b32 s{S_T0}, s{S_T0}, 6\n s_add_u32 s{S_T0}, s{S_T0}, s{S_STEP}")
        E(f"s_lshl_b32 s{S_T0}, s{S_T0}, 7\n s_add_u32 s{S_T0}, s{S_T0}, {STAMP}")
        E(f"v_mov_b32 v{t}, 0")
        for i in range(16):
            E(f"v_writelane_b32 v{t}, s{S_ST + 2*i}, {i}")
        E(f"v_writelane_b32 v{t}, s94, 16\n v_writelane_b32 v{t}, s95, 17")
        E(f"v_lshrrev_b32 v{t+1}, 2, v{L16}\n s_mov_b64 exec, 0xffffffff")
        E(f"buffer_store_dword v{t}, v{t+1}, {ws()}, s{S_T0} offen\n s_mov_b64 exec, -1\n s_nop 3")


def standalone(stamps=False, force_mode=None, **opt):
    E = Em()
    E("; @launch grid=(256,1,1) block=(256,1,1) lds=163840")
    E('.amdgcn_target "amdgcn-amd-amdhsa--gfx950"')
    E(kernel_header("team_kernel"))
    T = Team(E, stamps, **opt)
    E("s_cmp_ge_u32 s2, 256\n s_cbranch_scc1 T_exit\n s_and_b32 s3, s2, 7\n s_cbranch_scc1 T_exit")
    E(f"s_lshr_b32 s{S_H}, s2, 3")
    E("s_memrealtime s[100:101]\n s_waitcnt lgkmcnt(0)\n s_mov_b32 s92, s100\n s_mov_b32 s94, 0")
    l0 = len(E.lines)
    T.startup("T_fail")
    errs = hazard.check(E.lines[l0:], "team startup")
    E("s_memrealtime s[100:101]\n s_waitcnt lgkmcnt(0)\n s_mov_b32 s96, s100\n s_memtime s[100:101]\n s_waitcnt lgkmcnt(0)\n s_mov_b32 s93, s100")
    if force_mode is not None:
        E(f"s_mov_b32 s{S_MODE}, {force_mode}")
    E(f"s_cmp_lg_u32 s{S_MODE}, 0\n s_cbranch_scc1 T_global")
    errs += T.loops(0, "T_done", "T_fail")
    E("T_global:")
    errs += T.loops(1, "T_done", "T_fail")
    E("T_fail:")
    E(f"s_mov_b32 s{S_T0}, 1\n s_atomic_add s{S_T0}, s[{S_DBG}:{S_DBG+1}], 12 glc\n s_waitcnt lgkmcnt(0)")
    E("T_done:")
    E("s_memrealtime s[100:101]\n s_waitcnt lgkmcnt(0)\n s_mov_b32 s97, s100\n s_memtime s[100:101]\n s_waitcnt lgkmcnt(0)")
    E(f"s_sub_u32 s93, s100, s93\n v_mov_b32 v40, s92\n v_mov_b32 v41, s96\n v_mov_b32 v42, s97\n v_mov_b32 v43, s93")
    E(f"s_lshl_b32 s{S_T0}, s{S_H}, 4\n s_add_u32 s{S_T0}, s{S_T0}, {STAMP + MB}\n v_mov_b32 v44, 0")
    E(f"buffer_store_dwordx4 v[40:43], v44, {ws()}, s{S_T0} offen")
    E("T_exit:\n s_endpgm")
    E(kernel_desc("team_kernel"))
    txt = E.text()
    standalone.est = T.est
    if opt.get("norty") or opt.get("nomem"):
        import re
        txt = re.sub(r"s_cbranch_vccnz T_(retry|late|p1re|slow)_\d+", "s_nop 0", txt)
    if opt.get("nomem"):
        i = txt.index("T_retry_")
        pat = {1: r"buffer_(load|store)_dword(x4)? v\S+, v\d+, s\[4:7\], s(20|21|22|24|25|26|35) offen.*",
               2: r"buffer_(load|store)_dword(x4)? v\S+, v\d+, s\[4:7\], s(24|25|26|35) offen.*",
               3: r"buffer_(load|store)_dword(x4)? v\S+, v\d+, s\[4:7\], s(20|21|22) offen.*"}[opt["nomem"]]
        txt = txt[:i] + re.sub(pat, "s_mov_b32 s39, 0x12345", txt[i:])
    return txt, errs, T.names

if __name__ == "__main__":
    for st in (False, True):
        txt, errs, names = standalone(st)
        print(len(errs), "hazards", names)
        if not st:
            e = standalone.est; print("est", e[-1], "slot lengths", [b - a for a, b in zip(e, e[1:])])
    open("team.s", "w").write(txt)
```

```python
import mega
def probe(expr, who, **kw):
    t, _ = mega.build(1, kw.pop("team", {}), **kw)
    a = t.index("M_done:"); b = t.index("M_exit:")
    blk = t[a:b]
    i = blk.index("  v_mov_b32 v200")
    blk = blk[:i] + f"""{who}
  s_cbranch_scc0 M_exit
{expr}
  s_add_u32 s79, s100, s80
  s_add_u32 s79, s79, 20000
M_spin:
  s_memrealtime s[100:101]
  s_waitcnt lgkmcnt(0)
  s_sub_u32 s100, s100, s79
  s_cmp_lt_i32 s100, 0
  s_cbranch_scc1 M_spin
"""
    return t[:a] + blk + t[b:]
TEAM = "  s_and_b32 s100, s97, 7\n  s_cmp_eq_u32 s100, 0"
FOL = "  s_and_b32 s100, s97, 7\n  s_cselect_b32 s100, s65, 0\n  s_cmp_eq_u32 s100, 6"
GEN = "  s_and_b32 s100, s97, 7\n  s_cselect_b32 s100, s65, 6\n  s_cmp_lg_u32 s100, 6"
mark = lambda k: f"  s_sub_u32 s100, s{80+2*k}, s80"
if __name__ == "__main__":
    V = dict(a=("  s_mov_b32 s100, 0", TEAM), b=(mark(1), TEAM), c=(mark(7), TEAM),
             d=("  s_sub_u32 s100, s95, s81\n  s_lshr_b32 s100, s100, 5", TEAM), e=(mark(5), GEN), f=(mark(7), FOL))
    for n, (e, w) in V.items():
        open(f"../bench/{n}.s", "w").write(probe(e, w))
```

```python
import re
import hazard

INLINE = re.compile(r"^(-?\d+|0x[0-9a-f]+|-?\d+\.\d+)$")
def is_lit(tok):
    if not INLINE.match(tok): return False
    if "." in tok: return False
    x = int(tok, 0)
    if x >= 0xfffffff0: x -= 1 << 32
    if x == 0x40000000: return False
    return not -16 <= x <= 64

E32 = ("v_exp_f32", "v_rcp_f32", "v_mul_f32", "v_add_f32", "v_sub_f32", "v_max_u32", "v_min_u32", "v_mov_b32", "v_mov_b64", "v_and_b32",
       "v_xor_b32", "v_or_b32", "v_subrev_u32", "v_max_f32", "v_add_u32", "v_sub_u32", "v_lshlrev_b32", "v_lshrrev_b32", "v_mul_u32_u24",
       "v_readfirstlane_b32", "v_permlane32_swap_b32", "v_permlane16_swap_b32", "v_nop")

def size(line):
    d = hazard.parse(line)
    if d is None: return 0
    op, ops, k = d["op"], d["ops"], d["kind"]
    lit = any(is_lit(x) for x in ops)
    if k in ("mfma", "ds", "vmem", "smem"): return 8
    if k == "salu":
        if op.startswith(("s_waitcnt", "s_nop", "s_barrier", "s_branch", "s_cbranch", "s_endpgm", "s_sleep", "s_setprio", "s_getreg")): return 4
        return 8 if lit else 4
    if op in E32: return 8 if lit else 4
    if op.endswith("_e64"): return 8
    if op.startswith("v_cmp") and ops[0] == "vcc": return 8 if lit else 4
    if op == "v_cndmask_b32" and ops[-1] == "vcc" and ops[2].startswith("v"): return 8 if lit else 4
    return 8

def promotable(line):
    d = hazard.parse(line)
    return d and d["kind"] == "valu" and size(line) == 4 and not d["op"].startswith(("v_readfirst", "v_permlane", "v_nop"))

def align(lines, start, end, run=3, back=12):
    fixed = missed = 0
    i, off, lastfix = start, 0, start
    while i < end:
        sz = size(lines[i])
        if sz == 8:
            j, n = i, 0
            while j < end and size(lines[j]) in (0, 8):
                n += size(lines[j]) == 8; j += 1
            if n >= run:
                if off % 8:
                    for k in range(i - 1, max(lastfix, i - back) - 1, -1):
                        if promotable(lines[k]):
                            op = lines[k].split()[0]
                            lines[k] = lines[k].replace(op, op + "_e64", 1); off += 4; fixed += 1
                            break
                    else:
                        missed += 1
                lastfix = j
            off += 8 * n; i = j
        else:
            off += sz; i += 1
    return fixed, missed


def phase(lines, start, end, targets):
    i, lo = start, start
    while i < end:
        ln = lines[i].strip()
        if ln.startswith("; @A"):
            name = ln.split()[2]
            if name in targets:
                off = sum(size(x) if not x.startswith(".fill") else 4 * int(x.split()[1].rstrip(",")) + 0 for x in "\n".join(lines[start:i]).split("\n"))
                k = (targets[name] - off // 4) % 8
                j = i - 1
                while k and j >= lo:
                    t = lines[j].strip()
                    if t == "; @U": lines[j] = f".fill {k}, 4, 0xbf800000"; k = 0
                    elif t == "; @I": lines[j] = f".fill {k}, 4, 0xbf800000"; k = 0
                    elif t == "; @P": lines[j] = "  s_nop 0"; k -= 1
                    elif promotable(lines[j]):
                        op = lines[j].split()[0]; lines[j] = lines[j].replace(op, op + "_e64", 1); k -= 1
                    j -= 1
                assert k == 0, name
                lo = i
        i += 1
```

```python
import struct
from emit import *
from layout import *
from gemm import G_WS, G_W, V_LANE, V_L16, lane_setup, ws_srd

def fbits(x): return struct.unpack("<I", struct.pack("<f", x))[0]

A_KOFF, A_VOFF = 17, 18
A_KMIN, A_VMIN = 19, 20
A_M0 = 21
A_N = 22
A_E = 23
A_T0, A_T1, A_T2 = 26, 27, 28
A_RETRY = 29
A_NEG = 24
A_QOFF = 25
A_RDY = 36
AO, AQ_, AK_, AV_ = 0, 128, 192, 224
V_DMA, V_RDA, V_THR = 3, 4, 5
V_NM = 6
V_LS = 8
V_TM = 12
VS, VC, VP = 32, 64, 96
VO = 112
RING, DEPTH = 8, 5
L_FLAG = RING * 16384

def wsd(): return s(G_WS, 4)
def qk(qt, st): return f"v_mfma_f32_32x32x16_bf16 {v(VS+16*qt,16)}, {a(AK_+4*st,4)}, {a(AQ_+32*qt+4*st,4)}, {v((VC if st == 0 else VS)+16*qt,16)}"
def pv(qt, f):
    st, dt = f >> 2, f & 3
    d = a(AO + 64*qt + 16*dt, 16)
    return f"v_mfma_f32_32x32x16_bf16 {d}, {a(AV_+4*f,4)}, {v(VP+8*qt+4*st,4)}, {d}"
def rd_k(st): return f"ds_read_b128 {a(AK_+4*st,4)}, v{V_RDA} offset:{8192 + 1024*st}"
def rd_v(f): return f"ds_read_b128 {a(AV_+4*f,4)}, v{V_RDA} offset:{1024*(2*(f & 3) + (f >> 2))}"
def ex(qt, e): return f"v_exp_f32 v{VS+16*qt+e}, v{VS+16*qt+e}"
def ad(qt, e): return f"v_add_f32 v{V_LS+2*qt+(e&1)}, v{V_LS+2*qt+(e&1)}, v{VS+16*qt+e}"
def cv(qt, p): return f"v_cvt_pk_bf16_f32 v{VP+8*qt+p}, v{VS+16*qt+2*p}, v{VS+16*qt+2*p+1}"

def fetch(sc):
    ld = lambda so, off: f"buffer_load_dwordx4 v{V_DMA}, {wsd()}, s{so} offen offset:{off}{sc} lds"
    return [f"s_mov_b32 m0, s{A_M0}", ld(A_VOFF, 0), ld(A_VOFF, 1024), f"s_add_u32 m0, s{A_M0}, 8192", ld(A_KOFF, 0), ld(A_KOFF, 1024)]
def fetch_adv():
    return [f"s_sub_u32 s{A_VOFF}, s{A_VOFF}, 8192", f"s_max_i32 s{A_VOFF}, s{A_VOFF}, s{A_VMIN}",
            f"s_sub_u32 s{A_KOFF}, s{A_KOFF}, 8192", f"s_max_i32 s{A_KOFF}, s{A_KOFF}, s{A_KMIN}",
            f"s_add_u32 s{A_M0}, s{A_M0}, 16384", f"s_and_b32 s{A_M0}, s{A_M0}, {RING*16384 - 1}"]
def fetch_now(E, sc, adv=True):
    if adv:
        for x in fetch_adv(): E(x)
    for x in fetch(sc):
        E(x)
        if "m0" in x: E("s_nop 0")
def rda_adv(): return [f"v_add_u32 v{V_RDA}, 16384, v{V_RDA}", f"v_and_b32 v{V_RDA}, {RING*16384 - 1}, v{V_RDA}"]

def set_c(E, qt, kind):
    for i in range(16):
        d = VC + 16*qt + i
        if kind == "open": E(f"v_mov_b32 v{d}, v{V_NM+qt}")
        elif kind == "mask": E(f"v_mov_b32 v{d}, s{A_NEG}")
    if kind == "diag":
        E(f"v_mov_b32 v{V_TM}, s{A_NEG}")
        for i0 in range(0, 16, 4):
            for i in range(i0, i0 + 4):
                E(f"v_cmp_le_i32 s[{40+2*(i&3)}:{41+2*(i&3)}], {8*(i>>2) + (i&3)}, v{V_THR}")
            for i in range(i0, i0 + 4):
                E(f"v_cndmask_b32 v{VC+16*qt+i}, v{V_TM}, v{V_NM+qt}, s[{40+2*(i&3)}:{41+2*(i&3)}]")


def attn_task(E, s_h, s_qb, sc, osc, diag=False, wait_q=None, wait_kv=None, extra=None, win=64):
    errs = []
    l0 = len(E.lines)
    E(f"s_mov_b32 s{A_NEG}, {hex(fbits(-1e30))}\n s_mov_b32 s{A_RETRY}, 0")
    E(f"v_mov_b32 v{V_NM}, 0\n v_mov_b32 v{V_NM+1}, 0")
    E(f"s_lshl_b32 s{A_T0}, s{G_W}, 11\n v_add_u32 v{V_DMA}, s{A_T0}, v{V_L16}")
    E(f"v_and_b32 v{V_THR}, 31, v{V_LANE}\n v_lshrrev_b32 v{V_TM}, 5, v{V_LANE}\n v_lshlrev_b32 v{V_TM}, 2, v{V_TM}\n v_sub_u32 v{V_THR}, v{V_THR}, v{V_TM}")
    E(f"s_lshl_b32 s{A_T0}, s{s_h}, 19\n s_add_u32 s{A_KMIN}, s{A_T0}, {KA}\n s_add_u32 s{A_VMIN}, s{A_T0}, {VA}")
    E(f"s_lshl_b32 s{A_T1}, s{s_qb}, 2\n s_add_u32 s{A_T1}, s{A_T1}, s{G_W}\n s_lshl_b32 s{A_T1}, s{A_T1}, 14\n s_add_u32 s{A_QOFF}, s{A_T0}, s{A_T1}")
    if wait_q: wait_q()
    if wait_kv:
        E(f"s_lshl_b32 s{A_T1}, s{s_qb}, 16\n s_add_u32 s{A_T1}, s{A_T1}, {(7 - DEPTH)*8192}\n s_add_u32 s{A_KOFF}, s{A_KMIN}, s{A_T1}")
        wait_kv()
    for k in range(4):
        if 4*k >= win: E(f"s_waitcnt vmcnt({win - 4})")
        E(f"s_add_u32 s{A_T2}, s{A_QOFF}, {QA + 4096*k}")
        for i in range(4):
            E(f"buffer_load_dwordx4 {a(AQ_ + 16*k + 4*i, 4)}, v{V_L16}, {wsd()}, s{A_T2} offen offset:{1024*i}{sc}")
    again = E.label("A_again")
    E(again + ":")
    E(f"s_lshl_b32 s{A_T1}, s{s_qb}, 16\n s_add_u32 s{A_T1}, s{A_T1}, {7*8192}")
    E(f"s_add_u32 s{A_KOFF}, s{A_KMIN}, s{A_T1}\n s_add_u32 s{A_VOFF}, s{A_VMIN}, s{A_T1}\n s_lshl_b32 s{A_M0}, s{G_W}, 11")
    fetch_now(E, sc, False)
    E(f"s_add_u32 s{A_VOFF}, s{A_VOFF}, 8192")
    for _ in range(DEPTH):
        if win < 64: E(f"s_waitcnt vmcnt({win})")
        fetch_now(E, sc)
    for i in range(128): E(f"v_accvgpr_write_b32 a{AO+i}, 0")
    for i in range(4): E(f"v_mov_b32 v{V_LS+i}, 0")
    for e in range(4, 16): E(f"v_mov_b32 v{VS+16+e}, " + ("0" if e < 6 else f"s{A_NEG}"))
    E(f"v_mov_b32 v{VP+8}, 0\n v_mov_b32 v{VP+9}, 0\n v_mov_b32 v{V_RDA}, v{V_L16}")
    set_c(E, 0, "mask"); set_c(E, 1, "diag")
    E(f"s_lshl_b32 s{A_N}, s{s_qb}, 3\n s_add_u32 s{A_N}, s{A_N}, 8\n s_lshl_b32 s{A_T0}, s{G_W}, 1\n s_sub_u32 s{A_E}, 6, s{A_T0}")
    E(f"s_waitcnt vmcnt({4*DEPTH})\n s_barrier")
    if extra: extra()
    if diag: tmark(E, 1)
    idle, go = E.label("A_idle"), E.label("A_go")
    E(f"s_cmp_eq_u32 s{A_E}, 0\n s_cbranch_scc1 {go}")
    E(idle + ":")
    E(f"s_waitcnt vmcnt({4*(DEPTH-1)})\n s_barrier")
    for x in fetch_adv(): E(x)
    if wait_kv: wait_kv()
    fetch_now(E, sc, False)
    for x in rda_adv(): E(x)
    E(f"s_sub_u32 s{A_N}, s{A_N}, 1\n s_sub_u32 s{A_E}, s{A_E}, 1\n s_cmp_lg_u32 s{A_E}, 0\n s_cbranch_scc1 {idle}")
    E(go + ":")
    for f in range(8): E.ds(rd_v(f))
    for st in range(8): E.ds(rd_k(st))
    for x in rda_adv(): E(x)
    E.need(a(AV_, 32))
    errs += hazard.check(E.lines[l0:], "attn prologue")
    lg0 = list(E.lg)
    top, upd, back, out = E.label("A_top"), E.label("A_upd"), E.label("A_back"), E.label("A_out")
    E(".p2align 6")
    E(top + ":")
    l1 = len(E.lines)
    mf = [(qk(0, i), a(AK_+4*i, 4)) for i in range(8)] + [(pv(1, i), None) for i in range(8)] \
        + [(qk(1, i), None) for i in range(8)] + [(pv(0, i), a(AV_+4*i, 4)) for i in range(8)]
    fl = fetch(sc); fa = fetch_adv()
    sca = {n: [] for n in range(32)}; mem = {n: [] for n in range(32)}; val = {n: [] for n in range(32)}
    for f in range(8): mem[8 + f].append(rd_v(f)); mem[16 + f].append(rd_k(f))
    sca[22].append(fl[0]); mem[24].append(fl[1]); mem[26].append(fl[2]); sca[27].append(fl[3]); mem[28].append(fl[4]); mem[30].append(fl[5])
    for k, x in enumerate(fa): sca[9 + k].append(x)
    for qt, b in ((0, 10), (1, 26)):
        for e in range(16):
            val[(b + e) % 32].insert(0, ex(qt, e)); val[(b + 1 + e) % 32].append(ad(qt, e))
        for p in range(8): val[(b + 2 + 2*p) % 32].append(cv(qt, p))
    val[25].append(rda_adv()[0]); val[27].append(rda_adv()[1])
    sca[16].append(f"s_add_u32 s{A_E}, s{A_E}, 1"); sca[17].append(f"s_sub_u32 s{A_N}, s{A_N}, 1")
    sca[18].append(f"s_cmp_lt_u32 s{A_E}, 3"); sca[19].append(f"s_cbranch_scc1 {upd}")
    sca[29].append(f"s_cmp_lg_u32 s{A_N}, 0")
    kvw, kvb = E.label("A_kvw"), E.label("A_kvb")
    if wait_kv:
        sca[20].append(f"s_cmp_lt_u32 s{A_KOFF}, s{A_RDY}"); sca[21] += [f"s_cbranch_scc1 {kvw}", kvb + ":"]
    E.need(mf[0][1])
    for n in range(32):
        E(mf[n][0])
        if n == 7:
            E(f"s_waitcnt vmcnt({4*(DEPTH-1)})\n s_barrier")
        elif n % 2 == 1 or n == 0:
            nx = [mf[k % 32][1] for k in ((n + 1, n + 2) if n else (1,)) if k < 32 and mf[k % 32][1]]
            if nx: E.need(*nx)
        for x in sca[n]: E(x)
        if n == 19: E(back + ":")
        for x in mem[n]: (E.ds if x.startswith("ds_") else E)(x)
        for x in val[n]: E(x)
    assert E.lg == lg0, (E.lg, lg0)
    E(f"s_cbranch_scc1 {top}")
    body = E.lines[l1:]
    errs += hazard.check([rd_k(st) for st in range(8)] + body + body, "attn loop")
    l2 = len(E.lines)
    for n in range(0, 11):
        for x in val[n]:
            if f"v{VS}," in x and n == 10 and x.startswith("v_exp"): continue
            E(x)
    E("s_nop 1")
    for f in range(8): E(pv(1, f))
    if diag: tmark(E, 2)
    for qt in range(2):
        l_ = V_LS + 2*qt
        E(f"v_add_f32 v{l_}, v{l_}, v{l_+1}\n v_mov_b32 v{l_+1}, v{l_}\n s_nop 1\n v_permlane32_swap_b32 v{l_}, v{l_+1}\n s_nop 1\n v_add_f32 v{l_}, v{l_}, v{l_+1}")
    lo, hi = fbits(2.0 ** -32), fbits(2.0 ** 48)
    E(f"v_subrev_u32 v{V_TM}, {hex(lo)}, v{V_LS}\n v_subrev_u32 v{V_TM+1}, {hex(lo)}, v{V_LS+2}\n v_max_u32 v{V_TM}, v{V_TM}, v{V_TM+1}")
    E(f"v_cmp_le_u32 vcc, {hex(hi - lo)}, v{V_TM}\n s_nop 1\n s_cmp_lg_u64 vcc, 0\n s_cselect_b32 s{A_T0}, 1, 0")
    E(f"v_mov_b32 v{V_TM}, s{A_T0}\n s_lshl_b32 s{A_T0}, s{G_W}, 2\n s_add_u32 s{A_T0}, s{A_T0}, {L_FLAG}\n v_mov_b32 v{V_TM+1}, s{A_T0}")
    E(f"ds_write_b32 v{V_TM+1}, v{V_TM}\n v_mov_b32 v{V_TM+2}, {L_FLAG}\n s_waitcnt vmcnt(0) lgkmcnt(0)\n s_barrier")
    E(f"ds_read_b128 {v(V_TM+4,4)}, v{V_TM+2}")
    E(f"v_rcp_f32 v{V_LS}, v{V_LS}\n v_rcp_f32 v{V_LS+2}, v{V_LS+2}\n s_waitcnt lgkmcnt(0)")
    E(f"v_or3_b32 v{V_TM}, v{V_TM+4}, v{V_TM+5}, v{V_TM+6}\n v_or_b32 v{V_TM}, v{V_TM}, v{V_TM+7}\n s_nop 0\n v_readfirstlane_b32 s{A_T0}, v{V_TM}")
    slow = E.label("A_slow")
    E(f"s_nop 1\n s_cmp_gt_u32 s{A_T0}, s{A_RETRY}\n s_cbranch_scc1 {slow}")
    E.lg = []
    for k in range(4):
        qt = k >> 1
        E(f"s_add_u32 s{A_T2}, s{A_QOFF}, {CTXA + 4096*k}")
        for i in range(4):
            t = VO + 12*((4*k + i) % 4)
            for j in range(8): E(f"v_accvgpr_read_b32 v{t+j}, a{AO + 32*k + 8*i + j}")
            for j in range(4): E(f"v_pk_mul_f32 {v(t+2*j,2)}, {v(t+2*j,2)}, {v(V_LS+2*qt,2)} op_sel_hi:[1,0]")
            for j in range(4): E(f"v_cvt_pk_bf16_f32 v{t+8+j}, v{t+2*j}, v{t+2*j+1}")
            if 4*k + i >= win: E(f"s_waitcnt vmcnt({win - 1})")
            E(f"buffer_store_dwordx4 {v(t+8,4)}, v{V_L16}, {wsd()}, s{A_T2} offen offset:{1024*i}{osc}")
    errs += hazard.check(body + E.lines[l2:], "attn tail")
    E(f"s_branch {out}")
    if wait_kv:
        E(kvw + ":")
        wait_kv()
        E(f"s_branch {kvb}")
    E(upd + ":")
    u2 = E.label("A_upd2")
    l3 = len(E.lines)
    E(f"s_cmp_eq_u32 s{A_E}, 2\n s_cbranch_scc1 {u2}")
    set_c(E, 0, "diag"); set_c(E, 1, "open")
    E(f"s_branch {back}")
    errs += hazard.check(body[:body.index(back + ":")] + E.lines[l3:], "attn upd")
    E(u2 + ":")
    set_c(E, 0, "open")
    E(f"s_branch {back}")
    E(slow + ":")
    l4 = len(E.lines)
    E(f"s_mov_b32 s{A_RETRY}, 1")
    set_c(E, 0, "mask"); set_c(E, 1, "diag")
    E(f"v_mov_b32 v{V_LS}, s{A_NEG}\n v_mov_b32 v{V_LS+2}, s{A_NEG}")
    E(f"s_add_u32 s{A_KOFF}, s{A_QOFF}, {KA + 8192}\n s_mov_b32 s{A_E}, 0")
    ml, m2, m3 = E.label("A_ml"), E.label("A_m2"), E.label("A_m3")
    E(ml + ":")
    E(f"s_add_u32 s{A_T2}, s{A_KOFF}, 4096")
    for st in range(8):
        E(f"buffer_load_dwordx4 {a(AK_+4*st,4)}, v{V_L16}, {wsd()}, s{A_KOFF if st < 4 else A_T2} offen offset:{1024*(st & 3)}{sc}")
    E("s_waitcnt vmcnt(0)")
    for qt in range(2):
        for st in range(8): E(qk(qt, st))
    E("s_nop 7\n s_nop 3")
    for qt in range(2):
        for e in range(0, 16, 2): E(f"v_max3_f32 v{V_LS+2*qt}, v{V_LS+2*qt}, v{VS+16*qt+e}, v{VS+16*qt+e+1}")
    E(f"s_add_u32 s{A_E}, s{A_E}, 1\n s_cmp_lg_u32 s{A_E}, 1\n s_cbranch_scc1 {m2}")
    set_c(E, 0, "diag"); set_c(E, 1, "open")
    E(m2 + ":")
    E(f"s_cmp_lg_u32 s{A_E}, 2\n s_cbranch_scc1 {m3}")
    set_c(E, 0, "open")
    E(m3 + ":")
    E(f"s_sub_u32 s{A_KOFF}, s{A_KOFF}, 8192\n s_cmp_ge_i32 s{A_KOFF}, s{A_KMIN}\n s_cbranch_scc1 {ml}")
    for qt in range(2):
        l_ = V_LS + 2*qt
        E(f"v_mov_b32 v{l_+1}, v{l_}\n s_nop 1\n v_permlane32_swap_b32 v{l_}, v{l_+1}\n s_nop 1\n v_max_f32 v{l_}, v{l_}, v{l_+1}\n v_sub_f32 v{V_NM+qt}, 0, v{l_}")
    errs += hazard.check(E.lines[l4:], "attn slow")
    E(f"s_branch {again}")
    E(out + ":")
    return errs


def attn_kernel(E, name, sc="", osc="", diag=False):
    E(kernel_header(name))
    end = E.label("A_exit")
    E(f"s_cmp_ge_u32 s2, 256\n s_cbranch_scc1 {end}")
    lane_setup(E); ws_srd(E)
    E("s_and_b32 s50, s2, 31\n s_lshr_b32 s51, s2, 5\n s_sub_u32 s51, 7, s51")
    if diag: tmark(E, 0)
    errs = attn_task(E, 50, 51, sc, osc, diag)
    if diag: tmark(E, 3); tdump(E, G_WS, STAMP, 2)
    E(end + ":\n s_endpgm")
    return errs

if __name__ == "__main__":
    E = Em()
    E("; @launch grid=(256,1,1) block=(256,1,1) lds=163840")
    E('.amdgcn_target "amdgcn-amd-amdhsa--gfx950"')
    errs = attn_kernel(E, "attn_kernel")
    E(kernel_desc("attn_kernel"))
    open("attn.s", "w").write(E.text())
    print(len(errs), "hazards")
```

```python
from emit import *
from layout import *

G_WS = 4
G_WSRD = 8
G_ASRD = 12
G_W = 16
G_WOFF = 17
G_WSTR = 18
G_AOFF = 19
G_ASTR = 20
G_OOFF = 21
G_OSTR = 22
G_N = 23
G_SCALE = 24
G_M0 = 25
G_T0, G_T1, G_T2, G_T3 = 26, 27, 28, 29
G_DONE = 30
G_FLAG = 31
V_LANE = 1
V_L16 = 2
V_ST = 7
V_RD = 8
V_DM = 16
V_AF = 24
V_ACC = 64
V_PK = 128
V_T = 144
V_SO = 56
M16 = True
LAG = 2
NF = 8
LEAD = 6


def lane_setup(E):
    E(f"v_lshrrev_b32 v3, 6, v0\n v_and_b32 v{V_LANE}, 63, v0\n v_readfirstlane_b32 s{G_W}, v3\n v_lshlrev_b32 v{V_L16}, 4, v{V_LANE}")


def out_addr(E):
    if M16: E(f"v_lshrrev_b32 v{V_T}, 4, v{V_LANE}\n v_and_b32 v{V_SO}, 0xff, v{V_L16}\n v_lshl_add_u32 v{V_SO}, v{V_T}, 9, v{V_SO}")
    else: E(f"v_mov_b32 v{V_SO}, v{V_L16}")

def out_imm(b): return (b >> 1) * 2048 + (b & 1) * 256 if M16 else 1024 * b


def addr_rowmajor(E, s_v):
    t = V_T
    out_addr(E)
    E(f"v_and_b32 v{t+2}, 15, v{V_LANE}")
    if M16:
        E(f"v_and_b32 v{t}, 8, v{V_LANE}\n v_add_u32 v{t}, v{t}, v{t+2}\n s_cmp_lg_u32 s{s_v}, 0\n s_cselect_b64 vcc, -1, 0\n s_cselect_b32 s{G_T0}, 8, 16")
        E(f"v_cndmask_b32 v{t}, v{t+2}, v{t}, vcc\n v_lshrrev_b32 v{t+1}, 4, v{V_LANE}\n v_add_u32 v{t+4}, s{G_T0}, v{t}")
        for j in range(8):
            E(f"v_xor_b32 v{t+3}, {(4*(j >> 1)) ^ (8*(j & 1))}, v{t+1}\n v_xor_b32 v{t+3}, v{t+3}, v{t+2}\n v_lshlrev_b32 v{t+3}, 4, v{t+3}")
            E(f"v_lshl_add_u32 v{V_RD+j}, v{t + 4*(j & 1)}, 8, v{t+3}")
    else:
        E(f"v_and_b32 v{t}, 31, v{V_LANE}\n v_lshrrev_b32 v{t+1}, 5, v{V_LANE}")
        for j in range(8):
            E(f"v_or_b32 v{t+3}, {2*j}, v{t+1}\n v_xor_b32 v{t+3}, v{t+3}, v{t+2}\n v_lshlrev_b32 v{t+3}, 4, v{t+3}")
            E(f"v_lshl_add_u32 v{V_RD+j}, v{t}, 8, v{t+3}")
    E(f"v_lshrrev_b32 v{t}, 4, v{V_LANE}\n s_lshl_b32 s{G_T0}, s{G_W}, 8")
    for j in range(8):
        f0 = (4*j) & 15
        if M16: f0 ^= 8 * (j >> 2)
        E(f"v_add_u32 v{t+1}, {4*j}, v{t}\n v_or_b32 v{t+3}, {f0}, v{t}\n v_xor_b32 v{t+3}, v{t+3}, v{t+2}\n v_lshlrev_b32 v{t+3}, 4, v{t+3}")
        E(f"v_lshl_add_u32 v{t+3}, v{t+1}, 10, v{t+3}\n v_add_u32 v{V_DM+j}, s{G_T0}, v{t+3}")


def addr_frag(E, wave_stride):
    out_addr(E)
    E(f"s_mul_i32 s{G_T0}, s{G_W}, {wave_stride}")
    for j in range(8):
        E(f"v_add_u32 v{V_RD+j}, {out_imm(j)}, v{V_SO}")
        E(f"v_add_u32 v{V_DM+j}, {1024*j}, v{V_L16}\n v_add_u32 v{V_DM+j}, s{G_T0}, v{V_DM+j}")


def load_w(E, perm, hook=None, win=32, s_v=None):
    t = V_T
    E(f"v_lshrrev_b32 v{t}, 3, v{V_LANE}\n v_mul_lo_u32 v{t}, v{t}, s{G_WSTR}\n v_and_b32 v{t+1}, 7, v{V_LANE}\n v_lshl_add_u32 v{t}, v{t+1}, 4, v{t}")
    E(f"s_lshl_b32 s{G_T2}, s{G_W}, 15\n s_add_u32 s{G_T2}, s{G_T2}, 32768\n s_lshl_b32 s{G_T3}, s{G_WSTR}, 3")
    n_iss = [0]
    def issue():
        j = n_iss[0]; n_iss[0] += 1
        E(f"s_add_u32 m0, s{G_T2}, {(j % 32) * 1024}")
        E("s_nop 0")
        E.vmem(f"buffer_load_dwordx4 v{t}, {s(G_WSRD,4)}, s{G_WOFF} offen lds", tag=("w", j // 2))
        E(f"s_add_u32 s{G_WOFF}, s{G_WOFF}, s{G_T3}")
    for j in range(win): issue()
    if hook: hook()
    if M16:
        E(f"v_bfe_u32 v{t+4}, v{V_LANE}, 2, 2\n v_lshrrev_b32 v{t+5}, 5, v{V_LANE}\n v_lshl_add_u32 v{t+4}, v{t+5}, 4, v{t+4}")
        E(f"v_bfe_u32 v{t+5}, v{V_LANE}, 4, 1\n v_lshl_add_u32 v{t+4}, v{t+5}, {2 if perm else 3}, v{t+4}\n v_and_b32 v{t+5}, 3, v{V_LANE}")
        if perm:
            E(f"v_lshlrev_b32 v{t+5}, 4, v{t+5}\n s_mov_b32 s{G_T0}, 8")
        else:
            E(f"v_and_b32 v{t+6}, 2, v{t+5}\n v_add_u32 v{t+6}, v{t+6}, v{t+5}\n s_cmp_lg_u32 s{s_v}, 0\n s_cselect_b64 vcc, -1, 0\n s_cselect_b32 s{G_T0}, 32, 16")
            E(f"v_cndmask_b32 v{t+5}, v{t+6}, v{t+5}, vcc\n v_lshlrev_b32 v{t+5}, 3, v{t+5}")
        E(f"v_lshl_add_u32 v{t+4}, v{t+4}, 7, v{t+5}\n v_add_u32 v{t+8}, s{G_T2}, v{t+4}\n v_add_u32 v{t+9}, {(8 if perm else 4) * 128}, v{t+8}")
        E(f"v_add_u32 v{t+10}, s{G_T0}, v{t+8}\n v_add_u32 v{t+11}, s{G_T0}, v{t+9}")
        for kk in range(16):
            E.need(tags=[("w", 2 * kk + 1)])
            for ct in range(4):
                for hi in range(2):
                    E.ds(f"ds_read_b64_tr_b16 {a((kk*4 + ct)*4 + 2*hi, 2)}, v{t + 8 + 2*(ct & 1) + hi} offset:{(kk % 8)*4096 + (ct >> 1)*64}")
            E.drain(lg=True)
            if n_iss[0] < 64:
                for _ in range(4): issue()
        return
    E(f"v_bfe_u32 v{t+4}, v{V_LANE}, 2, 2\n v_lshrrev_b32 v{t+5}, 5, v{V_LANE}")
    E(f"v_lshl_add_u32 v{t+4}, v{t+5}, {2 if perm else 3}, v{t+4}\n v_lshlrev_b32 v{t+4}, 7, v{t+4}")
    E(f"v_bfe_u32 v{t+5}, v{V_LANE}, 4, 1\n v_lshl_add_u32 v{t+4}, v{t+5}, 5, v{t+4}")
    if perm:
        E(f"v_and_b32 v{t+5}, 1, v{V_LANE}\n v_lshl_add_u32 v{t+4}, v{t+5}, 4, v{t+4}")
        E(f"v_bfe_u32 v{t+5}, v{V_LANE}, 1, 1\n v_lshl_add_u32 v{t+4}, v{t+5}, 3, v{t+4}")
    else:
        E(f"v_and_b32 v{t+5}, 3, v{V_LANE}\n v_lshl_add_u32 v{t+4}, v{t+5}, 3, v{t+4}")
    E(f"v_add_u32 v{t+2}, s{G_T2}, v{t+4}\n v_add_u32 v{t+3}, {(8 if perm else 4) * 128}, v{t+2}")
    for k2 in range(16):
        E.need(tags=[("w", 2 * k2 + 1)])
        for ks in (2 * k2, 2 * k2 + 1):
            for ct in range(2):
                for hi in range(2):
                    E.ds(f"ds_read_b64_tr_b16 {a((ks*2 + ct)*4 + 2*hi, 2)}, v{t+2+hi} offset:{(ks % 16)*2048 + ct*64}")
        E.drain(lg=True)
        if n_iss[0] < 64:
            for _ in range(4): issue()


def fetch_list(sc):
    return [(f"s_add_u32 m0, s{G_M0}, {1024*j}", f"buffer_load_dwordx4 v{V_DM+j}, {s(G_ASRD,4)}, s{G_AOFF} offen{sc} lds") for j in range(8)]

def fetch_adv(need):
    return [f"s_cmp_gt_u32 s{G_N}, {need}", f"s_cselect_b32 s{G_T0}, s{G_ASTR}, 0", f"s_add_u32 s{G_AOFF}, s{G_AOFF}, s{G_T0}",
            f"s_add_u32 s{G_M0}, s{G_M0}, 32768", f"s_and_b32 s{G_M0}, s{G_M0}, 0x1ffff"]

def fetch_now(E, sc, tag, idx):
    if idx == 0: E(f"s_lshl_b32 s{G_M0}, s{G_W}, 13")
    for m, d in fetch_list(sc):
        E(m); E("s_nop 0"); E.vmem(d, tag=tag)
    for x in fetch_adv(idx + 1): E(x)

def rd_frag(ks, par):
    return f"ds_read_b128 {v(V_AF + 4*(ks % NF), 4)}, v{V_RD + (ks & 7)} offset:{par*32768 + (ks >> 3)*8192}"

def mfma(vstyle, par, ks, ct):
    x_ = v(V_AF + 4*(ks % NF), 4)
    if M16:
        kk, tt = ks >> 1, ks & 1
        out = []
        for c in (2*ct, 2*ct + 1):
            d = v(V_ACC + 32*par + (8*c + 4*tt if vstyle else 8*(2*(c >> 1) + tt) + 4*(c & 1)), 4); w_ = a((kk*4 + c)*4, 4)
            ops = (x_, w_) if vstyle else (w_, x_)
            out.append(f"v_mfma_f32_16x16x32_bf16 {d}, {ops[0]}, {ops[1]}, {'0' if kk == 0 else d}")
        return out
    d = v(V_ACC + 32*par + 16*ct, 16); w_ = a((ks*2 + ct)*4, 4)
    ops = (x_, w_) if vstyle else (w_, x_)
    return [f"v_mfma_f32_32x32x16_bf16 {d}, {ops[0]}, {ops[1]}, {'0' if ks == 0 else d}"]

def epilogue_ops(par, sc, scale):
    out = []
    for b in range(4):
        base = V_ACC + 32*par + 8*b
        vl = []
        for i in range(4):
            if scale: vl += [f"v_mul_f32 v{base+2*i}, s{G_SCALE}, v{base+2*i}", f"v_mul_f32 v{base+2*i+1}, s{G_SCALE}, v{base+2*i+1}"]
            vl += [f"v_cvt_pk_bf16_f32 v{V_PK+4*b+i}, v{base+2*i}, v{base+2*i+1}"]
        out.append((vl, f"buffer_store_dwordx4 {v(V_PK+4*b,4)}, v{V_ST}, {s(G_WS,4)}, s{G_OOFF} offen offset:{out_imm(b)}{sc}"))
    return out


def publish(E, t=V_T):
    E(f"v_mov_b32 v{t}, s{G_DONE}\n v_min_u32 v{t+1}, 1, v0\n v_lshlrev_b32 v{t+1}, 30, v{t+1}")
    E(f"buffer_store_dword v{t}, v{t+1}, {s(G_WS,4)}, s{G_FLAG} offen sc1")


def stream(E, vstyle, asc, osc, flags, scale=False):
    errs = []
    top, done = E.label("G_top"), [E.label("G_done0"), E.label("G_done1")]
    fin = E.label("G_fin")
    E(f"s_mov_b32 s{G_T1}, s{G_OOFF}\n v_mov_b32 v{V_ST}, 0x40000000")
    if flags:
        E(f"s_mov_b32 s{G_T3}, -{LAG}\n v_min_u32 v{V_T+1}, 1, v0\n v_lshlrev_b32 v{V_T+1}, 30, v{V_T+1}")
    for ks in range(LEAD): E.ds(rd_frag(ks, 0))
    lg0 = list(E.lg)
    E(".p2align 6")
    E(top + ":")
    l0 = len(E.lines)
    NV = 13 if flags else 12
    for par in range(2):
        ep = epilogue_ops(1 - par, osc, scale)
        fl = fetch_list(asc)
        slots = {n: [] for n in range(64)}
        for j in range(8):
            slots[4*j].append(fl[j][0]); slots[4*j + 1].append(fl[j][1])
        for k, x in enumerate(fetch_adv(3)): slots[30 + k].append(x)
        n = 2
        for b, (vl, st) in enumerate(ep):
            for k in range(0, 12, 2):
                slots[n] += vl[k:k+2]; n += 1
            slots[35 + 4*b].append(st)
        slots[48] += [f"s_mov_b32 s{G_OOFF}, s{G_T1}", f"v_mov_b32 v{V_ST}, v{V_SO}"]; slots[50].append(f"s_add_u32 s{G_T1}, s{G_T1}, s{G_OSTR}")
        if flags:
            slots[54] += [f"s_add_u32 s{G_T3}, s{G_T3}, 1"]
            slots[55] += [f"s_max_i32 s{G_DONE}, s{G_T3}, 0", f"v_mov_b32 v{V_T}, s{G_DONE}"]
            slots[57] += [f"buffer_store_dword v{V_T}, v{V_T+1}, {s(G_WS,4)}, s{G_FLAG} offen sc1"]
        slots[60].append(f"s_sub_u32 s{G_N}, s{G_N}, 1"); slots[62].append(f"s_cmp_eq_u32 s{G_N}, 0")
        for n in range(64):
            ks, ct = n >> 1, n & 1
            if n == 0: E.need(v(V_AF, 4))
            mm = mfma(vstyle, par, ks, ct)
            E(mm[0])
            nxt = lambda: ct == 1 and ks < 31 and E.need(v(V_AF + 4*((ks + 1) % NF), 4))
            if len(mm) == 1: nxt()
            kb = 32 - LEAD
            if n == 2 * kb - 1:
                E(f"s_waitcnt vmcnt({NV if flags and LAG == 2 else NV + 4})\n s_barrier")
            sl = slots[n]
            sc_ = [x for x in sl if x.startswith("s_")]; vm_ = [x for x in sl if x.startswith("buffer")]; va_ = [x for x in sl if x.startswith("v_")]
            for x in sc_: E(x)
            if ct == 0:
                k2 = ks + LEAD
                if k2 < 32: E.ds(rd_frag(k2, par))
                else: E.ds(rd_frag(k2 - 32, 1 - par))
            for x in vm_: E(x)
            if len(mm) == 2:
                E(mm[1]); nxt()
            for x in va_: E(x)
            if par == 1 and ct == 1:
                k2 = ks + LEAD
                if 24 <= k2 < 32: E(f"v_xor_b32 v{V_RD + (k2 & 7)}, 0x10000, v{V_RD + (k2 & 7)}")
        E(f"s_cbranch_scc1 {done[par]}")
    assert E.lg == lg0
    E(f"s_branch {top}")
    body = E.lines[l0:]
    errs += hazard.check([rd_frag(ks, 0) for ks in range(LEAD)] + body + body, "gemm stream")
    for par in range(2):
        E(done[par] + ":")
        l1 = len(E.lines)
        E("s_nop 7\n s_nop 3")
        for vl, st in epilogue_ops(par, osc, scale):
            for x in vl: E(x)
            E(st)
        if par == 0: E(f"s_branch {fin}")
        errs += hazard.check(mfma(vstyle, par, 31, 1) + E.lines[l1:], "gemm tail")
    E(fin + ":")
    E.drain(lg=True, vm=True)
    E("s_barrier")
    if flags:
        E(f"s_add_u32 s{G_DONE}, s{G_T3}, {LAG}")
        publish(E)
    return errs


def proj_setup(E, s_kind, s_h, s_t0, s_dt):
    import math, struct
    c = struct.unpack("<I", struct.pack("<f", math.log2(math.e) / math.sqrt(128.0)))[0]
    T0, T1, T2, T3 = G_T0, G_T1, G_T2, G_T3
    E(f"s_lshr_b32 s{T3}, s{G_W}, 1")
    def pick(dst, tab):
        E(f"s_cmp_eq_u32 s{T3}, 0")
        E(f"s_cselect_b32 s{dst}, {tab[0][0]}, {tab[0][1]}\n s_cselect_b32 s{T1}, {tab[1][0]}, {tab[1][1]}\n s_cselect_b32 s{T2}, {tab[2][0]}, {tab[2][1]}")
        E(f"s_cmp_eq_u32 s{s_kind}, 1\n s_cselect_b32 s{dst}, s{T1}, s{dst}\n s_cmp_eq_u32 s{s_kind}, 2\n s_cselect_b32 s{dst}, s{T2}, s{dst}")
    pick(T0, [(ARG["wq"] // 8, ARG["bwq"] // 8), (ARG["wuk"] // 8, ARG["wuv"] // 8), (ARG["bwk"] // 8, ARG["bwv"] // 8)])
    E(f"s_lshl_b32 s{T0}, s{T0}, 3\n s_load_dwordx2 s[{G_WSRD}:{G_WSRD+1}], s[0:1], s{T0}")
    E(f"s_cmp_eq_u32 s{s_kind}, 1\n s_cselect_b32 s{T0}, {ARG['ckv']}, {ARG['x']}\n s_load_dwordx2 s[{G_ASRD}:{G_ASRD+1}], s[0:1], s{T0}")
    pick(G_OOFF, [(QA >> 24, QB >> 24), (KA >> 24, VA >> 24), (KB >> 24, VB >> 24)])
    E(f"s_lshl_b32 s{G_OOFF}, s{G_OOFF}, 5\n s_add_u32 s{G_OOFF}, s{G_OOFF}, s{s_h}\n s_lshl_b32 s{G_OOFF}, s{G_OOFF}, 6\n s_add_u32 s{G_OOFF}, s{G_OOFF}, s{s_t0}")
    E(f"s_and_b32 s{T1}, s{G_W}, 1\n s_lshl_b32 s{G_OOFF}, s{G_OOFF}, 1\n s_add_u32 s{G_OOFF}, s{G_OOFF}, s{T1}\n s_lshl_b32 s{G_OOFF}, s{G_OOFF}, 12")
    E(f"s_lshl_b32 s{G_OSTR}, s{s_dt}, 13\n s_lshl_b32 s{G_AOFF}, s{s_t0}, 15\n s_lshl_b32 s{G_ASTR}, s{s_dt}, 15")
    E(f"s_lshl_b32 s{G_WOFF}, s{s_h}, 1\n s_add_u32 s{G_WOFF}, s{G_WOFF}, s{T1}\n s_lshl_b32 s{G_WOFF}, s{G_WOFF}, 7\n s_mov_b32 s{G_WSTR}, 8192")
    E(f"s_mov_b32 s{G_SCALE}, {hex(c)}")
    E("s_waitcnt lgkmcnt(0)")
    E(f"s_and_b32 s{G_WSRD+1}, s{G_WSRD+1}, 0xffff\n s_mov_b32 s{G_WSRD+2}, {4*MB}\n s_mov_b32 s{G_WSRD+3}, 0x20000")
    E(f"s_and_b32 s{G_ASRD+1}, s{G_ASRD+1}, 0xffff\n s_mov_b32 s{G_ASRD+2}, {2*MB}\n s_mov_b32 s{G_ASRD+3}, 0x20000")


def proj_task(E, s_kind, s_h, s_t0, s_dt, osc, flags, diag=False, hook=None, win=32, hook2=None):
    errs = []
    l0 = len(E.lines)
    proj_setup(E, s_kind, s_h, s_t0, s_dt)
    SV = 32
    E(f"s_cmp_eq_u32 s{s_kind}, 0\n s_cselect_b32 s{SV}, 0, s{G_W}\n s_lshr_b32 s{SV}, s{SV}, 1")
    addr_rowmajor(E, SV)
    if diag and diag > 1: tmark(E, diag - 1)
    load_w(E, False, hook=lambda: (fetch_now(E, "", "a", 0), hook and hook()), win=win, s_v=SV)
    E("s_barrier")
    fetch_now(E, "", "a", 1)
    E.drain(vm=True)
    E("s_barrier")
    if hook2: hook2()
    errs += hazard.check(E.lines[l0:], "proj prologue")
    if diag: tmark(E, diag)
    lv, le = E.label("P_v"), E.label("P_end")
    E(f"s_cmp_lg_u32 s{SV}, 0\n s_cbranch_scc1 {lv}")
    lq = E.label("P_q")
    E(f"s_cmp_eq_u32 s{s_kind}, 0\n s_cbranch_scc1 {lq}")
    errs += stream(E, False, "", osc, flags)
    E(f"s_branch {le}")
    E(lq + ":")
    errs += stream(E, False, "", osc, flags, True)
    E(f"s_branch {le}")
    E(lv + ":")
    errs += stream(E, True, "", osc, flags)
    E(le + ":")
    return errs


def ws_srd(E):
    E(f"s_load_dwordx2 s[{G_WS}:{G_WS+1}], s[0:1], {ARG['ws']}\n s_waitcnt lgkmcnt(0)")
    E(f"s_and_b32 s{G_WS+1}, s{G_WS+1}, 0xffff\n s_mov_b32 s{G_WS+2}, {WS_BYTES}\n s_mov_b32 s{G_WS+3}, 0x20000")


def proj_kernel(E, name, osc="", split=2, diag=False):
    E(kernel_header(name))
    end = E.label("P_exit")
    E(f"s_cmp_ge_u32 s2, {96*split}\n s_cbranch_scc1 {end}")
    lane_setup(E); ws_srd(E)
    E(f"s_and_b32 s40, s2, 31\n s_lshr_b32 s41, s2, 5\n s_mul_i32 s42, s41, 43\n s_lshr_b32 s42, s42, 7\n s_mul_i32 s43, s42, 3\n s_sub_u32 s41, s41, s43")
    E(f"s_mov_b32 s43, {split}\n s_mov_b32 s{G_N}, {64 // split}")
    if diag: tmark(E, 0)
    errs = proj_task(E, 41, 40, 42, 43, osc, False, diag)
    if diag: tmark(E, 2); tdump(E, G_WS, STAMP, 2)
    E(end + ":\n s_endpgm")
    return errs

if __name__ == "__main__":
    E = Em()
    E("; @launch grid=(192,1,1) block=(256,1,1) lds=163840")
    E('.amdgcn_target "amdgcn-amd-amdhsa--gfx950"')
    errs = proj_kernel(E, "proj_kernel")
    E(kernel_desc("proj_kernel"))
    open("proj.s", "w").write(E.text())
    print(len(errs), "hazards")
```

```python
import struct, math
from emit import *
from layout import *
from gemm import *
import gemm

def fbits(x): return struct.unpack("<I", struct.pack("<f", x))[0]
def wsd(): return s(G_WS, 4)

def wo_setup(E, arg, s_hg, s_half, s_t0, s_dt, pbase):
    T0, T1 = G_T0, G_T1
    E(f"s_load_dwordx2 s[{G_WSRD}:{G_WSRD+1}], s[0:1], {ARG[arg]}")
    E(f"s_lshl_b32 s{G_WOFF}, s{s_hg}, 19\n s_lshl_b32 s{T0}, s{s_half}, 2\n s_add_u32 s{T0}, s{T0}, s{G_W}\n s_lshl_b32 s{T1}, s{T0}, 7")
    E(f"s_add_u32 s{G_WOFF}, s{G_WOFF}, s{T1}\n s_mov_b32 s{G_WSTR}, 1024")
    E(f"s_lshl_b32 s{G_OOFF}, s{s_hg}, 6\n s_add_u32 s{G_OOFF}, s{G_OOFF}, s{s_t0}\n s_lshl_b32 s{G_OOFF}, s{G_OOFF}, 3\n s_add_u32 s{G_OOFF}, s{G_OOFF}, s{T0}")
    E(f"s_lshl_b32 s{G_OOFF}, s{G_OOFF}, 12\n s_add_u32 s{G_OOFF}, s{G_OOFF}, {PART + pbase*2*MB}\n s_lshl_b32 s{G_OSTR}, s{s_dt}, 15")
    E(f"s_mov_b32 s{G_SCALE}, 1.0\n s_waitcnt lgkmcnt(0)")
    E(f"s_and_b32 s{G_WSRD+1}, s{G_WSRD+1}, 0xffff\n s_mov_b32 s{G_WSRD+2}, {4*MB}\n s_mov_b32 s{G_WSRD+3}, 0x20000")


def oproj_task(E, s_hg, s_half, s_t0, s_dt, sc, osc, flags, wait=None, win=32):
    l0 = len(E.lines)
    wo_setup(E, "wo", s_hg, s_half, s_t0, s_dt, 0)
    E(f"s_mov_b32 s{G_ASRD}, s{G_WS}\n s_mov_b32 s{G_ASRD+1}, s{G_WS+1}\n s_mov_b32 s{G_ASRD+2}, {WS_BYTES}\n s_mov_b32 s{G_ASRD+3}, 0x20000")
    E(f"s_lshl_b32 s{G_AOFF}, s{s_hg}, 8\n s_add_u32 s{G_AOFF}, s{G_AOFF}, s{s_t0}\n s_lshl_b32 s{G_AOFF}, s{G_AOFF}, 13\n s_add_u32 s{G_AOFF}, s{G_AOFF}, {CTXA}")
    E(f"s_lshl_b32 s{G_ASTR}, s{s_dt}, 13")
    addr_frag(E, 64 * 8192)
    load_w(E, True, win=win)
    if wait: wait()
    E("s_barrier")
    fetch_now(E, sc, "a", 0)
    if win < 32: E("s_waitcnt vmcnt(2)")
    fetch_now(E, sc, "a", 1)
    E.drain(vm=True)
    E("s_barrier")
    errs = hazard.check(E.lines[l0:], "oproj prologue")
    errs += stream(E, False, sc, osc, flags)
    return errs


FQ, FK, FV, FC = 144, 176, 208, 240
FSX, FSM, FVM, FO, FP = 24, 40, 56, 64, 128
F_WR, F_TR, F_VMA, F_M, F_T, F_XL, F_ST = 3, 4, 5, 6, 16, 21, 22
F_SO = 20
F_PRE, F_CNT = 24, 55
F_QOFF, F_KMOFF, F_KML = 19, 20, 25
L_KMF = 65536

def follower_task(E, s_hg, s_half, s_t0, s_dt, sc, osc, wait_x=None, wait_m=None, mid=None, diag=False, preat=25, specat=None, nfused=0, GB=12, GE=10):
    errs = []
    l0 = len(E.lines)
    wo_setup(E, "bwo", s_hg, s_half, s_t0, s_dt, 8)
    addr_frag(E, 0)
    E(f"v_mov_b32 v{F_SO}, v{V_SO}")
    load_w(E, True)
    T0, T1, T2, T3 = G_T0, G_T1, G_T2, G_T3
    E(f"s_lshl_b32 s{T0}, s{s_hg}, 2\n s_add_u32 s{T0}, s{T0}, s{G_W}")
    E(f"s_lshl_b32 s{T1}, s{T0}, 6\n s_add_u32 s{T1}, s{T1}, s{s_t0}\n s_lshl_b32 s{F_QOFF}, s{T1}, 13")
    E(f"s_lshl_b32 s{T1}, s{s_t0}, 5\n s_add_u32 s{T1}, s{T1}, s{T0}\n s_mul_i32 s{T1}, s{T1}, {KMB}\n s_add_u32 s{F_KMOFF}, s{T1}, {KM}")
    E(f"s_lshl_b32 s{F_KML}, s{G_W}, 12\n s_add_u32 s{F_KML}, s{F_KML}, {L_KMF}")
    E(f"s_lshl_b32 s{T0}, s{G_W}, 13\n v_add_u32 v{F_WR}, s{T0}, v{V_L16}")
    t = F_T
    E(f"v_lshrrev_b32 v{t}, 5, v{V_LANE}\n v_and_b32 v{t+1}, 31, v{V_LANE}")
    E(f"v_bfe_u32 v{t+2}, v{V_LANE}, 4, 1\n v_lshl_add_u32 v{t+2}, v{t+2}, 1, v{t}\n v_and_b32 v{t+3}, 15, v{V_LANE}\n v_lshl_add_u32 v{t+2}, v{t+2}, 4, v{t+3}")
    E(f"v_lshl_add_u32 v{F_VMA}, v{t+2}, 4, s{F_KML}")
    E(f"v_bfe_u32 v{t+2}, v{V_LANE}, 2, 2\n v_lshl_add_u32 v{t+2}, v{t}, 2, v{t+2}\n v_and_b32 v{t+3}, 1, v{V_LANE}\n v_lshl_add_u32 v{t+2}, v{t+3}, 4, v{t+2}")
    E(f"v_lshl_add_u32 v{F_TR}, v{t+2}, 4, s{F_KML}")
    E(f"v_lshlrev_b32 v{t}, 2, v{t}\n v_sub_u32 v{t+1}, v{t+1}, v{t}\n v_mov_b32 v{t+2}, {hex(fbits(-1e30))}")
    for i in range(16):
        E(f"v_cmp_le_i32 vcc, {8*(i>>2) + (i&3)}, v{t+1}\n s_nop 1\n v_cndmask_b32 v{FC+i}, v{t+2}, 0, vcc")
    def xloads():
        out = []
        for reg, base in ((FQ, QB), (FK, KB), (FV, VB)):
            for hf in range(2):
                out.append(f"s_add_u32 s{T2 + hf}, s{F_QOFF}, {base + 4096*hf}")
                out += [f"buffer_load_dwordx4 {v(reg + 16*hf + 4*i, 4)}, v{F_XL}, {wsd()}, s{T2 + hf} offen offset:{1024*i}{sc}" for i in range(4)]
        return out
    E(f"v_mov_b32 v{F_XL}, v{V_L16}\n s_barrier")
    if wait_x: wait_x(True)
    def mloads():
        E(f"s_mov_b32 m0, s{F_KML}\n s_nop 0")
        for j in range(4):
            E(f"buffer_load_dwordx4 v{V_L16}, {wsd()}, s{F_KMOFF} offen offset:{1024*j}{sc} lds")
    for x in xloads(): (E.vmem if x.startswith("buffer") else E)(x)
    E(f"s_mov_b32 s{F_PRE}, 0\n v_mov_b32 v{F_ST}, 0x40000000\n s_sub_u32 s{G_OOFF}, s{G_OOFF}, s{G_OSTR}")
    errs += hazard.check(E.lines[l0:], "follower prologue")
    E.vm = E.vm[8:]
    vm0 = [set(x) for x in E.vm]
    top, have = E.label("F_top"), E.label("F_have")
    m32 = lambda d, a_, b_, c_: f"v_mfma_f32_32x32x16_bf16 {v(d,16)}, {v(a_,4)}, {v(b_,4)}, {c_}"
    cv = lambda d, x: f"v_cvt_pk_bf16_f32 v{d}, v{x}, v{x+1}"
    stp = lambda b: f"buffer_store_dwordx4 {v(V_PK+4*b,4)}, v{F_ST}, {wsd()}, s{G_OOFF} offen offset:{out_imm(b)}{osc}"
    trs = [f"ds_read_b64_tr_b16 {v(FK + 4*st + 2*hi, 2)}, v{F_TR} offset:{512*st + 128*hi + 8}" for st in range(8) for hi in range(2)]
    trs += [f"ds_read_b64 {v(FVM + 2*dt, 2)}, v{F_VMA} offset:{1024*dt}" for dt in range(4)]
    if nfused:
        assert gemm.M16
        SX, SM = 96, 112
        G = [x for n in range(64) for x in mfma(False, 0, n >> 1, n & 1)]
        gi = [0]
        cost = lambda x: 2 if x.startswith(("v_exp", "v_rcp", "v_permlane")) else int(x.split()[1]) + 1 if x.startswith("s_nop") else 1
        def put(x):
            if callable(x): x()
            elif x.startswith("ds_"): E.ds(x)
            elif x.startswith("buffer"): E.vmem(x)
            else: E(x)
        def slot(cap, memq, valq, nmem):
            while memq and nmem and cap:
                x = memq.pop(0); put(x)
                if callable(x) or not x.startswith("s_"): nmem -= 1; cap -= 1
            while valq and cap >= cost(valq[0]) - (cap == 1 and valq[0].startswith("s_nop")):
                cap -= cost(valq[0]); put(valq.pop(0))
        def gem(count, memq, valq, every=2):
            for _ in range(count):
                k = gi[0]; gi[0] += 1; ks = k >> 2
                if k & 3 == 0: E.need(v(V_AF + 4*(ks % NF), 4))
                E(G[k])
                if k & 3 == 3 and ks < 31: E.need(v(V_AF + 4*((ks + 1) % NF), 4))
                cap = 2
                if k & 3 == 0 and ks + LEAD < 32: E.ds(rd_frag(ks + LEAD, 0)); cap = 1
                slot(cap, memq, valq, 1 if k & 3 and k % every == every - 1 else 0)
        E(f"s_sub_u32 s{G_OOFF}, s{G_OOFF}, s{G_OSTR}\n s_mov_b32 s{F_CNT}, 0")
        for j in range(8): E(f"v_xor_b32 v{V_RD + j}, 0x8000, v{V_RD + j}")
        ftop, fhave = E.label("F_ftop"), E.label("F_fhave")
        E.lg = [{"ow"}]
        E(ftop + ":")
        f1 = len(E.lines)
        E.need(v(FQ, 64))
        for st in range(8):
            E(m32(SX, FK + 4*st, FQ + 4*st, v(FC if st == 0 else SX, 16)))
            if st == 1:
                E.need(tags=["ow"]); E("s_barrier")
            if st >= 2: E.ds(rd_frag(st - 2, 0))
            if st & 1: E.vmem(stp(st >> 1), tag="st")
            else:
                if st == 0: mid(3)
                for j in range(4): E(cv(V_PK + 2*st + j, V_ACC + 4*st + 2*j))
        assert LEAD == 6
        E(f"s_cmp_lg_u32 s{F_PRE}, 0\n s_cbranch_scc1 {fhave}")
        f2 = len(E.lines)
        wait_m(None)
        mloads()
        E("s_waitcnt vmcnt(0)")
        f3 = len(E.lines)
        E(fhave + ":")
        mq = list(trs)
        vq = [f"v_max_f32 v{F_M}, v{SX}, v{SX+1}"] + [f"v_max3_f32 v{F_M}, v{F_M}, v{SX+e}, v{SX+e+1}" for e in range(2, 16, 2)]
        for x in mq[:4]: E.ds(x)
        mq = mq[4:]
        gem(GB, mq, [], 1)
        sal = [f"s_add_u32 s{G_OOFF}, s{G_OOFF}, s{G_OSTR}", f"s_sub_u32 s{G_N}, s{G_N}, 1", f"s_lshl_b32 s{T1}, s{s_dt}, 13",
               f"s_add_u32 s{F_QOFF}, s{F_QOFF}, s{T1}", f"s_mul_i32 s{T1}, s{s_dt}, {32*KMB}", f"s_add_u32 s{F_KMOFF}, s{F_KMOFF}, s{T1}",
               f"s_add_u32 s{F_CNT}, s{F_CNT}, 1", f"s_cmp_ge_u32 s{F_CNT}, 2\n s_cselect_b32 s{T1}, 0, 0x40000000\n v_or_b32 v{F_ST}, s{T1}, v{F_SO}"]
        for st in range(8):
            E.need(v(FK + 4*st, 4))
            E(m32(SM, FK + 4*st, FQ + 4*st, "0" if st == 0 else v(SM, 16)))
            if st < 7: E(sal[st])
            slot(4, mq, [], 3)
            E(vq[st])
        assert not mq
        E(sal[7])
        if wait_x: wait_x(False)
        xl = xloads()
        def pre():
            E.need(v(FVM, 8))
            mid(1)
            nopre = E.label("F_nopre")
            E(f"s_cbranch_scc0 {nopre}")
            mloads()
            E(nopre + ":")
        mq = xl[:10] + [pre] + xl[10:20]; xv = xl[20:]
        vals = [SX + i for i in range(20)]
        vq = [f"v_max3_f32 v{F_M}, v{F_M}, v{SM}, v{SM+1}", f"v_max3_f32 v{F_M}, v{F_M}, v{SM+2}, v{SM+3}", f"v_mov_b32 v{t}, v{F_M}", "s_nop 1",
              f"v_permlane32_swap_b32 v{F_M}, v{t}", "s_nop 1", f"v_max_f32 v{F_M}, v{F_M}, v{t}"]
        sub = lambda k: f"v_sub_f32 v{vals[k]}, v{vals[k]}, v{F_M}"
        add = lambda k: f"v_add_f32 v{t}, v{vals[0] if k == 1 else t}, v{vals[k]}"
        vq += [sub(0), sub(1)]
        for k in range(20):
            vq.append(f"v_exp_f32 v{vals[k]}, v{vals[k]}")
            if k + 2 < 20: vq.append(sub(k + 2))
            if k >= 2: vq.append(add(k - 1))
        vq += [add(19), f"v_mov_b32 v{t+1}, v{t}", "s_nop 1", f"v_permlane32_swap_b32 v{t}, v{t+1}", "s_nop 1", f"v_add_f32 v{t}, v{t}, v{t+1}",
               f"v_rcp_f32 v{F_M}, v{t}", "s_nop 0"]
        for p in range(10):
            vq += [f"v_mul_f32 v{vals[2*p]}, v{F_M}, v{vals[2*p]}", f"v_mul_f32 v{vals[2*p+1]}, v{F_M}, v{vals[2*p+1]}", cv(FP + p, vals[2*p])]
        gem(3, mq, [], 4)
        gem(128 - GB - 3 - GE, mq, vq, 4)
        follower_task.left = (len(mq), sum(map(cost, vq)))
        for x in mq + vq: put(x)
        E.need(v(FV, 32))
        E("s_nop 0")
        OB = lambda dt: SX if dt & 1 else SM
        post = lambda dt: [cv(OB(dt) + j, OB(dt) + 2*j) for j in range(8)]
        wr2 = lambda dt: [f"ds_write_b128 v{F_WR}, {v(OB(dt) + 4*b, 4)} offset:{1024*(2*dt + b)}" for b in range(2)]
        for dt in range(4):
            vq = post(dt - 1) if dt else []; wq = wr2(dt - 1) if dt else []
            E(m32(OB(dt), FV + 8*dt, FP, "0"))
            if dt: slot(2, xv, [], 2)
            E(m32(OB(dt), FV + 8*dt + 4, FP + 4, v(OB(dt), 16))); slot(6, [], vq, 0)
            E(f"v_mfma_f32_32x32x8_bf16 {v(OB(dt),16)}, {v(FVM+2*dt,2)}, {v(FP+8,2)}, {v(OB(dt),16)}")
            slot(1, wq, [], 1); slot(2, [], vq, 0); slot(1, wq, [], 1)
        gem(3, xv, [], 1)
        vq = post(3); wq = wr2(3)
        gem(GE - 5, [], vq)
        assert not vq
        vq = [f"v_xor_b32 v{V_RD + j}, 0x8000, v{V_RD + j}" for j in range(8)]
        gem(2, wq, vq, 1)
        for x in wq + vq: put(x)
        assert gi[0] == 128 and not xv
        E.lg[-1].add("ow"); E.lg = [{"ow"}]
        E(f"v_xor_b32 v{F_WR}, 0x8000, v{F_WR}")
        E.vm = E.vm[-16:]
        assert E.vm == vm0
        E(f"s_cmp_lt_u32 s{F_CNT}, {nfused}\n s_cbranch_scc1 {ftop}")
        body = E.lines[f1:]
        errs += hazard.check(body + body, "follower fused")
        errs += hazard.check(body + body[:f2 - f1] + body[f3 - f1:], "follower fused (prefetched)")
        f4 = len(E.lines)
        E.drain(lg=True)
        E("s_barrier")
        for ks in range(LEAD): E.ds(rd_frag(ks, 0))
        for b in range(4):
            for j in range(4): E(cv(V_PK + 4*b + j, V_ACC + 8*b + 2*j))
            E(stp(b))
        E(f"s_add_u32 s{G_OOFF}, s{G_OOFF}, s{G_OSTR}")
        gi[0] = 0
        gem(128, [], [])
        for j in range(8): E(f"v_xor_b32 v{V_RD + j}, 0x8000, v{V_RD + j}")
        mid(4)
        errs += hazard.check(body + E.lines[f4:], "follower hand-over")
    if diag:
        for i in range(8): E(f"s_mov_b32 s{86+i}, 0")
        tacc(E, None)
    E(top + ":")
    l1 = len(E.lines)
    E.need(v(FQ, 64))
    if diag: tacc(E, 0)
    for st in range(8):
        E(m32(FSX, FK + 4*st, FQ + 4*st, v(FC if st == 0 else FSX, 16)))
        if st & 1: E.vmem(stp(st >> 1), tag="st")
        else:
            if st == 0: E("s_nop 1")
            for j in range(4): E(cv(V_PK + 2*st + j, V_ACC + 4*st + 2*j))
    E(f"s_add_u32 s{G_OOFF}, s{G_OOFF}, s{G_OSTR}\n v_mov_b32 v{F_ST}, v{F_SO}")
    E(f"s_cmp_lg_u32 s{F_PRE}, 0\n s_cbranch_scc1 {have}")
    l2 = len(E.lines)
    if wait_m: wait_m(have)
    mloads()
    E("s_waitcnt vmcnt(0)")
    l3 = len(E.lines)
    E(have + ":")
    if diag: tacc(E, 1)
    for x in trs[:12]: E.ds(x)
    E(f"s_sub_u32 s{G_N}, s{G_N}, 1\n s_cmp_gt_u32 s{G_N}, 0\n s_cselect_b32 s{T0}, s{s_dt}, 0")
    E(f"s_cselect_b32 s{T1}, 0, 0x40000000\n v_or_b32 v{F_XL}, s{T1}, v{F_XL}")
    E(f"s_lshl_b32 s{T1}, s{T0}, 13\n s_add_u32 s{F_QOFF}, s{F_QOFF}, s{T1}\n s_mul_i32 s{T1}, s{T0}, {32*KMB}\n s_add_u32 s{F_KMOFF}, s{F_KMOFF}, s{T1}")
    if wait_x: wait_x(False)
    mxs = [f"v_max_f32 v{F_M}, v{FSX}, v{FSX+1}"] + [f"v_max3_f32 v{F_M}, v{F_M}, v{FSX+e}, v{FSX+e+1}" for e in range(2, 16, 2)]
    for st in range(8):
        E.need(v(FK + 4*st, 4))
        E(m32(FSM, FK + 4*st, FQ + 4*st, "0" if st == 0 else v(FSM, 16)))
        if st < 4:
            for x in trs[12 + 2*st:14 + 2*st]: E.ds(x)
        E(mxs[st])
    xl = xloads()
    def xput(n=1):
        for _ in range(n):
            if xl[0].startswith("s_"): E(xl.pop(0))
            E.vmem(xl.pop(0))
    xput(2)
    E("s_nop 7")
    E(f"v_max3_f32 v{F_M}, v{F_M}, v{FSM}, v{FSM+1}\n v_max3_f32 v{F_M}, v{F_M}, v{FSM+2}, v{FSM+3}")
    E(f"v_mov_b32 v{t}, v{F_M}\n s_nop 1\n v_permlane32_swap_b32 v{F_M}, v{t}\n s_nop 1\n v_max_f32 v{F_M}, v{F_M}, v{t}")
    if diag: tacc(E, 2)
    vals = [FSX + i for i in range(20)]
    assert FSM == FSX + 16
    for x in vals[::2]: E(f"v_pk_add_f32 {v(x,2)}, {v(x,2)}, {v(F_M,2)} op_sel_hi:[1,0] neg_lo:[0,1] neg_hi:[0,1]")
    for k, x in enumerate(vals):
        E(f"v_exp_f32 v{x}, v{x}")
        if k == 9: xput()
    E(f"v_pk_add_f32 {v(t,2)}, {v(vals[0],2)}, {v(vals[2],2)}")
    for x in vals[4::2]: E(f"v_pk_add_f32 {v(t,2)}, {v(t,2)}, {v(x,2)}")
    E(f"v_add_f32 v{t}, v{t}, v{t+1}\n v_mov_b32 v{t+1}, v{t}")
    xput()
    E(f"s_nop 0\n v_permlane32_swap_b32 v{t}, v{t+1}\n s_nop 1\n v_add_f32 v{t}, v{t}, v{t+1}\n v_rcp_f32 v{F_M}, v{t}\n s_nop 0")
    for x in vals[::2]: E(f"v_pk_mul_f32 {v(x,2)}, {v(x,2)}, {v(F_M,2)} op_sel_hi:[1,0]")
    for p in range(10): E(cv(FP + p, FSX + 2*p))
    E.need(v(FV, 32), v(FVM, 8))
    if diag: tacc(E, 3)
    wr = lambda b: f"ds_write_b128 v{F_WR}, {v(FSX+4*b,4)} offset:{1024*b}"
    post = lambda b: [cv(FSX + 4*b + j, FO + 8*b + 2*j) for j in range(4)]
    for dt in range(4):
        E(m32(FO + 16*dt, FV + 8*dt, FP, "0"))
        if dt >= 2: E.ds(wr(2*dt - 3))
        xput()
        E(m32(FO + 16*dt, FV + 8*dt + 4, FP + 4, v(FO + 16*dt, 16)))
        if dt >= 1:
            for x in post(2*dt - 2): E(x)
        E(f"v_mfma_f32_32x32x8_bf16 {v(FO+16*dt,16)}, {v(FVM+2*dt,2)}, {v(FP+8,2)}, {v(FO+16*dt,16)}")
        if dt >= 1:
            E.ds(wr(2*dt - 2))
            for x in post(2*dt - 1): E(x)
    E.ds(wr(5))
    E("s_nop 5")
    for b in (6, 7):
        for x in post(b): E(x)
        E.ds(wr(b))
    if diag: tacc(E, 4)
    E.need(tags=["st"])
    E.drain(lg=True)
    E("s_barrier")
    if diag: tacc(E, 5)
    for ks in range(LEAD): E.ds(rd_frag(ks, 0))
    if mid: mid(0)
    for n in range(64):
        ks, ct = n >> 1, n & 1
        if n == 0: E.need(v(V_AF, 4))
        mm = mfma(False, 0, ks, ct)
        E(mm[0])
        if len(mm) == 1 and ct == 1 and ks < 31: E.need(v(V_AF + 4*((ks + 1) % NF), 4))
        if ct == 0:
            if xl and xl[0].startswith("s_"): E(xl.pop(0))
            if ks + LEAD < 32: E.ds(rd_frag(ks + LEAD, 0))
        elif n % 4 == 3: xput()
        if len(mm) == 2:
            E(mm[1])
            if ct == 1 and ks < 31: E.need(v(V_AF + 4*((ks + 1) % NF), 4))
        if mid and n == specat: mid(2)
        if mid and n == preat:
            mid(1)
            nopre = E.label("F_nopre")
            E(f"s_cbranch_scc0 {nopre}")
            mloads()
            E(nopre + ":")
        if n >= 54 and n < 62: E(f"v_xor_b32 v{V_RD + n - 54}, 0x8000, v{V_RD + n - 54}")
        if n == 62: E(f"v_xor_b32 v{F_WR}, 0x8000, v{F_WR}")
    assert not xl
    if diag: tacc(E, 6)
    E.vm = E.vm[-16:]
    assert E.vm == vm0
    E(f"s_cmp_gt_u32 s{G_N}, 0\n s_cbranch_scc1 {top}")
    body = E.lines[l1:]
    errs += hazard.check(body + body, "follower loop")
    errs += hazard.check(body + body[:l2 - l1] + body[l3 - l1:], "follower loop (prefetched)")
    l4 = len(E.lines)
    E("s_nop 2")
    for b in range(4):
        for j in range(4): E(cv(V_PK + 4*b + j, V_ACC + 8*b + 2*j))
        E(stp(b))
    errs += hazard.check(body + E.lines[l4:], "follower tail")
    E.drain(vm=True, lg=True)
    E("s_barrier")
    return errs


def final_task(E, s_t, s_cq, sc, wait_a=None, wait_b=None, osc='', win=16, s_fast=None):
    l0 = len(E.lines)
    T0, T1, T2, T3 = G_T0, G_T1, G_T2, G_T3
    X, GW, D, LD, SA, SB, t = 16, 48, 80, 96, 160, 176, 4
    E(f"s_load_dwordx2 s[8:9], s[0:1], {ARG['x']}\n s_load_dwordx2 s[12:13], s[0:1], {ARG['gate']}\n s_load_dwordx2 s[32:33], s[0:1], {ARG['out']}")
    E(f"v_and_b32 v{t}, 31, v{V_LANE}\n v_lshrrev_b32 v{t+1}, 5, v{V_LANE}\n v_lshlrev_b32 v{t+1}, 4, v{t+1}\n v_lshl_add_u32 v{t+2}, v{t}, 10, v{t+1}")
    E(f"s_lshl_b32 s{T0}, s{G_W}, 8\n s_lshl_b32 s{T1}, s{s_t}, 15\n s_add_u32 s{T1}, s{T1}, s{T0}\n s_waitcnt lgkmcnt(0)")
    for b, n in ((8, 2*MB), (12, 1024), (32, 2*MB)):
        E(f"s_and_b32 s{b+1}, s{b+1}, 0xffff\n s_mov_b32 s{b+2}, {n}\n s_mov_b32 s{b+3}, 0x20000")
    for k in range(8):
        E.vmem(f"buffer_load_dwordx4 {v(X+4*k,4)}, v{t+2}, s[8:11], s{T1} offen offset:{32*k}")
        E.vmem(f"buffer_load_dwordx4 {v(GW+4*k,4)}, v{t+1}, s[12:15], s{T0} offen offset:{32*k}")
    E(f"s_lshl_b32 s{T2}, s{s_t}, 2\n s_add_u32 s{T2}, s{T2}, s{s_cq}\n s_lshl_b32 s{T2}, s{T2}, 2\n s_add_u32 s{T2}, s{T2}, s{G_W}\n s_lshl_b32 s{T2}, s{T2}, 11")
    def loads(p0, win):
        for p in range(8):
            E(f"s_add_u32 s{T3}, s{T2}, {PART + (p0 + p)*2*MB}")
            if 2*p >= win: E(f"s_waitcnt vmcnt({win - 2})")
            for b in range(2):
                E.vmem(f"buffer_load_dwordx4 {v(LD + 8*p + 4*b, 4)}, v{V_L16}, {wsd()}, s{T3} offen offset:{1024*b}{sc}")
    def accum(S):
        for p in range(8):
            E.need(v(LD + 8*p, 8))
            for j in range(8):
                x = LD + 8*p + j
                if p == 0:
                    E(f"v_lshlrev_b32 v{S+2*j}, 16, v{x}\n v_and_b32 v{S+2*j+1}, 0xffff0000, v{x}")
                else:
                    u = t + 4 + 2*(j & 3)
                    E(f"v_lshlrev_b32 v{u}, 16, v{x}\n v_and_b32 v{u+1}, 0xffff0000, v{x}\n v_pk_add_f32 {v(S+2*j,2)}, {v(S+2*j,2)}, {v(u,2)}")
    for k in range(8):
        E.need(v(X+4*k, 4), v(GW+4*k, 4))
        E(f"v_mfma_f32_32x32x16_bf16 {v(D,16)}, {v(GW+4*k,4)}, {v(X+4*k,4)}, {'0' if k == 0 else v(D,16)}")
    if wait_a: wait_a()
    loads(0, win)
    E(f"v_lshlrev_b32 v{t+3}, 4, v{t}\n s_lshl_b32 s{T0}, s{G_W}, 2\n v_add_u32 v{t}, s{T0}, v{t+3}")
    E(f"s_barrier\n ds_write_b32 v{t}, v{D}\n s_waitcnt lgkmcnt(0)\n s_barrier\n ds_read_b128 {v(D+4,4)}, v{t+3}\n s_waitcnt lgkmcnt(0)")
    E(f"v_add_f32 v{D}, v{D+4}, v{D+5}\n v_add_f32 v{D+1}, v{D+6}, v{D+7}\n v_add_f32 v{D}, v{D}, v{D+1}")
    E(f"v_mul_f32 v{D}, {hex(fbits(-math.log2(math.e)))}, v{D}\n v_exp_f32 v{D}, v{D}\n s_nop 0\n v_add_f32 v{D}, 1.0, v{D}\n v_rcp_f32 v{D}, v{D}\n s_nop 0\n v_sub_f32 v{D+2}, 1.0, v{D}")
    accum(SA)
    if wait_b: wait_b()
    if win < 16:
        lf, lj = E.label("Z_fast"), E.label("Z_join")
        E(f"s_cmp_ge_u32 s{s_t}, {s_fast}\n s_cbranch_scc1 {lf}")
        loads(8, win); E.vm = []
        E(f"s_branch {lj}\n{lf}:")
        loads(8, 16)
        E(lj + ":")
    else:
        loads(8, 16)
    for j in range(8): E(f"v_pk_mul_f32 {v(SA+2*j,2)}, {v(SA+2*j,2)}, {v(D,2)} op_sel_hi:[1,0]")
    accum(SB)
    for j in range(8):
        E(f"v_pk_fma_f32 {v(SA+2*j,2)}, {v(SB+2*j,2)}, {v(D+2,2)}, {v(SA+2*j,2)} op_sel_hi:[1,0,1]")
        E(f"v_cvt_pk_bf16_f32 v{X+j}, v{SA+2*j}, v{SA+2*j+1}")
    E(f"s_lshl_b32 s{T0}, s{s_cq}, 2\n s_add_u32 s{T0}, s{T0}, s{G_W}\n s_lshl_b32 s{T0}, s{T0}, 6\n s_lshl_b32 s{T1}, s{s_t}, 15\n s_add_u32 s{T0}, s{T0}, s{T1}")
    for b in range(2):
        E(f"buffer_store_dwordx4 {v(X+4*b,4)}, v{t+2}, s[32:35], s{T0} offen offset:{32*b}{osc}")
    return hazard.check(E.lines[l0:], "final")


def simple_kernel(E, name, nwg, body):
    E(kernel_header(name))
    end = E.label("K_exit")
    E(f"s_cmp_ge_u32 s2, {nwg}\n s_cbranch_scc1 {end}")
    lane_setup(E); ws_srd(E)
    errs = body()
    E(end + ":\n s_endpgm")
    return errs

def oproj_kernel(E, name):
    def body():
        E(f"s_and_b32 s40, s2, 7\n s_bfe_u32 s41, s2, 0x10003\n s_lshr_b32 s42, s2, 4\n s_mov_b32 s43, 16\n s_mov_b32 s{G_N}, 4")
        return oproj_task(E, 40, 41, 42, 43, "", "", False)
    return simple_kernel(E, name, 256, body)

def follower_kernel(E, name):
    def body():
        E(f"s_and_b32 s40, s2, 7\n s_bfe_u32 s41, s2, 0x10003\n s_lshr_b32 s42, s2, 4\n s_mov_b32 s43, 16\n s_mov_b32 s{G_N}, 4")
        return follower_task(E, 40, 41, 42, 43, "", "")
    return simple_kernel(E, name, 256, body)

def final_kernel(E, name):
    def body():
        E("s_lshr_b32 s40, s2, 2\n s_and_b32 s41, s2, 3")
        return final_task(E, 40, 41, "")
    return simple_kernel(E, name, 256, body)
```

```python
import math, struct
from emit import *
from layout import *
import align

def fbits(x):
    return struct.unpack("<I", struct.pack("<f", x))[0]

L_MEM, L_KX, L_VX, L_QM, L_KM, L_OM, L_SEL, L_FLG, L_W = 0, 8192, 16384, 24576, 26880, 29184, 31232, 32256, 32768
IDX, YRD, L16, LDX, WOP, QW, TR, PS, MP, KD, VD, OB = range(12)
XTR = MP
WL16 = 59
ONES = 12
AQ, AK, AV = 16, 20, 24
VX = 28
def KX(i): return 36 + 4 * i
def Q(i): return 68 + 4 * i
S_WS = 4
S_WQ, S_WK, S_WV, S_WO = 8, 40, 44, 48
S_H, S_W, S_STEP = 12, 13, 14
S_HI = 16
S_SCALE, S_CNT = 18, 19
S_PST0, S_PST1, S_IN0, S_IN1, S_MEM0, S_MEM1, S_MRE = 20, 21, 22, 23, 24, 25, 26
S_KD, S_VD, S_KE = 27, 28, 29
S_MK0, S_MK1, S_MV0, S_MV1 = 31, 32, 33, 34
S_PUB = 35
S_MB = 23
S_T0, S_T1, S_T2, S_T3 = 36, 37, 38, 39
S_DBG = 52
S_LO, S_RNG, S_RC = 54, 55, 96
S_MODE = 56
S_RDY, S_FLG, S_WSP = 30, 15, 58
S_KVF = 99
S_ONE, S_PRG = 2, 98
S_PH = 57
S_ST = 60
POLL_MAX = 1 << 15

def ws(): return s(S_WS, 4)

P_OPS = [(m, 0, xy) for m in "qkv" for xy in range(2)]
O_OPS = [("o", 2, 2), ("o", 2, 3), ("o", 3, 2), ("o", 3, 3)]
ALL_QKV = [(m, p, xy) for p in range(8) for m in "qkv" for xy in range(2)]
ALL_O = [("o", p, t) for p in range(4) for t in range(4)]
P_REG = {(m, 0, xy): Q(2 * (3 * xy + "qkv".index(m))) for m in "qkv" for xy in range(2)}

def place(one):
    global J_OPS, LDS_OPS, RES_OPS, RES_REG, LDS_SLOT
    J_OPS = [(m, p, xy) for m, p in ((("v", 1), ("k", 3), ("v", 2)) if one else (("v", 2), ("k", 4), ("k", 7))) for xy in range(2)]
    LDS_OPS = P_OPS + J_OPS + O_OPS
    RES_OPS = [o for o in ALL_QKV + ALL_O if o not in LDS_OPS]
    assert len(RES_OPS) == 48 and len(LDS_OPS) == 16
    RES_REG = {o: 128 + 8 * n for n, o in enumerate(RES_OPS)}
    LDS_SLOT = {o: n for n, o in enumerate(LDS_OPS)}


def estimate(lines):
    t, tm, hold, dur, prev, out = 0, -99, 0, 0, "", []
    for ln in lines:
        d = hazard.parse(ln)
        if not d: continue
        k, op = d["kind"], d["op"]
        if k == "mfma":
            t = max(t, tm + dur); tm = t; dur = 4 * d["passes"]; hold = 12 if "smfmac" in op else 8; out.append(t); t += 4
        elif k == "valu":
            t = max(t, tm + (dur + 16 if op.startswith("v_pk_") else hold)); t += 8 if op.startswith(hazard.TRANS) or "permlane" in op else 4
        elif k in ("ds", "vmem"):
            t = max(t + (8 if prev == "valu" else 0), tm + 8) + 4
        elif op == "s_nop": t += 4 * (int(d["ops"][0]) + 1)
        elif op == "s_barrier": t += 8
        else: t += 4
        prev = k
    return out + [t]


class Team:
    def __init__(self, E, stamps=False, **opt):
        self.opt = dict(win=4, ofirst=1, swz=0, h1ack=2, h1pre=6, h1nop=0, w1ack=0, w1pre=12, w1nop=0, h1mask=1, kvpre=(0, 1),
                        phase={}, salsh=0, cnd32=0, lastcopy=0, spec=1, lateexit=1, kvsh=1, ow=1, ipf=1, ipf_bytes=12800, coop=1, wp=2, quad=0, qack=(3, 2, 1, 0), qpre=(2, 6, 10, 12), p1sch=None, expw=1, kv2=2, wsc='', defer=0, line=0, xpoll=0, psch=((3, 0), (6, 1), (10, 1)), x0d=1, pdefer=0, lated=1, align=0, one=1, wkind=128, w2at=2, b1one=7, dma1=8, dmasp=4, split=0, w1cut=(2, 5), w2cut=(3, 6, 8, 10), w2ack=1, rearm=0, fine=1, h2sets=2, h2cut=(6, 10), h2mask=1, u0at=0, b3at=2,
                        b1at=2, ld1at=0, h1chk=14, b1bat=22, dma0=23, dmaw=1, dmas=4, qat=34, ex5=1, xat=4)
        self.opt.update(opt)
        place(self.opt['one'])
        global XTR, LDX
        XTR, LDX = (MP, 3) if self.opt["line"] else (3, L16)
        self.E = E
        self.stamps = stamps
        self.diag = False
        self.merged = None
        self.nst = 0

    def stamp(self, name):
        if self.stamps and (self.stamps is True or name in self.stamps):
            self.E(f"s_memtime s[{S_ST + 2*self.nst}:{S_ST + 2*self.nst + 1}]")
            self.names.append(name)
            self.nst += 1
            assert self.nst <= 14

    def startup(self, fail):
        E = self.E
        E(f"s_load_dwordx4 s[60:63], s[0:1], {ARG['bwq']}")
        E(f"s_load_dwordx4 s[64:67], s[0:1], {ARG['bwv']}")
        E(f"s_load_dwordx4 s[68:71], s[0:1], {ARG['dbg']}")
        E(f"s_load_dwordx2 s[72:73], s[0:1], {ARG['mem0']}")
        E(f"v_lshrrev_b32 v1, 6, v0")
        E(f"v_and_b32 v20, 63, v0")
        E(f"v_readfirstlane_b32 s{S_W}, v1")
        E(f"v_lshrrev_b32 v26, 3, v20\n v_lshlrev_b32 v26, 10, v26\n v_and_b32 v1, 7, v20\n v_lshl_add_u32 v26, v1, 4, v26")
        E(f"s_lshl_b32 s{S_T0}, s{S_W}, 7\n s_lshl_b32 s{S_T2}, s{S_H}, 17\n s_add_u32 s{S_T0}, s{S_T0}, s{S_T2}\n v_add_u32 v26, s{S_T0}, v26")
        E(f"s_lshl_b32 s{S_T3}, s{S_W}, 15\n s_add_u32 s{S_T3}, s{S_T3}, {L_W}")
        E("s_waitcnt lgkmcnt(0)")
        E.srd(S_WO, 66, 4 * MB)
        fine = self.opt["fine"]
        def setup():
            E.srd(S_WQ, 60, 4 * MB); E.srd(S_WK, 62, 4 * MB); E.srd(S_WV, 64, 4 * MB)
            E.srd(S_WS, 70, WS_BYTES)
            E.srd(76, 72, 8192)
            E.srd(72, 68, 256)
            E(f"s_mov_b64 s[{S_DBG}:{S_DBG+1}], s[68:69]")
            if self.merged:
                E(f"s_mov_b64 s[{S_WSP}:{S_WSP+1}], s[70:71]")
                E(f"s_mul_i32 s{S_KVF}, s{S_H}, {7*128}\n s_add_u32 s{S_KVF}, s{S_KVF}, {FLAGS + self.merged['r1']*128}")
                E(f"s_lshl_b32 s{S_FLG}, s{S_H}, 7\n s_add_u32 s{S_FLG}, s{S_FLG}, {FLAGS + 224*128}")
            E("v_lshrrev_b32 v21, 4, v20\n v_and_b32 v22, 15, v20\n v_and_b32 v23, 1, v21\n v_lshrrev_b32 v24, 1, v21")
            E(f"v_lshlrev_b32 v{L16}, 4, v20")
            E(f"s_lshl_b32 s{S_T0}, s{S_W}, 10\n v_add_u32 v{WL16}, s{S_T0}, v{L16}")
            E(f"s_mov_b32 s{S_T1}, s{S_T3}\n v_add_u32 v{WOP}, s{S_T1}, v{L16}")
            E(f"v_lshrrev_b32 v25, 2, v20\n v_lshlrev_b32 v25, 13, v25\n v_and_b32 v1, 3, v20\n v_lshl_add_u32 v25, v1, 4, v25")
            E(f"s_lshl_b32 s{S_T0}, s{S_W}, 6\n s_lshl_b32 s{S_T2}, s{S_H}, 8\n s_add_u32 s{S_T0}, s{S_T0}, s{S_T2}\n v_add_u32 v25, s{S_T0}, v25")
            if self.opt.get("seg128"):
                E(f"v_lshrrev_b32 v25, 3, v20\n s_and_b32 s{S_T0}, s{S_W}, 1\n s_lshl_b32 s{S_T0}, s{S_T0}, 3\n v_add_u32 v25, s{S_T0}, v25\n v_lshlrev_b32 v25, 13, v25")
                E(f"v_and_b32 v1, 7, v20\n v_lshl_add_u32 v25, v1, 4, v25\n s_lshr_b32 s{S_T0}, s{S_W}, 1\n s_lshl_b32 s{S_T0}, s{S_T0}, 7\n s_add_u32 s{S_T0}, s{S_T0}, s{S_T2}\n v_add_u32 v25, s{S_T0}, v25")
            E("v_bfe_u32 v29, v20, 2, 1\n v_bfe_u32 v30, v20, 3, 1\n v_and_b32 v31, 3, v20")
            if fine: E("v_lshl_add_u32 v27, v21, 2, v29\n v_lshlrev_b32 v27, 6, v27")
            else: E("v_lshl_add_u32 v27, v24, 1, v29\n v_lshl_add_u32 v27, v27, 1, v23\n v_lshlrev_b32 v27, 7, v27")
            E("v_lshl_add_u32 v27, v30, 5, v27\n v_lshl_add_u32 v27, v31, 3, v27")
            E(f"v_add_u32 v27, s{S_T1}, v27\n v_xor_b32 v36, 1, v30\n v_lshl_add_u32 v36, v36, 11, v27\n v_lshl_add_u32 v27, v30, 11, v27")
            E("v_lshl_add_u32 v28, v23, 2, v24\n v_lshl_add_u32 v28, v28, 2, v29\n v_lshlrev_b32 v28, 7, v28\n v_lshl_add_u32 v28, v30, 6, v28\n v_lshl_add_u32 v28, v31, 4, v28")
            E(f"v_add_u32 v28, s{S_T1}, v28")
        coop = self.opt["coop"]
        def setup_coop():
            E(f"v_lshrrev_b32 v25, 3, v20\n v_lshlrev_b32 v25, 13, v25\n v_and_b32 v1, 7, v20\n v_lshl_add_u32 v25, v1, 4, v25")
            E(f"s_lshr_b32 s{S_T0}, s{S_W}, 1\n s_lshl1_add_u32 s{S_T0}, s{S_H}, s{S_T0}\n s_lshl_b32 s{S_T0}, s{S_T0}, 7\n v_add_u32 v25, s{S_T0}, v25")
            E("v_lshl_add_u32 v27, v21, 2, v29\n v_lshlrev_b32 v27, 7, v27\n v_lshl_add_u32 v27, v30, 5, v27\n v_lshl_add_u32 v27, v31, 3, v27")
            E(f"s_and_b32 s{S_T0}, s{S_W}, 1\n s_lshl_b32 s{S_T0}, s{S_T0}, 6\n s_xor_b32 s{S_T1}, s{S_W}, 1\n s_lshl_b32 s{S_T1}, s{S_T1}, 15")
            E(f"s_add_u32 s{S_T1}, s{S_T1}, s{S_T0}\n s_add_u32 s{S_T1}, s{S_T1}, {L_W}\n s_add_u32 s{S_T0}, s{S_T0}, s{S_T3}")
            E(f"v_add_u32 v36, s{S_T1}, v27\n v_add_u32 v27, s{S_T0}, v27\n v_lshlrev_b32 v101, 12, v30\n v_xor_b32 v100, 0x1000, v101")
        WIN = self.opt["win"]
        U = lambda m, p: [(m, p, 0), (m, p, 1)]
        lds_u = lambda u: u[0] in LDS_SLOT
        pairs = [sorted([U(m, p), U(m, p + 1)], key=lds_u) for p in (0, 2, 4, 6) for m in "qkv"]
        pairs.sort(key=lambda x: lds_u(x[0]) + lds_u(x[1]))
        ou = [[("o", p, t), ("o", p, t + 1)] for p in range(4) for t in (0, 2)]
        qkv_u = [u for x in pairs for u in x]
        units = [u for u in ou if not lds_u(u)] + qkv_u + [u for u in ou if lds_u(u)]
        slot = {}
        for n, u in enumerate(units):
            if lds_u(u): slot[n] = LDS_SLOT[u[0]] // 2
        for n, u in enumerate(units):
            if n not in slot:
                busy = {slot[k] for k in range(max(0, n - WIN + 1), n)} | {slot[k] for k in slot if k < n + WIN and lds_u(units[k])}
                slot[n] = min(set(range(8)) - busy)
        assert all(slot[n] != slot[k] for n in range(32) for k in range(max(0, n - WIN + 1), n))
        if coop:
            assert fine
            slot = {n: LDS_SLOT[u[0]] // 2 for n, u in enumerate(units) if lds_u(u)}
            owner = {sl: n for n, sl in slot.items()}
            free, nxt, plan = set(range(8)), 0, {}
            for c in range(-1, 16):
                if c >= 0: free |= {slot[n] for n in (2*c, 2*c + 1) if not lds_u(units[n])}
                plan[c] = []
                while nxt < 16 and nxt - c <= self.opt["wp"]:
                    fixed = {slot[n] for n in (2*nxt, 2*nxt + 1) if lds_u(units[n])}
                    cand = sorted(free - fixed, key=lambda x: -owner[x])
                    if not fixed <= free or len(cand) < 2 - len(fixed): break
                    for n in (2*nxt, 2*nxt + 1):
                        if not lds_u(units[n]): slot[n] = cand.pop(0)
                        free.discard(slot[n])
                    plan[c].append(nxt); nxt += 1
            assert nxt == 16
            clast = max(c for c in plan if plan[c]); issued_at = {p_: c for c in plan for p_ in plan[c]}
            self.plan = plan
        srd = dict(q=S_WQ, k=S_WK, v=S_WV)
        def issue(n):
            u = units[n]; base = slot[n] * 4096
            if u[0][0] == "o":
                (_, p, t), (_, p2, t2) = u
                assert p == p2 and t2 == t + 1 and t % 2 == 0
                E(f"s_xor_b32 s{S_T0}, s{S_W}, {p}\n s_lshl_b32 s{S_T0}, s{S_T0}, 15")
                for j in range(4):
                    E(f"s_add_u32 m0, s{S_T3}, {base + j*1024}")
                    E(f"s_add_u32 s{S_T1}, s{S_T0}, {j*8192 + (t//2)*512}")
                    E.vmem(f"buffer_load_dwordx4 v26, {s(S_WO,4)}, s{S_T1} offen{self.opt['wsc']} lds", tag=("u", n))
            else:
                (m, p, xy), o2 = u
                assert xy == 0 and o2 == (m, p, 1)
                E(f"s_xor_b32 s{S_T0}, s{S_W}, {p & ~1 if coop else p}\n s_lshl_b32 s{S_T0}, s{S_T0}, 19")
                for j in range(4):
                    E(f"s_add_u32 m0, s{S_T3}, {base + j*1024}")
                    E(f"s_add_u32 s{S_T1}, s{S_T0}, {(32*(n & 1) + 8*j if coop else 16*j)*8192}")
                    E.vmem(f"buffer_load_dwordx4 v25, {s(srd[m],4)}, s{S_T1} offen{self.opt['wsc']} lds", tag=("u", n))
        def consume(n):
            u = units[n]; base = slot[n] * 4096
            E.need(tags=[("u", n)])
            for k, o in enumerate(u):
                dst = RES_REG[o] if o in RES_REG else 64 + 8 * k
                for hi in range(2):
                    for lo in range(2):
                        if o[0] == "o":
                            E.ds(f"ds_read_b64_tr_b16 {r(dst + 4*hi + 2*lo, 2)}, v28 offset:{base + (8*hi + 2*lo)*128 + k*8}")
                        else:
                            E.ds(f"ds_read_b64_tr_b16 {r(dst + 4*hi + 2*lo, 2)}, v{36 if k else 27} offset:{base + hi*1024 + lo*(128 if fine else 64)}")
            E.drain(lg=True)
            if u[0] not in RES_REG:
                for k, o in enumerate(u):
                    assert LDS_SLOT[o] * 2048 == base + k * 2048
                    for hf in range(2):
                        E.ds(f"ds_write_b128 v{WOP}, {v(64 + 8*k + 4*hf, 4)} offset:{base + k*2048 + hf*1024}")
                E.drain(lg=True)
        def consume2(c):
            n = 2 * c
            if units[n][0][0] == "o":
                consume(n); consume(n + 1); return
            s0, s1 = slot[n], slot[n + 1]; k = abs(s1 - s0)
            for i in range(4):
                E(f"v_mad_u32_u24 v{96+i}, v{100 + (((i & 1) == 0) == (s1 > s0))}, {k}, v{36 if i > 1 else 27}")
            E.need(tags=[("u", n + 1)])
            E("s_barrier")
            wb = []
            for u, sl in ((units[n], s0), (units[n + 1], s1)):
                for o in u:
                    if o in RES_REG: dst = RES_REG[o]
                    else:
                        dst = 64 + 8 * len(wb); wb.append((o, dst)); assert LDS_SLOT[o] == 2*sl + o[2]
                    for hi in range(2):
                        for lo in range(2):
                            E.ds(f"ds_read_b64_tr_b16 {r(dst + 4*hi + 2*lo, 2)}, v{96 + 2*(o[1] & 1) + o[2]} offset:{min(s0, s1)*4096 + hi*2048 + lo*256}")
            E.drain(lg=True)
            E("s_barrier")
            for o, dst in wb:
                for hf in range(2):
                    E.ds(f"ds_write_b128 v{WOP}, {v(dst + 4*hf, 4)} offset:{LDS_SLOT[o]*2048 + hf*1024}")
        for n in (range(2 * len(plan[-1])) if coop else range(WIN)):
            assert units[n][0][0] == "o"
            issue(n)
        setup()
        if coop: setup_coop()
        E(f"v_mov_b32 v{IDX}, 0x4444\n v_mov_b32 v1, 0xeeee\n v_cmp_lt_u32 vcc, 7, v22\n s_nop 1\n v_cndmask_b32 v32, v{IDX}, v1, vcc")
        E(f"v_mov_b32 v{IDX}, v32")
        E(f"v_and_b32 v32, 7, v20\n v_lshlrev_b32 v32, 4, v32\n v_lshl_add_u32 v{OB}, v21, 7, v32\n v_xor_b32 v{YRD}, 128, v{L16}")
        E(f"v_lshl_add_u32 v33, v24, 4, v22\n s_lshl_b32 s{S_T0}, s{S_W}, 5\n v_add_u32 v33, s{S_T0}, v33\n v_lshlrev_b32 v33, 3, v33")
        E(f"v_mul_u32_u24 v34, {MHS}, v23\n v_add_u32 v{QW}, v33, v34")
        E(f"v_bfe_u32 v33, v20, 2, 2\n v_lshl_add_u32 v33, v23, 2, v33\n v_lshl_add_u32 v33, v24, 4, v33\n v_lshlrev_b32 v33, 3, v33")
        E(f"v_and_b32 v34, 1, v20\n v_mul_u32_u24 v34, {MHS}, v34\n v_add_u32 v{TR}, v33, v34")
        E(f"s_lshl_b32 s{S_T0}, s{S_W}, 3\n v_lshrrev_b32 v33, 3, v20\n v_add_u32 v33, s{S_T0}, v33")
        E(f"v_mul_u32_u24 v34, {self.opt['swz']}, v33\n v_add_u32 v34, s{S_H}, v34\n v_and_b32 v34, 31, v34")
        E(f"v_lshrrev_b32 v37, {1 if fine else 0}, v32\n v_lshl_add_u32 v33, v33, 13, v37\n v_lshl_add_u32 v{PS}, v34, {6 if self.opt['quad'] else 7}, v33")
        E("v_and_b32 v37, 1, v20\n v_bfe_u32 v38, v20, 1, 1\n v_lshl_add_u32 v37, v29, 1, v37")
        E(f"s_lshr_b32 s{S_T0}, s{S_H}, 3\n s_lshl_b32 s{S_T0}, s{S_T0}, 10\n s_and_b32 s{S_T1}, s{S_H}, 1\n s_lshl_b32 s{S_T1}, s{S_T1}, 9\n s_add_u32 s{S_T0}, s{S_T0}, s{S_T1}")
        E(f"s_and_b32 s{S_T1}, s{S_H}, 6\n s_lshl_b32 s{S_T1}, s{S_T1}, 5\n s_add_u32 s{S_T0}, s{S_T0}, s{S_T1}")
        E(f"v_lshlrev_b32 v33, 4, v21\n v_lshl_add_u32 v33, v{37 if fine else 31}, 2, v33\n v_lshl_add_u32 v33, v{38 if fine else 29}, 8, v33\n v_lshl_add_u32 v33, v30, 30, v33\n v_add_u32 v{MP}, s{S_T0}, v33")
        line = self.opt["line"]
        if line:
            assert fine
            if line == 2: E("v_bfe_u32 v39, v20, 3, 2\n v_lshrrev_b32 v63, 5, v20")
            else: E("v_mov_b32 v39, v21\n v_mov_b32 v63, v30")
            E(f"v_lshlrev_b32 v33, 5, v39\n v_lshl_add_u32 v33, v38, 4, v33\n v_lshl_add_u32 v33, v37, 2, v33\n v_lshl_add_u32 v33, v63, 30, v33")
            E(f"s_lshl_b32 s{S_T0}, s{S_H}, 7\n v_add_u32 v{MP}, s{S_T0}, v33")
            E(f"v_bfe_u32 v33, v20, 2, 2\n v_lshl_add_u32 v33, v33, 1, v24\n v_lshl_add_u32 v34, v31, 1, v23\n v_lshlrev_b32 v34, 4, v34\n v_lshl_add_u32 v{LDX}, v33, 7, v34")
        else:
            E("v_mov_b32 v39, v21")
        E(f"s_lshr_b32 s{S_T0}, s{S_H}, 2\n s_lshl_b32 s{S_T0}, s{S_T0}, 6\n s_and_b32 s{S_T1}, s{S_H}, 1\n s_lshl_b32 s{S_T1}, s{S_T1}, 5\n s_add_u32 s{S_T0}, s{S_T0}, s{S_T1}")
        E(f"s_and_b32 s{S_T1}, s{S_H}, 2\n s_lshl_b32 s{S_T1}, s{S_T1}, 11\n s_add_u32 s{S_T0}, s{S_T0}, s{S_T1}")
        E(f"v_lshlrev_b32 v35, 10, v39\n v_lshl_add_u32 v35, v{37 if fine else 31}, {2 if fine else 1}, v35\n v_lshl_add_u32 v35, v{38 if fine else 29}, 4, v35\n v_add_u32 v35, s{S_T0}, v35")
        for k in range(4):
            E.vmem(f"buffer_load_ushort v{44+k}, v35, s[76:79], 0 offen offset:{(k >> 1)*512 + (k & 1)*(2 if fine else 8)}")
        E(f"v_lshlrev_b32 v33, 4, v{38 if line == 2 else 29}\n v_mov_b32 v34, 0x3f80\n v_lshlrev_b32 v33, v33, v34\n v_and_b32 v34, 1, v20\n v_lshl_add_u32 v34, v34, 1, v{29 if line == 2 else 30}")
        for a_ in range(4):
            E(f"v_cmp_eq_u32 vcc, {a_}, v34\n s_nop 1\n v_cndmask_b32 v{48+a_}, 0, v33, vcc")
        E.ds(f"ds_write_b128 v{L16}, v[48:51] offset:{L_SEL}")
        E(f"v_lshlrev_b32 v33, 9, v21\n s_lshl_b32 s{S_T0}, s{S_W}, 11\n v_add_u32 v33, s{S_T0}, v33")
        E(f"v_lshl_add_u32 v{VD}, v22, 4, v33")
        E(f"v_lshl_add_u32 v33, v30, 8, v33\n v_add_u32 v{KD}, v33, v32")
        for i in range(4): E(f"v_mov_b32 v{ONES+i}, 0x3f803f80")
        E(f"s_mov_b32 s{S_ONE}, 0x3f803f80\n s_mov_b32 s{S_ONE+1}, 0x3f803f80\n s_mov_b32 s{S_PRG}, 0")
        if self.merged:
            E(f"v_and_b32 v33, 1, v20\n v_mul_u32_u24 v33, {(self.merged['r2'] - self.merged['r1'])*128}, v33\n v_min_u32 v34, 1, v20\n v_lshlrev_b32 v34, 30, v34")
            E(f"s_cmp_eq_u32 s{S_W}, 3\n s_cselect_b64 vcc, -1, 0\n v_cndmask_b32 v19, v34, v33, vcc\n v_mov_b64 v[60:61], 0\n v_mov_b32 v62, {L_FLG}")
            E.ds("ds_write_b64 v62, v[60:61]")
        E(f"s_mov_b32 s{S_HI}, 0\n s_mov_b32 s{S_HI+1}, -1")
        E(f"s_mov_b32 s{S_SCALE}, {hex(fbits(math.log2(math.e) / math.sqrt(128.0)))}")
        lo, hi = fbits(2.0 ** -32), fbits(2.0 ** 48)
        E(f"s_mov_b32 s{S_LO}, {hex(lo)}\n s_mov_b32 s{S_RNG}, {hex(hi - lo)}\n s_mov_b32 s{S_RC}, s{S_RNG}")
        E(f"s_lshl_b32 s{S_T0}, s{S_W}, 10")
        E(f"s_add_u32 s{S_MK0}, s{S_T0}, {L_KX}\n s_add_u32 s{S_MK1}, s{S_T0}, {L_KX + 4096 - 128}")
        E(f"s_add_u32 s{S_MV0}, s{S_T0}, {L_VX}\n s_add_u32 s{S_MV1}, s{S_T0}, {L_VX + 4096 - 256}")
        E(f"s_lshl_b32 s{S_T0}, s{S_H}, 19\n s_add_u32 s{S_KD}, s{S_T0}, {KB}\n s_add_u32 s{S_VD}, s{S_T0}, {VB}")
        E(f"s_mul_i32 s{S_T0}, s{S_H}, {KMB}\n s_add_u32 s{S_KE}, s{S_T0}, {KM - (32*KMB if self.opt['defer'] else 0)}")
        E(f"s_lshl_b32 s{S_T0}, s{S_H}, 13\n s_add_u32 s{S_IN0}, s{S_T0}, {INBOX}\n s_add_u32 s{S_IN1}, s{S_T0}, {INBOX + 4096}")
        E(f"s_mov_b32 s{S_PST0}, {INBOX}\n s_mov_b32 s{S_PST1}, {INBOX + 4096}")
        for i in range(4): E(f"v_mov_b32 v{40+i}, -1")
        E(f"s_lshl_b32 s{S_T0}, s{S_W}, 13\n s_add_u32 s{S_T0}, s{S_T0}, {MEMS}\n s_add_u32 s{S_T1}, s{S_T0}, 4096")
        for ins in (f"buffer_store_dwordx4 v[40:43], v{WL16}, {ws()}, s{S_IN0} offen sc1", f"buffer_store_dwordx4 v[40:43], v{WL16}, {ws()}, s{S_IN1} offen sc1",
                    f"buffer_store_dword v40, v{MP}, {ws()}, s{S_T0} offen sc1", f"buffer_store_dword v40, v{MP}, {ws()}, s{S_T1} offen sc1"):
            E.vmem(ins, tag="init")
        if self.merged:
            E(f"v_mov_b32 v52, 0\n v_min_u32 v53, 1, v{WL16}\n v_lshlrev_b32 v53, 30, v53")
            E.vmem(f"buffer_store_dword v52, v53, {ws()}, s{S_FLG} offen sc1", tag="init")
        n_arm, n_ld, n_chk, n_mid = (len(plan[-1]), issued_at[clast] - 1, clast, 6) if coop else (WIN, 30 - 2*WIN, 31 - WIN, 13)
        for n in range(16 if coop else 32):
            if coop:
                consume2(n)
                for p_ in plan[n]: issue(2*p_); issue(2*p_ + 1)
            else:
                consume(n)
                if n + WIN < 32:
                    issue(n + WIN)
            if self.diag and n in (0, n_mid, n_chk): tmark(E, {0: 2, n_mid: 3, n_chk: 4}[n])
            if n == n_arm:
                assert not E.need("v[44:47]", tags=["init"])
                E("s_barrier")
                skip = E.label("T_arm")
                E(f"s_cmp_lg_u32 s{S_W}, 0\n s_cbranch_scc1 {skip}")
                E(f"s_getreg_b32 s{S_T0}, hwreg(HW_REG_XCC_ID, 0, 3)\n s_lshl_b32 s{S_T0}, s{S_T0}, 3\n s_lshl_b64 s[60:61], 1, s{S_T0}\n s_mov_b32 s62, 1")
                E(f"s_atomic_add_x2 s[60:61], s[{S_DBG}:{S_DBG+1}], 0")
                if self.merged: E(f"s_atomic_add s62, s[{S_DBG}:{S_DBG+1}], {self.merged['init_off']}")
                E("v_lshl_or_b32 v44, v45, 16, v44\n v_lshl_or_b32 v46, v47, 16, v46\n v_min_u32 v44, -2, v44\n v_min_u32 v46, -2, v46")
                E(f"s_mov_b32 s{S_T0}, {MEMS}\n s_mov_b32 s{S_T1}, {MEMS + 4096}")
                E(f"buffer_store_dword v44, v{MP}, {ws()}, s{S_T0} offen sc1\n buffer_store_dword v46, v{MP}, {ws()}, s{S_T1} offen sc1")
                E(skip + ":")
            ldc = ["buffer_load_dwordx2 v[54:55], off, s[72:75], 0 sc1"]
            if self.merged: ldc.append(f"buffer_load_dword v56, off, s[72:75], 0 offset:{self.merged['init_off']} sc1")
            if n == n_ld and self.opt["ipf"]:
                pc = E.label("T_pc")
                E(f"s_getpc_b64 s[60:61]\n{pc}:\n s_add_u32 s60, s60, T_code-{pc}\n s_addc_u32 s61, s61, 0")
                E(f"v_lshlrev_b32 v102, 3, v{WL16}\n v_min_u32 v102, {self.opt['ipf_bytes']}, v102")
                E.vmem("global_load_dword v103, v102, s[60:61]")
            if n == n_ld:
                for x in ldc: E.vmem(x)
            if n == n_chk:
                assert not E.need("v[54:56]")
                lp, go = E.label("T_arr"), E.label("T_arrgo")
                E(f"s_mov_b32 s{S_CNT}, 0\n s_branch {go}")
                E(lp + ":")
                E(f"s_add_u32 s{S_CNT}, s{S_CNT}, 1\n s_cmp_gt_u32 s{S_CNT}, {POLL_MAX}\n s_cbranch_scc1 {fail}")
                for x in ldc: E(x)
                E("s_waitcnt vmcnt(0)")
                E(go + ":")
                E(f"v_sad_u8 v57, v54, 0, 0\n v_sad_u8 v57, v55, 0, v57\n v_or_b32 v58, v54, v55\n v_cmp_gt_u32 vcc, 32, v57\n s_cbranch_vccnz {lp}")
                if self.merged: E(f"v_cmp_gt_u32 vcc, 0x100, v56\n s_cbranch_vccnz {lp}")
                E(f"v_readfirstlane_b32 s{S_T0}, v58\n s_nop 0\n s_and_b32 s{S_T0}, s{S_T0}, 0x20202020\n s_cselect_b32 s{S_MODE}, 0, 1")
                if self.merged:
                    E(f"s_mov_b32 s{S_STEP}, -1\n s_mov_b32 s{S_RDY}, -1")
                    self.wait_kv(fail)
                    if self.diag: tmark(E, 6)
                for x in self.dma_list():
                    E(x[0]); E("s_nop 0"); E.vmem(x[1], tag="dma")
                self.dma_adv()
                E(f"s_lshl_b32 s{S_T0}, s{S_H}, 10\n s_add_u32 s{S_T0}, s{S_T0}, {MEMS}")
                E.vmem(f"buffer_load_dwordx4 v[40:43], v{L16}, {ws()}, s{S_T0} offen sc1")
        if self.merged and self.opt["kv2"]:
            sk = E.label("T_kv2")
            E(f"s_mov_b32 s{S_STEP}, {self.opt['kv2'] - 1}\n s_cmp_lt_i32 s{S_STEP}, s{S_RDY}\n s_cbranch_scc1 {sk}")
            self.wait_kv(fail)
            E(sk + ":")
        if self.diag: tmark(E, 5)
        E.drain(vm=True, lg=True)
        E("s_barrier")
        if self.merged: E(f"s_cmp_ge_u32 s{S_W}, 2\n s_cselect_b64 vcc, -1, 0\n v_cndmask_b32 v{XTR}, v{MP}, v19, vcc")
        if self.opt["quad"]:
            E(f"s_and_b32 s{S_T0}, s{S_W}, 1\n s_lshl_b32 s{S_T0}, s{S_T0}, 3\n v_lshl_add_u32 v{MP}, v29, 29, v{MP}\n v_add_u32 v{MP}, s{S_T0}, v{MP}")
        self.prefetch_p(); self.prefetch_vx(); self.prefetch_kx()
        if self.opt["quad"]:
            E(f"s_lshl_b32 s{S_T0}, s{S_W}, 11\n s_add_u32 s{S_IN0}, s{S_IN0}, s{S_T0}\n s_and_b32 s{S_T0}, s{S_T0}, 4096\n s_add_u32 s{S_MB}, s{S_T0}, {MEMS}")
        else:
            E(f"s_and_b32 s{S_T0}, s{S_W}, 1\n s_lshl_b32 s{S_T0}, s{S_T0}, 12\n s_add_u32 s{S_IN0}, s{S_IN0}, s{S_T0}\n s_add_u32 s{S_MB}, s{S_T0}, {MEMS}")
        E(f"s_mov_b32 s{S_STEP}, -1")
        self.step_scalars()
        E.drain(lg=True)

    def wait_kv(self, fail):
        E = self.E; M = self.merged
        lp, ok = E.label("T_kv"), E.label("T_kvok")
        E(f"s_mov_b32 s{S_CNT}, 0")
        E(f"s_branch {ok}")
        E(lp + ":")
        E("s_sleep 4")
        E(f"s_add_u32 s{S_CNT}, s{S_CNT}, 1\n s_cmp_gt_u32 s{S_CNT}, {POLL_MAX}\n s_cbranch_scc1 {fail}")
        E(ok + ":")
        E(f"s_add_u32 s{S_T3}, s{S_KVF}, {(M['r2'] - M['r1'])*128}\n s_mov_b32 s{S_T2}, 0\n s_mov_b32 s{S_T1}, 0")
        E(f"s_atomic_or s{S_T2}, s[{S_WSP}:{S_WSP+1}], s{S_KVF} glc\n s_atomic_or s{S_T1}, s[{S_WSP}:{S_WSP+1}], s{S_T3} glc\n s_waitcnt lgkmcnt(0)")
        self.kv_ready()
        E(f"s_cmp_ge_i32 s{S_STEP}, s{S_RDY}\n s_cbranch_scc1 {lp}")

    def kv_ready(self):
        E = self.E; M = self.merged
        if M["inter"]:
            E(f"s_lshl_b32 s{S_T2}, s{S_T2}, 1\n s_lshl1_add_u32 s{S_T1}, s{S_T1}, 1\n s_min_u32 s{S_T2}, s{S_T2}, s{S_T1}")
        else:
            E(f"s_add_u32 s{S_T1}, s{S_T1}, {M['n1']}\n s_cmp_ge_u32 s{S_T2}, {M['n1']}\n s_cselect_b32 s{S_T2}, s{S_T1}, s{S_T2}")
        E(f"s_cmp_ge_u32 s{S_T2}, 64\n s_cselect_b32 s{S_T2}, 100, s{S_T2}\n s_sub_u32 s{S_T2}, s{S_T2}, 1\n s_max_i32 s{S_RDY}, s{S_RDY}, s{S_T2}")

    def kv_refresh(self):
        E = self.E
        E(f"ds_read_b64 {v(KX(2),2)}, v{L16} offset:{L_FLG}\n s_waitcnt lgkmcnt(0)")
        E(f"v_readfirstlane_b32 s{S_T2}, v{KX(2)}\n v_readfirstlane_b32 s{S_T1}, v{KX(2)+1}\n s_nop 0")
        self.kv_ready()

    def dma_list(self):
        return [(f"s_mov_b32 m0, s{S_MK0}", f"buffer_load_dwordx4 v{KD}, {ws()}, s{S_KD} offen sc1 lds"),
                (f"s_mov_b32 m0, s{S_MK1}", f"buffer_load_dwordx4 v{KD}, {ws()}, s{S_KD} offen offset:128 sc1 lds"),
                (f"s_mov_b32 m0, s{S_MV0}", f"buffer_load_dwordx4 v{VD}, {ws()}, s{S_VD} offen sc1 lds"),
                (f"s_mov_b32 m0, s{S_MV1}", f"buffer_load_dwordx4 v{VD}, {ws()}, s{S_VD} offen offset:256 sc1 lds")]

    def dma_adv(self):
        self.E(f"s_add_u32 s{S_KD}, s{S_KD}, 8192\n s_add_u32 s{S_VD}, s{S_VD}, 8192")

    def rd_op(self, o, half, reg):
        return f"ds_read_b128 {v(reg + 4*half, 4)}, v{WOP} offset:{LDS_SLOT[o]*2048 + half*1024}"

    def p_list(self):
        return [self.rd_op(o, hf, P_REG[o]) for o in sorted(P_OPS, key=lambda o: P_REG[o]) for hf in range(2)]

    def prefetch_p(self):
        for x in self.p_list(): self.E.ds(x)

    def prefetch_vx(self):
        for j in range(2):
            self.E.ds(f"ds_read_b128 {v(VX + 4*j, 4)}, v{WL16} offset:{L_VX + 4096*j}")

    def prefetch_kx(self):
        for f in range(8):
            self.E.ds(f"ds_read_b128 {v(KX(f), 4)}, v{L16} offset:{L_KX + 1024*f}")

    def zero_acc(self):
        for i in range(6):
            self.E(f"v_mov_b64 {v(AQ + 2*i, 2)}, 0")

    def scalar_list(self):
        if self.opt["rearm"]:
            return [f"s_and_b32 s{S_PH}, s{S_STEP}, 1", f"s_add_u32 s{S_T0}, s{S_STEP}, 1", f"s_and_b32 s{S_T0}, s{S_T0}, 3", f"s_lshl_b32 s{S_T0}, s{S_T0}, 13",
                    f"s_add_u32 s{S_PUB}, s{S_T0}, s{S_MB}", f"s_xor_b32 s{S_MRE}, s{S_PUB}, 0x4000",
                    f"s_add_u32 s{S_MEM0}, s{S_T0}, {MEMS}", f"s_add_u32 s{S_MEM1}, s{S_T0}, {MEMS + 4096}", "s_nop 0"]
        return [f"s_and_b32 s{S_PH}, s{S_STEP}, 1", f"s_and_b32 s{S_T0}, s{S_STEP}, 3", f"s_lshl_b32 s{S_T0}, s{S_T0}, 13",
                f"s_add_u32 s{S_MRE}, s{S_T0}, s{S_MB}", f"s_add_u32 s{S_T0}, s{S_T0}, 8192", f"s_and_b32 s{S_T0}, s{S_T0}, 0x7fff",
                f"s_add_u32 s{S_MEM0}, s{S_T0}, {MEMS}", f"s_add_u32 s{S_MEM1}, s{S_T0}, {MEMS + 4096}",
                f"s_add_u32 s{S_PUB}, s{S_T0}, s{S_MB}"]

    def step_scalars(self):
        for x in self.scalar_list(): self.E(x)

    def run(self, prog, first_need=True, name='n'):
        E = self.E
        if first_need:
            E.need(*prog[0][1])
        for n, (ins, _, fill) in enumerate(prog):
            E.c(f"@A {name}{n}")
            E(ins)
            l0 = len(E.lines)
            toks = list(prog[n + 1][1]) if n + 1 < len(prog) else []
            tags = []
            for f in fill:
                if isinstance(f, tuple) and f[0] == "need":
                    toks += list(f[1]); tags += list(f[2])
            waited = E.need(*toks, tags=tags)
            real = [f for f in fill if not callable(f) and not (isinstance(f, tuple) and f[0] == "need")]
            if not waited and not any((f[0] if isinstance(f, tuple) else f).startswith(("s_", "nop")) for f in real[:1]): E.c("@P")
            for f in fill:
                if isinstance(f, tuple) and f[0] == "nop":
                    k = f[1] - len([x for x in E.lines[l0:] if hazard.parse(x) and "memtime" not in x])
                    if k > 0: E(f"s_nop {k - 1}")
                else:
                    self.put(f)

    def put(self, f):
        E = self.E
        if callable(f):
            f()
        elif isinstance(f, tuple):
            if f[0] == "need":
                return
            (E.ds if f[0].startswith("ds_") else E.vmem)(f[0], tag=f[1])
        elif f.startswith("ds_"):
            E.ds(f)
        elif f.startswith("buffer_"):
            E.vmem(f)
        else:
            E(f)

    def loops(self, mode, done, fail, xsc=""):
        E = self.E
        if mode == 0: E("T_code:")
        labs = [E.label("T_w") for _ in range(4)]
        for w in range(1, 4): E(f"s_cmp_eq_u32 s{S_W}, {w}\n s_cbranch_scc1 {labs[w]}")
        errs = []
        for w in range(4):
            E(labs[w] + ":")
            errs += self.loop(mode, w, done, fail, xsc)
        return errs

    def loop(self, mode, w, done, fail, xsc="", lastlab=None):
        E = self.E
        O = dict(self.opt)
        if lastlab: O["spec"] = 0
        sc = " sc1" if mode else ""
        self.nst = 0; self.names = []
        cvt = lambda d, a0: f"v_cvt_pk_bf16_f32 v{d}, v{a0}, v{a0+1}"
        zero = lambda d: f"v_mov_b64 {v(d,2)}, 0"
        st = lambda name: (lambda: self.stamp(name))
        ror = lambda d, x: f"v_mov_b32_dpp v{d}, v{x} row_ror:8 row_mask:0xf bank_mask:0xf"
        def smf(d, a_, b_, first): return f"v_mfma_f32_16x16x32_bf16 {v(d,4)}, {v(a_,4)}, {v(b_,4)}, {'0' if first else v(d,4)}"
        cntchk = f"s_add_u32 s{S_CNT}, s{S_CNT}, 1\n s_cmp_gt_u32 s{S_CNT}, {POLL_MAX}\n s_cbranch_scc1 {fail}"
        NS = O["h2sets"]
        FR = {(0,0): 14, (0,1): 13, (1,0): 4, (1,1): 5, (2,0): 8, (2,1): 13, (3,0): 6, (3,1): 7,
              (4,0): 12, (4,1): 14, (5,0): 9, (5,1): 10, (6,0): 11, (6,1): 4, (7,0): 5, (7,1): 8}
        H0, Y0, H1, Y4 = Q(14), Q(13), Q(12), Q(14)
        one = O["one"]
        if one:
            FR = {(0,0): 14, (0,1): 13, (4,0): 12, (4,1): 4, (1,0): 8, (1,1): 13, (2,0): 6, (2,1): 7,
                  (3,0): 12, (3,1): 14, (5,0): 9, (5,1): 10, (6,0): 11, (6,1): 4, (7,0): 5, (7,1): 8}
            Y4 = Q(4)
        ld0 = f"buffer_load_dwordx4 {v(H0,4)}, v{LDX}, {ws()}, s{S_MEM0} offen offset:{1024*w} sc1"
        ld1 = f"buffer_load_dwordx4 {v(H1,4)}, v{LDX}, {ws()}, s{S_MEM1} offen offset:{1024*w} sc1"
        chk = lambda x, t: [f"v_max3_u32 v{t}, v{x}, v{x+1}, v{x+2}", f"v_max_u32 v{t}, v{t}, v{x+3}", f"v_cmp_eq_u32 vcc, -1, v{t}"]
        ldx = ld0
        if one == 1: ld0 = ld0 + "\n" + ld1
        P1 = O["p1sch"]
        top, retry = lastlab or E.label("T_loop"), E.label("T_retry")
        lentry = len(E.lines)
        E(f"s_mov_b32 s{S_CNT}, 0")
        if O["kvsh"]:
            assert O["kv2"] >= 1
            E(f"s_add_u32 s{S_STEP}, s{S_STEP}, 1\n s_and_b32 s{S_PH}, s{S_STEP}, 1")
        self.zero_acc()
        PSCH = O["psch"]
        if one == 2: NS = len(PSCH) - 1
        if one == 2: E(ld0)
        for k in range(NS): E(ld1 if one == 2 else ld0)
        E(f"s_branch {top}")
        if lastlab: del E.lines[lentry:]
        E(".p2align 6")
        lal = len(E.lines)
        E.c("@U"); E.c("@A top")
        E(retry + ":")
        if O["h2mask"]: E("s_mov_b64 exec, vcc")
        E(ld0)
        if O["h2mask"]: E("s_mov_b64 exec, -1")
        E(cntchk)
        if O["spec"]: E(f"s_nop 0\n v_mov_b64 {v(AQ,2)}, 0\n v_mov_b64 {v(AQ+2,2)}, 0")
        if one == 2: E(ld1 + f"\n s_waitcnt vmcnt({O['x0d']})")
        if P1:
            chk1 = E.label("T_chk")
            E(f"s_waitcnt vmcnt({O['x0d']})\n v_max3_u32 v{Y0+3}, v{H0}, v{H0+1}, v{H0+2}\n v_max_u32 v{Y0+3}, v{Y0+3}, v{H0+3}")
            E(ror(Y0, H0)); E(ror(Y0 + 1, H0 + 1)); E(f"s_branch {chk1}")
        E(top + ":")
        nq = len(P1) if P1 else 2 * NS
        E(f"s_waitcnt vmcnt({[NS - 1, nq - 1, NS][one]}) lgkmcnt(0)")
        body0 = len(E.lines)
        wr = lambda x, u, k=None: (f"ds_write_b128 v{L16}, {v(x,4)} offset:{L_MEM + 4096*u + 1024*w}" if k is None else
                                   f"ds_write_b64 v{L16}, {v(x+2*k,2)} offset:{L_MEM + 4096*u + 1024*w + 8*k}")
        if one == 2:
            for x in chk(H0, Y0 + 3): E(x)
            E(ror(Y0, H0)); E(ror(Y0 + 1, H0 + 1))
            E(f"s_cbranch_vccnz {retry}")
            f1 = [x[1] for x in PSCH].index(1)
            E.lg = []; E.vm = [{"poll"} | ({"p0"} if k == f1 else set()) for k in range(1, NS + 1)]
        elif one:
            t = Y0 + 3
            E(f"v_max3_u32 v{t}, v{H0}, v{H0+1}, v{H0+2}\n v_max_u32 v{t}, v{t}, v{H0+3}")
            E(ror(Y0, H0)); E(ror(Y0 + 1, H0 + 1))
            E(f"s_waitcnt vmcnt({nq - 2})")
            if P1: E(chk1 + ":")
            E(f"v_max3_u32 v{t}, v{t}, v{H1}, v{H1+1}\n v_max3_u32 v{t}, v{t}, v{H1+2}, v{H1+3}\n v_cmp_eq_u32 vcc, -1, v{t}")
            if not O["spec"]: E(f"s_cbranch_vccnz {retry}")
            E.lg = []; E.vm = [{"poll"}] if NS > 1 else []
        else:
            for x in chk(H0, Y0 + 3): E(x)
            E(f"s_cbranch_vccnz {retry}")
            E.lg = []; E.vm = []
            E.ds(wr(H0, 0), tag="e0w")
            E(ror(Y0, H0)); E(ror(Y0 + 1, H0 + 1))
        if self.stamps: E(f"s_mov_b32 s95, s{S_CNT}")
        self.stamp("hop2")
        def F(p, xy): return f"ds_read_b128 {v(Q(FR[p, xy]),4)}, v{YRD if xy else L16} offset:{L_MEM + 1024*(p ^ w)}"
        opreg = dict(RES_REG); opreg.update(P_REG)
        for n, o in enumerate(J_OPS): opreg[o] = Q(2 * (n & 1))
        acc = dict(q=AQ, k=AK, v=AV)
        def sm(m, p, xy):
            return (f"v_smfmac_f32_16x16x64_bf16 {v(acc[m],4)}, {v(Q(FR[p, xy]),4)}, {r(opreg[m, p, xy],8)}, v{IDX}",
                    (v(Q(FR[p, xy]), 4), r(opreg[m, p, xy], 8)))
        seq = [(m, p, xy) for p in range(3) for xy in range(2) for m in "qkv"]
        seq += [(m, p, xy) for p in (3, 4) for xy in range(2) for m in "qk"]
        seq += [(m, p, xy) for m in "qk" for p in (5, 6, 7) for xy in range(2)]
        seq += [("v", p, xy) for p in range(3, 8) for xy in range(2)]
        if one:
            seq = [(m, p, xy) for p in (0, 4, 1) for xy in range(2) for m in "qkv"]
            seq += [(m, p, xy) for m in "qkv" for p in (2, 3, 5, 6, 7) for xy in range(2)]
        J = lambda n, hf: self.rd_op(J_OPS[n], hf, Q(2 * (n & 1)))
        PQ, PK = Q(13), Q(13) + 2
        PV_ = PQ
        mul = lambda i: f"v_mul_f32 v{AQ+i}, s{S_SCALE}, v{AQ+i}"
        c1 = chk(H1, Q(4) + 3 if one else Q(9))
        dma = self.dma_list()
        sal = self.scalar_list()
        late, lateok = E.label("T_late"), E.label("T_lateok")
        KF = [Q(12), Q(14), Q(9), Q(10)]
        WA = [Q(6), Q(7), KX(0), KX(1)]
        trq = [f"ds_read_b64_tr_b16 {v(Q(kk) + 2*hi, 2)}, v{TR} offset:{L_QM + (32*kk + 8*hi)*8}" for kk in range(4) for hi in range(2)]
        trk = [f"ds_read_b64_tr_b16 {v(KF[kk] + 2*hi, 2)}, v{TR} offset:{L_KM + (32*kk + 8*hi)*8}" for kk in range(4) for hi in range(2)]
        zl = [zero(WA[k >> 1] + 2*(k & 1)) for k in range(8)]
        fill = {n: [] for n in range(48)}
        kvw, kvb = E.label("T_kvw"), E.label("T_kvb")
        adv = "0x10000000" if O.get("noadv") == 2 else 8192
        if one:
            if one == 2:
                fill[0] = [f"s_add_u32 s{S_STEP}, s{S_STEP}, 1", (wr(H0, 0), "e0w"), ror(Y0 + 2, H0 + 2)]
                fill[1] += [sal[0]] + ([(ld1 + " ; repoll", "poll")] if O["xpoll"] else []) + [ror(Y0 + 3, H0 + 3)]
                fill[2] += [sal[1], J(0,0), sal[2]]; fill[3] += [sal[3], J(0,1), sal[4]]
                fill[4] += [("need", [], ["p0"]), J(1,0), c1[0]]
                fill[5] += [sal[5], J(1,1), c1[1], c1[2], f"s_cbranch_vccnz {late}", lateok + ":"]
                fill[6] += [(wr(H1, 1), "h1w"), ror(Y4, H1), ror(Y4 + 1, H1 + 1)]
                fill[7] += [("need", [], ["e0w"]), "s_barrier", F(1,0), ror(Y4 + 2, H1 + 2), ror(Y4 + 3, H1 + 3)]
                fill[8] += [dma[0][0], F(1,1)]
                fill[11] += [("need", [], ["h1w"]), "s_barrier"]
                for n, x in {22: J(2,0), 23: J(2,1), 24: J(3,0), 25: J(3,1), 30: J(4,0), 31: J(4,1), 32: J(5,0), 33: J(5,1)}.items():
                    fill[n].append(x)
            else:
                b1 = O["b1one"]
                if O["wkind"] == 128:
                    fill[0].append(wr(H0, 0)); fill[O["w2at"]].append((wr(H1, 1), "e0w"))
                else:
                    for k in range(4): fill[k].append((wr(H1 if k > 1 else H0, k >> 1, k & 1), "e0w"))
                fill[0] = ([] if O["kvsh"] else [f"s_add_u32 s{S_STEP}, s{S_STEP}, 1"]) + fill[0] + [ror(Y0 + 2, H0 + 2)]
                if O["spec"]: fill[0].insert(0, f"s_cbranch_vccnz {retry}")
                fill[1] += [ror(Y0 + 3, H0 + 3)]
                for n, x in {4: J(0,0), 5: J(0,1), 6: J(1,0), 10: J(1,1), 22: J(2,0), 23: J(2,1), 24: J(3,0), 25: J(3,1),
                             30: J(4,0), 31: J(4,1), 32: J(5,0), 33: J(5,1)}.items():
                    fill[n].append(x)
                for k in range(4): fill[3 + k].append(ror(Y4 + k, H1 + k))
                if not O["salsh"]:
                    for k in range(6): fill[1 + k].insert(0, sal[k])
                fill[b1] = [("need", [], ["e0w"]), "s_barrier", F(1,0)] + fill[b1]
                fill[b1 + 1] = [dma[0][0], F(1,1)] + fill[b1 + 1]
            for k, (p, xy) in enumerate([(p, xy) for p in (2, 3, 5, 6, 7) for xy in range(2)]): fill[12 + k].append(F(p, xy))
            fill[14].insert(0, ("need", [], ["poll"]))
            if self.merged and not O["kvsh"]: fill[9] += [f"s_cmp_ge_i32 s{S_STEP}, s{S_RDY}", f"s_cbranch_scc1 {kvw}", kvb + ":"]
            vq = [[(dma[k][1], "dma")] + [dma[k + 1][0] if k < 3 else None] for k in range(4)]
            if O["defer"]:
                ex_ = [f"buffer_store_dwordx4 {v(ONES,4)}, v{L16}, {ws()}, s{S_KE} offen offset:{1024*w}{xsc}", f"s_add_u32 s{S_KE}, s{S_KE}, {32*KMB}"]
                vq.insert(0 if O["defer"] == 1 else 4, ex_)
                for k in range(2): fill[36 + k].append(f"v_mov_b64 {v(ONES + 2*k, 2)}, s[{S_ONE}:{S_ONE+1}]")
            if self.merged and w == 2:
                fill[18].append(f"v_mov_b32 v{PK}, s{S_PRG}")
                vq.append([f"buffer_store_dword v{PK}, v{XTR}, {ws()}, s{S_FLG} offen sc1", f"s_add_u32 s{S_PRG}, s{S_STEP}, {0 if O['defer'] else 1}"])
            if self.merged and w == 3:
                [x for x in vq if x[0] == (dma[3][1], "dma")][0][1] = f"s_mov_b32 m0, {L_FLG}"
                vq.append([f"buffer_load_dword v{XTR}, {ws()}, s{S_KVF} offen sc1 lds", None])
            for k, (x, y) in enumerate(vq):
                n = O["dma1"] + w * O["dmasp"] // 4 + O["dmasp"] * k
                fill[n].append(x)
                if y: fill[n + 1].append(y)
            if not O["salsh"]: fill[27] += sal[6:8]; fill[28] += sal[8:9]
            for k in range(4): fill[30 + k].append(mul(k))
            fill[34].append(cvt(PQ, AQ)); fill[35].append(cvt(PQ + 1, AQ + 2))
            fill[36].insert(0, (f"ds_write_b64 v{QW}, {v(PQ,2)} offset:{L_QM}", "qw"))
        else:
            b1 = O["b1at"]; hc = O["h1chk"]; b1b = O["b1bat"]
            fill[0] += [f"s_add_u32 s{S_STEP}, s{S_STEP}, 1"]
            fill[O["ld1at"]].append(ld1)
            fill[0] += [ror(Y0 + 2, H0 + 2)]
            fill[1] += [sal[0], J(0,0), ror(Y0 + 3, H0 + 3)]
            fill[b1] += [("need", [], ["e0w"]), "s_barrier", F(1,0)]
            fill[b1 + 1] += [F(1,1)]
            for n, x in {5: F(2,0), 6: J(0,1), 7: F(2,1), 8: J(1,0), 9: J(1,1), 10: F(3,0), 11: F(3,1), 15: J(2,0), 16: J(2,1),
                         19: J(3,0), 20: J(3,1), 28: J(4,0), 29: J(4,1), 30: J(5,0), 31: J(5,1)}.items():
                fill[n].append(x)
            for k, n in enumerate((4, 6, 7, 9, 10)): fill[n].insert(0, sal[1 + k])
            fill[hc] = [("need", [v(H1, 4)], [])] + fill[hc] + [c1[0]]
            fill[hc + 1].append(c1[1]); fill[hc + 2].append(c1[2])
            fill[hc + 3] = [f"s_cbranch_vccnz {late}", lateok + ":", f"ds_write_b64 v{L16}, {v(H1,2)} offset:{L_MEM + 4096 + 1024*w}"] + fill[hc + 3]
            fill[hc + 4] = [(f"ds_write_b64 v{L16}, {v(H1+2,2)} offset:{L_MEM + 4096 + 1024*w + 8}", "h1w")] + fill[hc + 4]
            for k in range(4): fill[hc + 4 + k].append(ror(Y4 + k, H1 + k))
            fill[b1b] = [("need", [], ["h1w"]), "s_barrier", F(5,0)] + fill[b1b]
            for k, (p, xy) in enumerate(((5,1), (6,0), (6,1), (7,0), (7,1))): fill[b1b + 1 + k].append(F(p, xy))
            if self.merged:
                fill[12] += [f"s_cmp_ge_i32 s{S_STEP}, s{S_RDY}", f"s_cbranch_scc1 {kvw}", kvb + ":"]
            d0 = O["dma0"] + w * O["dmaw"]
            fill[13].append(dma[0][0])
            for k in range(4):
                n = d0 + O["dmas"] * k
                fill[n].append((dma[k][1], "dma"))
                if k < 3: fill[n + 1].insert(0, dma[k + 1][0])
            adv = 0 if O.get("noadv") else 8192
            fill[32] = sal[6:8] + fill[32]; fill[33].insert(0, sal[8])
            qc = O["qat"]
            fill[qc] += [mul(0), mul(1)]; fill[qc + 1] += [mul(2), mul(3)]; fill[qc + 2] += [cvt(PQ, AQ), cvt(PQ + 1, AQ + 2)]
            fill[qc + 3].insert(0, (f"ds_write_b64 v{QW}, {v(PQ,2)} offset:{L_QM}", "qw"))
        fill[37] += [st("qk")]
        if self.stamps and not O.get("dumplate"): fill[37] += [lambda: self.dump_stamps(PK), st("dump")]
        fill[38] += [zl[0]]
        fill[39] += [("nop", 2), cvt(PK, AK), cvt(PK + 1, AK + 2)]
        fill[40] += [(f"ds_write_b64 v{QW}, {v(PK,2)} offset:{L_KM}", "kw"), zl[1]]
        exp4 = lambda x: f"buffer_store_dwordx4 {v(x,4)}, v{L16}, {ws()}, s{S_KE} offen offset:{1024*w}{xsc}"
        kadv = f"s_add_u32 s{S_KE}, s{S_KE}, {32*KMB}"
        defer = O["defer"]
        advs = [f"s_add_u32 s{S_KD}, s{S_KD}, {adv}", f"s_add_u32 s{S_VD}, s{S_VD}, {adv}"]
        if O.get("noadv"): advs = [f"s_xor_b32 s{S_KD}, s{S_KD}, 8192", f"s_xor_b32 s{S_VD}, s{S_VD}, 8192"]
        shadow = []
        if O["salsh"]:
            shadow = sal[1:] + advs + [kadv]; advs = ["s_nop 0", "s_nop 0"]
        if one:
            fill[41] += [("need", [], ["qw"]), "s_barrier", trq[0]]
            fill[42] += [advs[0]] + trq[1:3]; fill[43] += [advs[1]] + trq[3:5]; fill[44] += ["s_nop 0"] + trq[5:7]
            fill[45] += [trq[7], zl[2]]
            fill[46] += [("need", [], ["kw"]), "s_barrier", trk[0]]
            fill[47] += [trk[1], st("B2")]
        else:
            fill[41] += [zl[2]]
            fill[42] += [("need", [], ["qw"]), "s_barrier", trq[0]]
            fill[43] += [advs[0]] + trq[1:3]
            fill[44] += [advs[1]] + trq[3:5]
            fill[45] += [("need", [], ["kw"]), "s_barrier", trq[5]]
            fill[46] += ["s_nop 0"] + trq[6:8]
            fill[47] += trk[0:2] + [st("B2")]
        for n in O.get("pst", ()): fill[n].insert(0, st(f"n{n}"))
        prog = [sm(*o) + (fill[n],) for n, o in enumerate(seq)]
        if lastlab:
            txt = lambda f: "" if callable(f) else f if isinstance(f, str) else str(f[0])
            keep = lambda f: txt(f).startswith(("ds_read_b128", "ds_write_b128", "v_mov_b32_dpp")) or f in (("need", [], ["e0w"]), ("need", [], ["poll"]))
            p2, carry = [], []
            for n, (ins, inp_, fl) in enumerate(prog):
                fl = [f for f in fl if keep(f) or (f == "s_barrier" and n < 20)]
                if seq[n][0] == "q":
                    if p2: p2[-1][2].extend(fl)
                    else: carry = fl
                else:
                    p2.append((ins, inp_, carry + fl)); carry = []
            for k in range(len(p2) - 1): p2[k][2].append(lambda t_=p2[k + 1][1]: E.need(*t_))
            self.run(p2, first_need=False)
            for x in (cvt(PK, AK), cvt(PK + 1, AK + 2), "s_nop 5", cvt(PV_, AV), cvt(PV_ + 1, AV + 2), exp4(PQ)): E(x)
            E(f"s_branch {done}")
            E.lg = []; E.vm = []
            return hazard.check(["s_waitcnt vmcnt(0) lgkmcnt(0)"] + E.lines[body0:], f"team last w{w}")
        SX0, SX1, SM_ = AQ, AK, Q(11)
        TMP, PX, PM, PMM, LA, O0, O1 = Q(8), KX(2), Q(4), KX(3), Q(5), AV, Q(12)
        sq = [(SX0, KX(kk), Q(kk), kk == 0) for kk in range(4)] + [(SM_, KF[kk], Q(kk), kk == 0) for kk in range(4)] \
            + [(SX1, KX(4+kk), Q(kk), kk == 0) for kk in range(4)]
        ex = lambda i, src: f"v_exp_f32 v{TMP+i}, v{src+i}"
        cnds = [f"v_cndmask_b32 v{PMM}, v{PM}, 0, s[{S_HI}:{S_HI+1}]", f"v_cndmask_b32 v{PMM+1}, v{PM+1}, 0, s[{S_HI}:{S_HI+1}]",
                f"v_cndmask_b32 v{PMM+2}, 0, v{PM}, s[{S_HI}:{S_HI+1}]", f"v_cndmask_b32 v{PMM+3}, 0, v{PM+1}, s[{S_HI}:{S_HI+1}]"]
        cnds_slow = cnds
        if O["cnd32"]:
            cnds = [f"v_cndmask_b32 v{PMM+2}, 0, v{PM}, vcc", f"v_cndmask_b32 v{PMM+3}, 0, v{PM+1}, vcc",
                    f"v_xor_b32 v{PMM}, v{PMM+2}, v{PM}", f"v_xor_b32 v{PMM+1}, v{PMM+3}, v{PM+1}"]
        sf = {n: [] for n in range(12)}
        if O["cnd32"]: sf[9].append(f"s_mov_b64 vcc, s[{S_HI}:{S_HI+1}]")
        sf[0] += trk[2:4]; sf[1] += trk[4:6]; sf[2] += trk[6:8]
        sf[3] += [cvt(PV_, AV), cvt(PV_ + 1, AV + 2)]
        if not defer: sf[4 + (w if O["expw"] else 0)] += [exp4(PQ)]
        sf[4] += [zl[3]]
        sf[5] += [("nop", 1), zl[4], ex(0, SX0)] if O["ex5"] else [zl[4]]
        e0 = 1 if O["ex5"] else 0
        if O["ex5"]:
            sf[6] += [ex(1, SX0)]; sf[7] += [ex(2, SX0)]; sf[8] += [ex(3, SX0)]
            sf[9] += [cvt(PX, TMP), cvt(PX + 1, TMP + 2)]; sf[10] += [ex(0, SM_)]
        else:
            for k in range(4): sf[6 + k] += [ex(k, SX0)]
            sf[10] += [cvt(PX, TMP), cvt(PX + 1, TMP + 2)]
        last = E.label("T_last")
        if not defer and not O["salsh"]: sf[10].insert(0, kadv)
        if not O["lateexit"] and not O["lastcopy"]: sf[8].insert(0, f"s_cmp_eq_u32 s{S_STEP}, 63"); sf[9].insert(0, f"s_cbranch_scc1 {last if defer else done}")
        sf[11] += [ex(k, SM_) for k in range(e0, 4)] + [cvt(PM, TMP), cvt(PM + 1, TMP + 2)] + cnds + [st("S"), ex(0, SX1)]
        prog += [(smf(*x), (v(x[1], 4), v(x[2], 4)), sf[n]) for n, x in enumerate(sq)]
        m16 = lambda d, a_, b_: f"v_mfma_f32_16x16x16_bf16 {v(d,4)}, {v(a_,2)}, {v(b_,2)}, 0"
        pvm = [m16(LA, ONES, PMM), m16(O0, PV_, PMM), m16(O1, PV_, PMM + 2)]
        pvx = [smf(LA, ONES, PX, False), smf(O0, VX, PX, False), smf(O1, VX + 4, PX, False)]
        slow, back = E.label("T_slow"), E.label("T_back")
        OREG = [KX(4), KX(6), Q(2), VX]
        for n, o in enumerate(O_OPS): opreg[o] = OREG[n]
        rdo = [self.rd_op(o, hf, OREG[n]) for n, o in enumerate(O_OPS) for hf in range(2)]
        if O["cnd32"]: pvm = [m16(O1, PV_, PMM + 2), m16(LA, ONES, PMM + 2), m16(O0, PV_, PMM)]
        prog += [(pvm[0], (), [ex(1, SX1)]), (pvm[1], (), [ex(2, SX1)]),
                 (pvm[2], (), [ex(3, SX1), cvt(PX + 2, TMP), cvt(PX + 3, TMP + 2), zl[5], "s_nop 0"]),
                 (pvx[0], (), [zl[6], zl[7]]),
                 (pvx[1], (), rdo[0:2]),
                 (pvx[2], (), ["s_nop 1", back + ":"])]
        for n in O.get("pst2", ()): prog[n][2].insert(0, st(f"n{n}"))
        self.run(prog, first_need=False)
        OWN = Q(14)
        pkm = lambda x: f"v_pk_mul_f32 {v(x,2)}, {v(x,2)}, {v(LA,2)} op_sel:[0,1] op_sel_hi:[1,1]"
        mulo = lambda x: f"v_mul_f32 v{x}, v{LA+1}, v{x}"
        rng = [f"v_subrev_u32 v{TMP}, s{S_LO}, v{LA}", f"v_cmp_le_u32 vcc, s{S_RC}, v{TMP}", f"s_cbranch_vccnz {slow}"]
        E(f"v_rcp_f32 v{LA+1}, v{LA}")
        ow = O["ow"]
        if ow == 0:
            for x in rng[:2] + [mulo(O0), mulo(O0 + 1), rng[2], cvt(OWN, O0), pkm(O0 + 2), pkm(O1), pkm(O1 + 2), cvt(OWN+1, O0+2), cvt(OWN+2, O1), cvt(OWN+3, O1+2)]: E(x)
            E.ds(f"ds_write_b128 v{OB}, {v(OWN,4)} offset:{L_OM + 512*w}", tag="ow")
            E("s_nop 0")
        else:
            for x in rng[:2] + [mulo(O0), mulo(O0 + 1), cvt(OWN, O0), pkm(O0 + 2)]: E(x)
            if ow == 2:
                E(cvt(OWN+1, O0+2))
                E.ds(f"ds_write_b64 v{OB}, {v(OWN,2)} offset:{L_OM + 512*w}")
                for x in (pkm(O1), pkm(O1 + 2), cvt(OWN+2, O1), cvt(OWN+3, O1+2)): E(x)
                E.ds(f"ds_write_b64 v{OB}, {v(OWN+2,2)} offset:{L_OM + 512*w + 8}", tag="ow")
            else:
                for x in (pkm(O1), pkm(O1 + 2), cvt(OWN+1, O0+2), cvt(OWN+2, O1), cvt(OWN+3, O1+2)): E(x)
                E.ds(f"ds_write_b128 v{OB}, {v(OWN,4)} offset:{L_OM + 512*w}", tag="ow")
            E(rng[2])
        self.stamp("PV")
        OF = [OWN, Q(9), Q(10), Q(0)]
        SEL, RD, TG = Q(12), Q(13), KX(3)
        U0, U1 = AQ, AK
        so = lambda p, t: (f"v_smfmac_f32_16x16x64_bf16 {v(WA[t],4)}, {v(OF[p],4)}, {r(opreg[('o',p,t)],8)}, v{IDX}",
                           (v(OF[p], 4), r(opreg[('o', p, t)], 8)))
        tag = lambda x: f"v_bfi_b32 v{x}, 1, s{S_PH}, v{x}"
        oq = [(0, t) for t in range(4)] + [(p, t) for p in (1, 2, 3) for t in (0, 1)] + [(p, t) for p in (1, 2, 3) for t in (2, 3)]
        if O["fine"]: oq = oq[:4] + [(p, t) for t in range(4) for p in (1, 2, 3)]
        of = {n: [] for n in range(16)}
        nb3 = O["b3at"]
        of[nb3] = [("need", [], ["ow"]), "s_barrier"] + [f"ds_read_b128 {v(OF[p],4)}, v{OB} offset:{L_OM + 512*(p ^ w)}" for p in (1, 2, 3)] + [st("B3")]
        if O["lateexit"]:
            of[1] += [f"s_cmp_eq_u32 s{S_STEP}, 63"]; of[O["b3at"]] += [f"s_cbranch_scc1 {done}"]
        of[3] += [lambda: E.need(v(OF[1], 4))]
        of[0] += [f"s_mov_b32 s{S_RC}, s{S_RNG}"]
        rd2 = rdo[4:6] + rdo[2:4] + rdo[6:8] if O["fine"] else rdo[2:]
        for k, n in enumerate((4, 5, 6, 7, 8, 10) if O["fine"] else range(4, 10)): of[n] += rd2[k:k + 1]
        red = w < 2 or O["quad"]
        if red: of[13 if O["fine"] else 10] += [f"ds_read_b128 {v(SEL,4)}, v{L16} offset:{L_SEL}"]
        u0v = [cvt(U0, WA[0]), cvt(U0+1, WA[0]+2), tag(U0), cvt(U0+2, WA[1]), cvt(U0+3, WA[1]+2)]
        u0s = [f"buffer_store_dwordx4 {v(U0,4)}, v{PS}, {ws()}, s{S_PST0} offen{sc}", st("u0")]
        if O["fine"]:
            uv = lambda t: [cvt(U0 + 2*t, WA[t]), cvt(U0 + 2*t + 1, WA[t] + 2), tag(U0 + 2*t)]
            us = lambda t: f"buffer_store_dwordx2 {v(U0 + 2*t, 2)}, v{PS}, {ws()}, s{S_PST0 + (t >> 1)} offen offset:{(2048 if O['quad'] else 64)*(t & 1)}{sc}"
            for t in range(3):
                if O["fine"] == 1 or t == 0:
                    of[8 + 3*t] += [("nop", 2)] + uv(t); of[9 + 3*t] += [us(t)]
                else:
                    of[8 + 3*t] += [("nop", 2)] + uv(t)[:1]; of[9 + 3*t] += uv(t)[1:]
                    if t == 1: of[13].insert(0, us(t))
                    else: of[15] += [us(t)]
            of[9].append(st("u0"))
            of[15] += [("nop", 8)] + uv(3) + [us(3), st("Wo")]
        elif O["u0at"] == 0:
            of[11] += u0v; of[12] += u0s
        elif O["u0at"] == 1:
            of[10] += [("nop", 2)] + u0v[:1]; of[11] += u0v[1:3]; of[12] += u0v[3:]; of[13] += u0s
        else:
            of[10] += [("nop", 2)] + u0v[:1]
            rest = u0v[1:]; per = {0: [4], 1: [2, 2], 2: [1, 1, 2], 3: [1, 1, 1, 1]}[w]
            for k, c in enumerate(per):
                of[11 + k] += rest[:c]; rest = rest[c:]
            of[12 + w][:0] = u0s
        if not O["fine"]: of[15] += [("nop", 5), cvt(U1, WA[2]), cvt(U1+1, WA[2]+2), tag(U1), cvt(U1+2, WA[3]), cvt(U1+3, WA[3]+2),
                   f"buffer_store_dwordx4 {v(U1,4)}, v{PS}, {ws()}, s{S_PST1} offen{sc}", st("Wo")]
        for n in O.get("pst3", ()): of[n].insert(0, st(f"o{n}"))
        self.run([so(p, t) + (of[n],) for n, (p, t) in enumerate(oq)], name='o')
        self.est = estimate(E.lines[body0:])
        if self.stamps and O.get("dumplate"): self.dump_stamps(KX(2)); self.stamp("dump")
        pre = ["s_waitcnt vmcnt(0) lgkmcnt(0)"] + E.lines[body0:]
        def gather(regs):
            return [f"buffer_load_dwordx4 {v(x,4)}, v{L16}, {ws()}, s{S_IN0} offen offset:{i*1024} sc1" for i, x in enumerate(regs)]
        G1 = [KX(4 + i) for i in range(2 if O['quad'] else 4)]
        def reduce_(regs, after):
            for i, x in enumerate(regs):
                E(f"s_waitcnt vmcnt({len(regs) - 1 - i + after})")
                E(smf(RD, SEL, x, i == 0))
                if i == 0: E(f"v_xor_b32 v{TG}, s{S_PH}, v{x}")
                else: E(f"v_bitop3_b32 v{TG}, v{TG}, v{x}, s{S_PH} bitop3:0xf6")
                if O["fine"]: E(f"v_bitop3_b32 v{TG}, v{TG}, v{x+2}, s{S_PH} bitop3:0xf6")
            E(f"v_and_b32 v{TG}, 1, v{TG}\n v_cmp_ne_u32 vcc, 0, v{TG}")
        def nops(n):
            for k in range(0, n, 16): E(f"s_nop {min(16, n - k) - 1}")
        errs = []
        pl = self.p_list()
        pdef = pl[12 - O["pdefer"]:]; pl = pl[:12 - O["pdefer"]]
        rds = [f"ds_read_b128 {v(VX + 4*j, 4)}, v{L16} offset:{L_VX + 4096*j + 1024*w}" for j in range(2)] \
            + [f"ds_read_b128 {v(KX(f), 4)}, v{L16} offset:{L_KX + 1024*f}" for f in range(8)]
        l0 = len(E.lines)
        p1, p1re, p1ok = E.label("T_p1"), E.label("T_p1re"), E.label("T_p1ok")
        for x in shadow: E(x)
        if defer:
            for k in range(2): E(f"v_mov_b64 {v(ONES + 2*k, 2)}, {v(PQ + 2*k, 2)}")
        nob = O["split"]
        if nob: assert O["rearm"]
        nst_ = 4 if O["fine"] else 2
        def finish():
            if O["line"] == 2:
                for i in range(4):
                    E(f"v_add_f32_dpp v{TG+2+(i&1)}, v{RD+i}, v{RD+i} row_ror:8 row_mask:0xf bank_mask:{'0xc' if i > 1 else '0x3'}")
                E(cvt(TG, TG + 2))
            else:
                for i in range(2):
                    E(f"v_add_f32_dpp v{RD+i}, v{RD+i}, v{RD+i} row_ror:8 row_mask:0xf bank_mask:0xf")
                if O["quad"]:
                    E("s_nop 0")
                    for i in range(2):
                        E(f"v_add_f32_dpp v{RD+i}, v{RD+i}, v{RD+i} row_ror:4 row_mask:0xf bank_mask:0xf")
                E(cvt(TG, RD))
            E(f"buffer_store_dword v{TG}, v{MP}, {ws()}, s{S_PUB} offen{sc}")
            if not O["rearm"]: E(f"buffer_store_dword v{TG+1}, v{MP}, {ws()}, s{S_MRE} offen{sc}")
            if self.stamps: E(f"s_mov_b32 s94, s{S_CNT}")
        if nob: E(f"s_waitcnt vmcnt({nst_})\n s_barrier")
        npoll = NS
        if red:
            npre = O["w1pre"] if w else O["h1pre"]
            ack = O["w1ack"] if w else O["h1ack"]
            kvp = O["kvpre"] if isinstance(O["kvpre"], int) else O["kvpre"][w & 1]
            if O["quad"]: npre, ack, kvp = O["qpre"][w], O["qack"][w], int(w == 3)
            for x in pl[:npre]: E(x)
            if npre >= 2: self.zero_acc()
            E(f"s_mov_b32 s{S_CNT}, 0")
            if not O["rearm"]: E(f"v_mov_b32 v{TG+1}, -1")
            if self.merged and kvp: self.kv_refresh()
            E.c("@I"); E.c("@A gat")
            if ack is not None: E(f"s_waitcnt vmcnt({ack})")
            nops(O["w1nop"] if w else O["h1nop"])
            for x in gather(G1): E(x)
            self.stamp("g1")
            for x in pl[npre:]: E(x)
            if npre < 2: self.zero_acc()
            if self.merged and not kvp: self.kv_refresh()
            E(f"s_waitcnt lgkmcnt({min(15, len(pl))})")
            if nob and w == 1:
                for x in rds[:5]: E(x)
                rds = rds[5:]
            E.c("@I"); E.c("@A red")
            reduce_(G1, 0)
            E(f"s_cbranch_vccnz {p1re}")
            l2 = len(E.lines)
            E(p1ok + ":")
            if nob and w == 1:
                E(ld0); npoll = NS - 2
            E(f"s_nop {(2 if O['fine'] else 3) - (1 if nob and w == 1 else 0)}")
            finish()
        else:
            for x in pl: E(x)
            self.zero_acc()
            if O.get("trace") and w == 2:
                E(f"s_memtime s[60:61]\n s_lshl_b32 s62, s{S_STEP}, 2\n s_add_u32 s62, s62, 32512\n v_mov_b32 v{KX(4)}, s62\n s_waitcnt lgkmcnt(0)")
                E(f"v_mov_b32 v{KX(4)+1}, s60\n ds_write_b32 v{KX(4)}, v{KX(4)+1}")
            if self.merged: self.kv_refresh()
            if nob:
                E(f"s_waitcnt vmcnt({O['w2ack']})")
                E(f"buffer_load_dword v{Y0}, off, {ws()}, s{S_MEM0} sc1")
                self.stamp("g1")
                E("s_waitcnt vmcnt(0)")
            else:
                self.stamp("g1")
                E(f"s_waitcnt vmcnt({nst_})")
        self.stamp("hop1")
        if not nob: E("s_barrier")
        cuts = list(O["h2cut"] if not nob or w == 0 else O["w1cut"] if w == 1 else O["w2cut"]) + [10]
        rds = rds + pdef
        if one == 2 or P1:
            pos = 0
            for c, hf in (P1 or PSCH):
                for x in rds[pos:c]: E(x)
                pos = c
                E(ld1 if hf else ldx)
            for x in rds[pos:]: E(x)
        else:
            for x in rds[:cuts[0]]: E(x)
            for k in range(npoll):
                E(ld0)
                for x in rds[cuts[k]:(cuts[k + 1] if k + 1 < npoll else 99)]: E(x)
        if O["kvsh"]:
            E(f"s_add_u32 s{S_STEP}, s{S_STEP}, 1")
            if O["salsh"]: E(sal[0])
            if self.merged: E(f"s_cmp_ge_i32 s{S_STEP}, s{S_RDY}\n s_cbranch_scc1 {kvw}\n{kvb}:")
        E(f"s_mov_b32 s{S_CNT}, 0")
        self.stamp("top")
        if O["lastcopy"]:
            assert O["kvsh"] and not defer and one == 1 and O["wkind"] == 128
            E(f"s_cmp_lg_u32 s{S_STEP}, 63\n s_cbranch_scc1 {top}\n s_branch {last}")
        else:
            E(f"s_branch {top}")
        l5 = len(E.lines)
        if O["align"]: self.alstat = align.align(E.lines, lal, l5, O["align"])
        chk_lines = list(E.lines)
        align.phase(E.lines, lal, l5, O["phase"])
        Ls = E.lines
        errs += hazard.check(pre + Ls[l0:l5] + pre, f"team w{w}")
        if red:
            E(p1re + ":")
            if O["h1mask"]: E("s_mov_b64 exec, vcc")
            for x in gather(G1): E(x)
            if O["h1mask"]: E("s_mov_b64 exec, -1")
            E(cntchk)
            reduce_(G1, 0)
            E(f"s_cbranch_vccnz {p1re}\n s_branch {p1ok}")
            errs += hazard.check(pre + Ls[l0:l2] + Ls[l5:] + Ls[l2:l5] + pre, f"team w{w} retry")
        E.lg = []; E.vm = []
        if self.merged:
            E(kvw + ":")
            self.wait_kv(fail)
            E(f"s_branch {kvb}")
        if defer:
            E(last + ":")
            E(exp4(PQ)); E(f"s_branch {done}")
        if one == 2:
            E(late + ":")
            E("s_mov_b64 exec, vcc\n" + ld1 + "\n s_mov_b64 exec, -1"); E(cntchk); E(f"s_waitcnt vmcnt({O['lated']})")
            for x in c1: E(x)
            if self.stamps: E(f"s_add_u32 s95, s95, 0x100")
            E(f"s_cbranch_vccnz {late}\n s_branch {lateok}")
        if not one:
            E(late + ":")
            E(ld1); E(cntchk); E("s_waitcnt vmcnt(0)")
            for x in c1: E(x)
            if self.stamps: E(f"s_add_u32 s95, s95, 0x100")
            E(f"s_cbranch_vccnz {late}\n s_branch {lateok}")
        s0 = len(E.lines)
        E(slow + ":")
        M0, M1 = TMP, TMP + 1
        E("s_nop 7")
        E(f"v_max3_f32 v{M0}, v{SX0}, v{SX0+1}, v{SX0+2}\n v_max3_f32 v{M0}, v{M0}, v{SX0+3}, v{SX1}")
        E(f"v_max3_f32 v{M0}, v{M0}, v{SX1+1}, v{SX1+2}\n v_max3_f32 v{M0}, v{M0}, v{SX1+3}, v{SM_}")
        E(f"v_max3_f32 v{M0}, v{M0}, v{SM_+1}, v{SM_+2}\n v_max_f32 v{M0}, v{M0}, v{SM_+3}")
        for sw in ("32", "16"):
            E(f"v_mov_b32 v{M1}, v{M0}\n s_nop 1\n v_permlane{sw}_swap_b32 v{M0}, v{M1}\n s_nop 1\n v_max_f32 v{M0}, v{M0}, v{M1}")
        for base in (SX0, SX1, SM_):
            for i in range(4): E(f"v_sub_f32 v{base+i}, v{base+i}, v{M0}")
            for i in range(4): E(f"v_exp_f32 v{base+i}, v{base+i}")
        E("s_nop 0")
        E(cvt(PX, SX0)); E(cvt(PX+1, SX0+2)); E(cvt(PX+2, SX1)); E(cvt(PX+3, SX1+2)); E(cvt(PM, SM_)); E(cvt(PM+1, SM_+2))
        for x in cnds_slow: E(x)
        E("s_nop 1")
        for x in pvm + pvx: E(x)
        E("s_nop 7\n s_nop 1")
        E(f"s_mov_b32 s{S_RC}, -1\n s_branch {back}")
        errs += hazard.check(E.lines[s0:], "team slow")
        if O["lastcopy"]:
            keep_ = (self.stamps, self.nst, self.names, self.est); self.stamps = False
            errs += self.loop(mode, w, done, fail, xsc, last)
            self.stamps, self.nst, self.names, self.est = keep_
        return errs

    def dump_stamps(self, t=Q(12) + 2):
        E = self.E
        E("s_memrealtime s[88:89]\n s_memtime s[90:91]\n s_waitcnt lgkmcnt(0)")
        E.lg = []
        E(f"s_lshl_b32 s{S_T0}, s{S_H}, 2\n s_add_u32 s{S_T0}, s{S_T0}, s{S_W}\n s_lshl_b32 s{S_T0}, s{S_T0}, 6\n s_add_u32 s{S_T0}, s{S_T0}, s{S_STEP}")
        E(f"s_lshl_b32 s{S_T0}, s{S_T0}, 7\n s_add_u32 s{S_T0}, s{S_T0}, {STAMP}")
        E(f"v_mov_b32 v{t}, 0")
        for i in range(16):
            E(f"v_writelane_b32 v{t}, s{S_ST + 2*i}, {i}")
        E(f"v_writelane_b32 v{t}, s94, 16\n v_writelane_b32 v{t}, s95, 17")
        E(f"v_lshrrev_b32 v{t+1}, 2, v{L16}\n s_mov_b64 exec, 0xffffffff")
        E(f"buffer_store_dword v{t}, v{t+1}, {ws()}, s{S_T0} offen\n s_mov_b64 exec, -1\n s_nop 3")


def standalone(stamps=False, force_mode=None, **opt):
    E = Em()
    E("; @launch grid=(256,1,1) block=(256,1,1) lds=163840")
    E('.amdgcn_target "amdgcn-amd-amdhsa--gfx950"')
    E(kernel_header("team_kernel"))
    T = Team(E, stamps, **opt)
    E("s_cmp_ge_u32 s2, 256\n s_cbranch_scc1 T_exit\n s_and_b32 s3, s2, 7\n s_cbranch_scc1 T_exit")
    E(f"s_lshr_b32 s{S_H}, s2, 3")
    E("s_memrealtime s[100:101]\n s_waitcnt lgkmcnt(0)\n s_mov_b32 s92, s100\n s_mov_b32 s94, 0")
    l0 = len(E.lines)
    T.startup("T_fail")
    errs = hazard.check(E.lines[l0:], "team startup")
    E("s_memrealtime s[100:101]\n s_waitcnt lgkmcnt(0)\n s_mov_b32 s59, s100\n s_memtime s[100:101]\n s_waitcnt lgkmcnt(0)\n s_mov_b32 s93, s100")
    if force_mode is not None:
        E(f"s_mov_b32 s{S_MODE}, {force_mode}")
    E(f"s_cmp_lg_u32 s{S_MODE}, 0\n s_cbranch_scc1 T_global")
    errs += T.loops(0, "T_done", "T_fail")
    E("T_global:")
    errs += T.loops(1, "T_done", "T_fail")
    E("T_fail:")
    E(f"s_mov_b32 s{S_T0}, 1\n s_atomic_add s{S_T0}, s[{S_DBG}:{S_DBG+1}], 12 glc\n s_waitcnt lgkmcnt(0)")
    E("T_done:")
    E("s_memrealtime s[100:101]\n s_waitcnt lgkmcnt(0)\n s_mov_b32 s97, s100\n s_memtime s[100:101]\n s_waitcnt lgkmcnt(0)")
    E(f"s_sub_u32 s93, s100, s93\n v_mov_b32 v40, s92\n v_mov_b32 v41, s59\n v_mov_b32 v42, s97\n v_mov_b32 v43, s93")
    E(f"s_lshl_b32 s{S_T0}, s{S_H}, 4\n s_add_u32 s{S_T0}, s{S_T0}, {STAMP + MB}\n v_mov_b32 v44, 0")
    E(f"buffer_store_dwordx4 v[40:43], v44, {ws()}, s{S_T0} offen")
    E("T_exit:\n s_endpgm")
    E(kernel_desc("team_kernel"))
    txt = E.text()
    standalone.est = T.est
    if opt.get("norty") or opt.get("nomem"):
        import re
        txt = re.sub(r"s_cbranch_vccnz T_(retry|late|p1re|slow)_\d+", "s_nop 0", txt)
    if opt.get("nomem"):
        i = txt.index("T_retry_")
        pat = {1: r"buffer_(load|store)_dword(x4)? v\S+, v\d+, s\[4:7\], s(20|21|22|24|25|26|35) offen.*",
               2: r"buffer_(load|store)_dword(x4)? v\S+, v\d+, s\[4:7\], s(24|25|26|35) offen.*",
               3: r"buffer_(load|store)_dword(x4)? v\S+, v\d+, s\[4:7\], s(20|21|22) offen.*"}[opt["nomem"]]
        txt = txt[:i] + re.sub(pat, "s_mov_b32 s39, 0x12345", txt[i:])
    return txt, errs, T.names

if __name__ == "__main__":
    for st in (False, True):
        txt, errs, names = standalone(st)
        print(len(errs), "hazards", names)
        if not st:
            e = standalone.est; print("est", e[-1], "slot lengths", [b - a for a, b in zip(e, e[1:])])
    open("team.s", "w").write(txt)
```

```python
import sys
from emit import *
from layout import *
import gemm, attn, outp, team
from gemm import G_WS, G_W, G_N, G_DONE, G_FLAG, G_T0, G_T1, G_T2, G_T3, V_LANE
NAME = "gated_mix__compressed_kv_cla__memory_aug_recurrent_mem_tr__prompt"
KN = NAME + "_kernel"
INIT_OFF = 128
WAIT_MAX = 1 << 18
R_KIND, R_T0, R_DT, R_N, R_NATT, R_QB0, R_QT0, R_QB1, R_QT1 = range(48, 57)
R_H, R_ROLE, R_C, R_GB, R_LVL, R_QB, R_QT, R_CNT = range(64, 72)
R_WSP, R_DBG = 72, 74
R_A, R_B, R_D, R_E = 76, 77, 78, 79

SCHEDS = {
 0: [(1, 63, -1, 18, [7]), (1, 45, -1, 22, [6]), (2, 0, 1, 28, [5]), (0, 63, -1, 25, [4, 0]),
     (1, 23, -1, 24, [3, 1]), (0, 38, -1, 39, [2]), (2, 28, 1, 36, [])],
 1: [(1, 63, -1, 20, [7]), (1, 43, -1, 24, [6]), (2, 0, 1, 30, [5]), (2, 30, 1, 34, [4]),
     (0, 0, 1, 32, [3, 0]), (0, 63, -1, 32, [2, 1]), (1, 19, -1, 20, [])],
 2: [(1, 63, -1, 24, [7]), (1, 39, -1, 28, [6]), (2, 0, 1, 30, [5]), (2, 30, 1, 34, [4]),
     (0, 0, 1, 32, [3, 0]), (0, 63, -1, 32, [2, 1]), (1, 11, -1, 12, [])],
 3: [(1, 63, -1, 23, [7]), (1, 40, -1, 27, [6]), (2, 0, 1, 30, [5]), (2, 30, 1, 34, [4]),
     (0, 0, 1, 32, [3, 0]), (0, 63, -1, 32, [2, 1]), (1, 13, -1, 14, [])],
 4: [(1, 63, -1, 26, [7]), (1, 37, -1, 30, [6]), (2, 0, 1, 30, [5]), (2, 30, 1, 34, [4]),
     (0, 0, 1, 32, [3, 0]), (0, 63, -1, 32, [2, 1]), (1, 7, -1, 8, [])],
 5: [(1, 63, -1, 23, [7]), (1, 40, -1, 27, [6]), (2, 0, 2, 32, [5]), (2, 1, 2, 32, [4]),
     (0, 0, 1, 32, [3, 0]), (0, 63, -1, 32, [2, 1]), (1, 13, -1, 14, [])],
 6: [(1, 63, -1, 25, [7]), (1, 38, -1, 29, [6]), (2, 0, 2, 32, [5]), (2, 1, 2, 32, [4]),
     (0, 0, 1, 32, [3, 0]), (0, 63, -1, 32, [2, 1]), (1, 9, -1, 10, [])],
 7: [(1, 63, -1, 26, [7]), (1, 37, -1, 30, [6]), (2, 0, 2, 32, [5]), (2, 1, 2, 32, [4]),
     (0, 0, 1, 32, [3, 0]), (0, 63, -1, 32, [2, 1]), (1, 7, -1, 8, [])],
}

def need_tiles(ent, lo, hi):
    _, t0, dt, n, _ = ent
    idx = [i for i in range(n) if lo <= t0 + dt*i <= hi]
    return max(idx) + 1 if idx else 0

def build(diag=False, team_opt=None, sched=6, stamps=False, pf=1, wwin=32, bpf=((3, 0, 4), (1, 2, 4), (2, 2, 4), (0, 2, 4)), opf=3, fol=(12, 20), arm0=58, mate=0, m16=1, lag=2, osc='', cpf=1, teamonly=0, specat=45, zwin=4, owin=8, awin=64, nfused=25, gb=12, ge=10):
    gemm.M16 = bool(m16); gemm.LAG = lag
    S = SCHEDS[sched] if isinstance(sched, int) else sched
    E = Em()
    E.lines.append("; @launch grid=(256,1,1) block=(256,1,1) lds=163840")
    E('.amdgcn_target "amdgcn-amd-amdhsa--gfx950"')
    E(kernel_header(KN))
    errs = []
    wsd = s(G_WS, 4)
    kv_roles = [r_ for r_, x in enumerate(S) if x[0] == 1]
    q_roles = [r_ for r_, x in enumerate(S) if x[0] == 0]
    b_roles = [r_ for r_, x in enumerate(S) if x[0] == 2]
    E("s_cmp_ge_u32 s2, 256\n s_cbranch_scc1 M_exit")
    if diag: tmark(E, 0); E("s_lshr_b32 s97, s2, 3\n s_add_u32 s97, s97, 224")
    if cpf:
        E("s_getpc_b64 s[60:61]\nM_pc0:\n s_lshr_b32 s62, s2, 3\n s_and_b32 s62, s62, 3\n s_lshl_b32 s62, s62, 15\n v_lshl_add_u32 v104, v0, 7, s62")
        E("v_min_u32 v104, M_table-M_pc0, v104\n global_load_dword v105, v104, s[60:61]")
    E(f"s_lshr_b32 s{R_B}, s2, 3\n s_and_b32 s{R_A}, s2, 7\n s_cbranch_scc1 M_worker")
    T = team.Team(E, stamps, **(team_opt or {}))
    T.diag = diag
    T.merged = dict(init_off=INIT_OFF, r1=b_roles[0], r2=b_roles[1], n1=S[b_roles[0]][3], arm0=arm0, inter=S[b_roles[0]][2] == 2)
    E(f"s_mov_b32 s{team.S_H}, s{R_B}")
    l0 = len(E.lines)
    T.startup("M_exit")
    errs += hazard.check(E.lines[l0:], "team startup")
    if diag: tmark(E, 1)
    E(f"s_cmp_lg_u32 s{team.S_MODE}, 0\n s_cbranch_scc1 M_global")
    errs += T.loops(0, "M_tdone", "M_exit", " sc1")
    E("M_global:")
    errs += T.loops(1, "M_tdone", "M_exit", " sc1")
    E("M_tdone:")
    E(f"v_mov_b32 v16, 64\n v_or_b32 v17, s{team.S_W}, v{team.L16}\n v_min_u32 v17, 1, v17\n v_lshlrev_b32 v17, 30, v17\n s_waitcnt vmcnt(0)\n s_barrier")
    E(f"buffer_store_dword v16, v17, {wsd}, s{team.S_FLG} offen sc1")
    if T.opt.get("trace"):
        E(f"v_lshrrev_b32 v20, 2, v{team.L16}\n ds_read_b32 v21, v20 offset:32512\n s_lshl_b32 s60, s{team.S_H}, 8\n s_add_u32 s60, s60, {STAMP + 65536}\n s_waitcnt lgkmcnt(0)")
        E(f"buffer_store_dword v21, v20, {wsd}, s60 offen")
    E("s_branch M_done")
    E("M_worker:")
    if teamonly: E("s_endpgm")
    E(f"s_load_dwordx4 s[{R_WSP}:{R_WSP+3}], s[0:1], {ARG['dbg']}")
    gemm.lane_setup(E)
    E("s_waitcnt lgkmcnt(0)")
    E(f"s_mov_b64 s[{G_WS}:{G_WS+1}], s[{R_WSP+2}:{R_WSP+3}]\n s_mov_b64 s[{R_DBG}:{R_DBG+1}], s[{R_WSP}:{R_WSP+1}]\n s_mov_b64 s[{R_WSP}:{R_WSP+1}], s[{G_WS}:{G_WS+1}]")
    E(f"s_and_b32 s{G_WS+1}, s{G_WS+1}, 0xffff\n s_mov_b32 s{G_WS+2}, {WS_BYTES}\n s_mov_b32 s{G_WS+3}, 0x20000")
    if mate:
        E(f"s_sub_u32 s{R_A}, s{R_A}, 2\n s_cmp_lt_u32 s{R_A}, 5\n s_cbranch_scc1 M_gen")
        E(f"v_mov_b32 v4, 0\n s_cmp_lg_u32 s{G_W}, 0\n s_cbranch_scc1 M_claimed")
        E(f"s_getreg_b32 s{R_D}, hwreg(HW_REG_XCC_ID, 0, 1)\n s_bfe_u32 s{R_E}, s2, 0x10001\n s_xor_b32 s{R_D}, s{R_D}, s{R_E}")
        if mate == 2: E(f"s_xor_b32 s{R_D}, s{R_D}, 1")
        E(f"s_lshl_b32 s{R_E}, s{R_B}, 1\n s_add_u32 s{R_E}, s{R_E}, s{R_D}\n s_lshl_b64 s[36:37], 1, s{R_E}")
        E(f"s_atomic_or_x2 s[36:37], s[{R_DBG}:{R_DBG+1}], 64 glc\n s_waitcnt lgkmcnt(0)")
        E(f"s_lshr_b64 s[36:37], s[36:37], s{R_E}\n s_xor_b32 s{R_D}, s{R_D}, s36\n s_and_b32 s{R_D}, s{R_D}, 1")
        E(f"v_mov_b32 v5, s{R_D}\n ds_write_b32 v4, v5\n s_waitcnt lgkmcnt(0)")
        E("M_claimed:")
        E(f"s_barrier\n ds_read_b32 v5, v4\n s_waitcnt lgkmcnt(0)\n v_readfirstlane_b32 s{R_D}, v5\n s_barrier")
        E(f"s_mov_b32 s{R_A}, 5\n s_mov_b32 s{R_H}, s{R_B}\n s_mov_b32 s{R_ROLE}, 6\n s_cmp_lg_u32 s{R_D}, 0\n s_cbranch_scc1 M_role")
        E("M_gen:")
        E(f"s_lshl_b32 s{R_C}, s{R_A}, 5\n s_add_u32 s{R_C}, s{R_C}, s{R_B}\n s_mul_i32 s{R_H}, s{R_C}, 10923\n s_lshr_b32 s{R_H}, s{R_H}, 16")
        E(f"s_mul_i32 s{R_ROLE}, s{R_H}, 6\n s_sub_u32 s{R_ROLE}, s{R_C}, s{R_ROLE}")
        E("M_role:")
        E(f"s_mul_i32 s{R_GB}, s{R_H}, 7\n s_add_u32 s{R_C}, s{R_GB}, s{R_ROLE}")
    else:
        E(f"s_sub_u32 s{R_C}, s{R_A}, 1\n s_lshl_b32 s{R_C}, s{R_C}, 5\n s_add_u32 s{R_C}, s{R_C}, s{R_B}")
        E(f"s_mul_i32 s{R_H}, s{R_C}, 9363\n s_lshr_b32 s{R_H}, s{R_H}, 16\n s_mul_i32 s{R_GB}, s{R_H}, 7\n s_sub_u32 s{R_ROLE}, s{R_C}, s{R_GB}")
    if diag: E(f"s_mov_b32 s97, s{R_C}")
    E(f"s_lshl_b32 s{G_FLAG}, s{R_C}, 7\n s_add_u32 s{G_FLAG}, s{G_FLAG}, {FLAGS}")
    E(f"s_lshl_b32 s{R_GB}, s{R_GB}, 7\n s_add_u32 s{R_GB}, s{R_GB}, {FLAGS}")
    E(f"s_getpc_b64 s[{R_A}:{R_A+1}]\nM_pc:\n s_add_u32 s{R_A}, s{R_A}, M_table-M_pc\n s_addc_u32 s{R_B}, s{R_B}, 0\n s_lshl_b32 s{G_T0}, s{R_ROLE}, 6")
    E(f"s_load_dwordx16 s[48:63], s[{R_A}:{R_A+1}], s{G_T0}\n s_waitcnt lgkmcnt(0)\n s_mov_b32 s{G_N}, s{R_N}")
    if bpf:
        E(f"s_cmp_lg_u32 s{R_KIND}, 1\n s_cbranch_scc1 M_nobpf")
        E(f"s_load_dwordx8 s[36:43], s[0:1], {ARG['bwq']}\n s_mul_i32 s{R_A}, s{R_H}, 3\n s_add_u32 s{R_A}, s{R_A}, s57")
        E(f"v_lshlrev_b32 v4, 7, v0\n s_mov_b32 s10, {4*MB}\n s_mov_b32 s11, 0x20000\n s_waitcnt lgkmcnt(0)")
        for k, (ptr, lo, hi) in enumerate(bpf):
            per = -(-(hi - lo) * 8192 // 96)
            E(f"s_mov_b32 s8, s{36 + 2*ptr}\n s_and_b32 s9, s{37 + 2*ptr}, 0xffff\n s_mul_i32 s{R_B}, s{R_A}, {per*128}\n s_add_u32 s{R_B}, s{R_B}, {lo*MB}")
            for j in range(0, per, 256):
                E(f"v_min_u32 v5, {(min(256, per - j) - 1)*128}, v4\n v_add_u32 v5, s{R_B}, v5\n s_add_u32 s{R_B}, s{R_B}, {256*128}")
                E(f"buffer_load_dword v6, v5, s[8:11], 0 offen")
        E("s_waitcnt vmcnt(0)")
        E("M_nobpf:")
    def init():
        E(f"s_cmp_lg_u32 s{G_W}, 3\n s_cbranch_scc1 M_noinit")
        E(f"s_mov_b32 s{R_E}, 0\n s_atomic_swap s{R_E}, s[{R_WSP}:{R_WSP+1}], s{G_FLAG} glc\n s_waitcnt lgkmcnt(0)")
        E(f"s_mov_b32 s{R_E}, 1\n s_atomic_add s{R_E}, s[{R_DBG}:{R_DBG+1}], {INIT_OFF}")
        E("M_noinit:")
        if arm0 < 64:
            assert arm0 > S[b_roles[0]][3] + 1 and arm0 > fol[-1] + 1
            E(f"s_cmp_lg_u32 s{R_ROLE}, {b_roles[1]}\n s_cbranch_scc1 M_noarm")
            E(f"v_lshlrev_b32 v4, 4, v0\n v_mov_b64 v[60:61], -1\n v_mov_b64 v[62:63], -1\n s_mul_i32 s{R_A}, s{R_H}, {KMB}")
            for sg in range(arm0, 64):
                E(f"s_add_u32 s{R_B}, s{R_A}, {KM + sg*32*KMB}\n buffer_store_dwordx4 v[60:63], v4, {wsd}, s{R_B} offen sc1")
            E("M_noarm:")
        if pf:
            E(f"s_mul_i32 s{R_A}, s{R_H}, 3\n s_add_u32 s{R_A}, s{R_A}, s57\n s_mul_i32 s{R_A}, s{R_A}, {192*128}")
            E(f"v_lshlrev_b32 v4, 7, v0\n v_add_u32 v4, s{R_A}, v4")
            E.vmem(f"buffer_load_dword v5, v4, {s(gemm.G_ASRD,4)}, 0 offen")
    def touch0():
        E(f"s_load_dwordx2 s[8:9], s[0:1], {ARG['wo']}\n s_mul_i32 s{R_A}, s{R_C}, {147*128}\n v_min_u32 v200, 146, v0\n v_lshl_add_u32 v200, v200, 7, s{R_A}")
        E(f"s_waitcnt lgkmcnt(0)\n s_and_b32 s9, s9, 0xffff\n buffer_load_dword v201, v200, s[8:11], 0 offen")
    errs += gemm.proj_task(E, R_KIND, R_H, R_T0, R_DT, " sc1", True, 6 if diag == 2 else False, init, wwin, touch0 if opf == 3 else None)
    if diag: tmark(E, 1)

    def bound():
        return f"s_add_u32 s{R_CNT}, s{R_CNT}, 1\n s_cmp_gt_u32 s{R_CNT}, {WAIT_MAX}\n s_cbranch_scc1 M_exit"
    def swait(base, off, thr):
        lp, go = E.label("M_sw"), E.label("M_sg")
        E(f"s_mov_b32 s{R_CNT}, 0\n s_branch {go}")
        E(lp + ":")
        E("s_sleep 8")
        E(bound())
        E(go + ":")
        E(f"s_mov_b32 s{R_E}, 0\n s_atomic_or s{R_E}, s[{base}:{base+1}], {off} glc\n s_waitcnt lgkmcnt(0)\n s_cmp_lt_u32 s{R_E}, {thr}\n s_cbranch_scc1 {lp}")
    def vwait(va, vt, vx):
        lp, go = E.label("M_vw"), E.label("M_vg")
        E(f"s_mov_b32 s{R_CNT}, 0\n s_branch {go}")
        E(lp + ":")
        E("s_sleep 2")
        E(bound())
        E(go + ":")
        E(f"buffer_load_dword v{vx}, v{va}, {wsd}, 0 offen sc1\n s_waitcnt vmcnt(0)\n v_cmp_lt_u32 vcc, v{vx}, v{vt}\n s_cbranch_vccnz {lp}")
        E.vm = []
    def publish(val):
        E(f"s_waitcnt vmcnt(0)\n s_barrier\n s_mov_b32 s{G_DONE}, {val}")
        gemm.publish(E)
    swait(R_DBG, INIT_OFF, 256)
    E(f"s_cmp_eq_u32 s{R_ROLE}, 6\n s_cbranch_scc1 M_follow")
    def wait_q():
        for i, r_ in enumerate(q_roles):
            E(f"s_bfe_u32 s{R_D}, s{R_QT}, {hex(0x80000 + 8*i)}\n s_add_u32 s{R_A}, s{R_GB}, {128*r_}")
            swait(R_WSP, f"s{R_A}", f"s{R_D}")
    def wait_kv():
        lp, ok = E.label("M_kv"), E.label("M_kvok")
        E(lp + ":")
        E(f"s_cmp_ge_u32 s{attn.A_KOFF}, s{attn.A_RDY}\n s_cbranch_scc1 {ok}")
        for i, r_ in enumerate(kv_roles):
            first = i == 0
            op = "s_mov_b32" if first else "s_cmov_b32"
            if not first: E(f"s_cmp_eq_u32 s{R_LVL}, {i}")
            E(f"{op} s{R_A}, {128*r_}\n {op} s{R_D}, {S[r_][3]}\n {op} s{R_B}, {(S[r_][1] - S[r_][3] + 1) * 8192}")
        E(f"s_add_u32 s{R_A}, s{R_A}, s{R_GB}")
        swait(R_WSP, f"s{R_A}", f"s{R_D}")
        E(f"s_add_u32 s{attn.A_RDY}, s{R_B}, s{attn.A_KMIN}\n s_add_u32 s{R_LVL}, s{R_LVL}, 1\n s_branch {lp}")
        E(ok + ":")
    E(f"s_mov_b32 s{R_LVL}, 0\n s_mov_b32 s{attn.A_RDY}, -1\n s_mov_b32 s{R_QB}, s{R_QB0}\n s_mov_b32 s{R_QT}, s{R_QT0}")
    E(f"s_load_dwordx2 s[8:9], s[0:1], {ARG['wo']}\n s_mul_i32 s{R_A}, s{R_H}, 6\n s_add_u32 s{R_A}, s{R_A}, s{R_ROLE}\n s_mul_i32 s{R_A}, s{R_A}, {128 if opf == 2 else 171*128}")
    E(f"v_min_u32 v200, 170, v0\n v_mul_u32_u24 v200, {192*128 if opf == 2 else 128}, v200\n v_add_u32 v200, s{R_A}, v200\n s_waitcnt lgkmcnt(0)")
    E(f"s_and_b32 s9, s9, 0xffff\n s_mov_b32 s10, {4*MB}\n s_mov_b32 s11, 0x20000")
    touch_wo = (lambda: E("buffer_load_dword v201, v200, s[8:11], 0 offen")) if opf in (1, 2) else None
    E("M_att:")
    errs += attn.attn_task(E, R_H, R_QB, " sc1", " sc1", False, wait_q, wait_kv, touch_wo, awin)
    E(f"s_mov_b32 s{R_QB}, s{R_QB1}\n s_mov_b32 s{R_QT}, s{R_QT1}\n s_sub_u32 s{R_NATT}, s{R_NATT}, 1\n s_cmp_lg_u32 s{R_NATT}, 0\n s_cbranch_scc1 M_att")
    publish(0x200)
    if diag: tmark(E, 2)
    HG, HALF, TJ, DT = 48, 49, 50, 51
    E(f"s_lshr_b32 s{HG}, s{R_H}, 2\n s_bfe_u32 s{HALF}, s{R_H}, 0x10001\n s_and_b32 s{TJ}, s{R_H}, 1\n s_mul_i32 s{TJ}, s{TJ}, 6\n s_add_u32 s{TJ}, s{TJ}, s{R_ROLE}")
    E(f"s_mov_b32 s{DT}, 12\n s_cmp_lt_u32 s{TJ}, 4\n s_cselect_b32 s{G_N}, 6, 5")
    def wait_ctx():
        E(f"v_min_u32 v4, 27, v{V_LANE}\n v_mul_u32_u24 v5, 37, v4\n v_lshrrev_b32 v5, 8, v5\n v_mul_u32_u24 v5, 7, v5\n v_sub_u32 v5, v4, v5")
        E(f"v_mov_b32 v6, 0x200\n v_cmp_ne_u32 vcc, 6, v5\n s_mul_i32 s{R_A}, s{HG}, {28*128}\n s_add_u32 s{R_A}, s{R_A}, {FLAGS}\n v_cndmask_b32 v5, 0, v6, vcc")
        E(f"v_lshl_add_u32 v4, v4, 7, s{R_A}")
        vwait(4, 5, 6)
        if diag: tmark(E, 3)
    errs += outp.oproj_task(E, HG, HALF, TJ, DT, " sc1", " sc1", False, wait_ctx, owin)
    publish(0x300)
    if diag: tmark(E, 4)
    ZT, ZQ, ZI = 48, 49, 50
    E(f"s_mul_i32 s{ZI}, s{R_H}, 6\n s_add_u32 s{ZI}, s{ZI}, s{R_ROLE}")
    E(f"s_mul_i32 s{R_A}, s{ZI}, 21846\n s_lshr_b32 s{R_A}, s{R_A}, 16\n s_mul_i32 s{R_B}, s{R_A}, 3\n s_add_u32 s51, s{ZI}, 64")
    E(f"s_cmp_eq_u32 s{R_B}, s{ZI}\n s_cselect_b32 s{ZI}, s{R_A}, s51")
    E("M_fin:")
    E(f"s_lshr_b32 s{ZT}, s{ZI}, 2\n s_and_b32 s{ZQ}, s{ZI}, 3")
    def wait_part(b):
        def f():
            if b == 0:
                E(f"s_mul_i32 s{R_A}, s{ZT}, 43\n s_lshr_b32 s{R_A}, s{R_A}, 9\n s_mul_i32 s{R_A}, s{R_A}, 12\n s_sub_u32 s{R_A}, s{ZT}, s{R_A}")
                E(f"s_cmp_ge_u32 s{R_A}, 6\n s_addc_u32 s{R_A}, s{R_A}, 0\n s_and_b32 s{R_B}, s{ZQ}, 2\n s_mul_i32 s{R_B}, s{R_B}, 7\n s_add_u32 s{R_A}, s{R_A}, s{R_B}")
                E("v_mov_b32 v193, 0x300")
            else:
                E(f"s_and_b32 s{R_A}, s{ZT}, 1\n s_lshl_b32 s{R_A}, s{R_A}, 1\n s_lshr_b32 s{R_B}, s{ZQ}, 1\n s_add_u32 s{R_A}, s{R_A}, s{R_B}\n s_mul_i32 s{R_A}, s{R_A}, 7\n s_add_u32 s{R_A}, s{R_A}, 6")
                E(f"s_lshr_b32 s{R_B}, s{ZT}, 1\n s_add_u32 s{R_B}, s{R_B}, 0x201\n v_mov_b32 v193, s{R_B}")
            E(f"s_lshl_b32 s{R_A}, s{R_A}, 7\n s_add_u32 s{R_A}, s{R_A}, {FLAGS}\n v_and_b32 v192, 7, v{V_LANE}\n v_mul_u32_u24 v192, {28*128}, v192\n v_add_u32 v192, s{R_A}, v192")
            vwait(192, 193, 194)
            if diag == 1: tmark(E, 5 + b)
        return f
    errs += outp.final_task(E, ZT, ZQ, " sc1", wait_part(0), wait_part(1), osc, zwin, 58)
    E(f"s_cmp_lt_u32 s{ZI}, 64\n s_mov_b32 s{ZI}, s51\n s_cbranch_scc1 M_fin")
    E("s_branch M_done")
    E("M_follow:")
    E(f"s_lshr_b32 s{HG}, s{R_H}, 2\n s_and_b32 s{HALF}, s{R_H}, 1\n s_bfe_u32 s{TJ}, s{R_H}, 0x10001\n s_mov_b32 s{DT}, 2\n s_mov_b32 s{G_N}, 32")
    FS, FR = 52, 53
    def wait_x(first):
        lv = list(fol) + [64]
        for lo, hi in ([(0, lv[0])] if first else zip(lv, lv[1:])):
            sk = E.label("M_xok")
            if not first: E(f"s_cmp_lg_u32 s{G_N}, {32 - lo//2}\n s_cbranch_scc1 {sk}")
            E(f"s_lshl_b32 s{R_B}, s{HG}, 2\n s_add_u32 s{R_B}, s{R_B}, s{G_W}\n s_mul_i32 s{R_D}, s{R_B}, {7*128}")
            for r_ in q_roles + b_roles:
                thr = need_tiles(S[r_], lo, hi - 1)
                if thr:
                    E(f"s_add_u32 s{R_A}, s{R_D}, {FLAGS + 128*r_}")
                    swait(R_WSP, f"s{R_A}", thr)
            E(sk + ":")
        if first:
            E(f"s_lshl_b32 s{R_B}, s{R_B}, 7\n s_add_u32 s54, s{R_B}, {FLAGS + 224*128}\n s_add_u32 s{FS}, s{TJ}, 1\n s_mov_b32 s{FR}, 0\n s_mov_b32 s{G_DONE}, 0x200")
            if diag: tmark(E, 2)
    B = 96
    def dloads():
        E(f"buffer_load_dword v23, off, {wsd}, s54 sc1")
        for j in range(4): E(f"buffer_load_dwordx4 {v(B + 4*j, 4)}, v{gemm.V_L16}, {wsd}, s{outp.F_KMOFF} offen offset:{1024*j} sc1 ; repoll")
    def wait_m(have):
        vm = list(E.vm)
        if arm0 < 64 and have:
            old, lp, go, got = (E.label("M_dp") for _ in range(4))
            E(f"s_cmp_le_u32 s{FS}, {arm0}\n s_cbranch_scc1 {old}")
            E(f"s_mov_b32 s{R_CNT}, 0\n v_add_u32 v16, s{outp.F_KML}, v{gemm.V_L16}")
            if specat: E(f"s_waitcnt vmcnt({4 + (63 - specat) // 4 + 1})\n s_branch {go}")
            E(lp + ":")
            E(bound())
            dloads()
            E("s_waitcnt vmcnt(0)")
            E(go + ":")
            E(f"v_max_u32 v17, v{B}, v{B+1}")
            for j in range(1, 8): E(f"v_max3_u32 v17, v17, v{B+2*j}, v{B+2*j+1}")
            E(f"v_cmp_eq_u32 vcc, -1, v17\n s_cbranch_vccz {got}")
            E(f"v_cmp_gt_u32 vcc, s{FS}, v23\n s_cbranch_vccnz {lp}\n s_branch {old}")
            E(got + ":")
            for j in range(4): E(f"ds_write_b128 v16, {v(B + 4*j, 4)} offset:{1024*j}")
            E(f"s_branch {have}")
            E(old + ":")
        E(f"v_mov_b32 v16, s54\n v_mov_b32 v17, s{FS}")
        vwait(16, 17, 23)
        E.vm = vm
    def mid(k):
        if k == 0:
            E.vmem(f"buffer_load_dword v23, off, {wsd}, s54 sc1")
            gemm.publish(E, 16); E.vm.append({"flag"})
            E(f"s_add_u32 s{G_DONE}, s{G_DONE}, 1")
        elif k == 3:
            E.vmem(f"buffer_load_dword v23, off, {wsd}, s54 sc1")
        elif k == 4:
            E(f"s_mov_b32 s{G_DONE}, {0x200 + nfused}")
        elif k == 2:
            sk = E.label("M_nosp")
            E(f"s_cmp_lg_u32 s{outp.F_PRE}, 0\n s_cselect_b32 s{R_A}, 0, s{FS}\n s_sub_u32 s{R_A}, s{R_A}, {arm0 + 1}\n s_cmp_ge_u32 s{R_A}, {64 - arm0}\n s_cbranch_scc1 {sk}")
            dloads()
            E(sk + ":")
        else:
            E.need("v23")
            E(f"v_readfirstlane_b32 s{FR}, v23\n s_add_u32 s{FS}, s{FS}, 2\n s_cmp_ge_u32 s{FR}, s{FS}\n s_cselect_b32 s{outp.F_PRE}, 1, 0")
    errs += outp.follower_task(E, HG, HALF, TJ, DT, " sc1", " sc1", wait_x, wait_m, mid, diag == 2, 25, specat if arm0 < 64 else None, nfused, gb, ge)
    assert 2*nfused + 2 <= arm0
    gemm.publish(E)
    E("M_done:")
    if diag: tmark(E, 7); tdump(E, G_WS, STAMP, 97)
    E("M_exit:\n s_endpgm")
    E(".p2align 6\n.type M_table,@object\nM_table:")
    for ri, (kind, t0, dt, n, att) in enumerate(S):
        pfi = len([1 for x in S[:ri] if (x[0] == 1) == (kind == 1)]) % 3
        qthr = lambda qb: sum(need_tiles(S[r_], 8*qb, 8*qb + 7) << (8*i) for i, r_ in enumerate(q_roles))
        a_ = (att + [0, 0])[:2]
        row = [kind, t0, dt & 0xffffffff, n, len(att), a_[0], qthr(a_[0]), a_[1], qthr(a_[1]), pfi] + [0]*6
        E(".long " + ", ".join(hex(x) for x in row))
    E(".size M_table, 448")
    E(kernel_desc(KN))
    build.names = T.names
    return E.text(), errs

if __name__ == "__main__":
    diag = 1 if "diag" in sys.argv else 2 if "diag2" in sys.argv else 0
    txt, errs = build(diag)
    print(len(errs), "hazards", len(txt), "bytes")
    open("mega_diag.s" if diag else f"cdna_kernels/{NAME}.s", "w").write(txt)
```
